```python
import torch

def _softmax(x, axis=-1):
    return torch.softmax(x, dim=axis)
def _gelu(x):
    return torch.nn.functional.gelu(x, approximate="tanh")
def _silu(x):
    return torch.nn.functional.silu(x)
def _sigmoid(x):
    return torch.sigmoid(x)
def _layernorm(x, axis=-1, eps=1e-5):
    m = x.mean(dim=axis, keepdim=True)
    v = x.var(dim=axis, keepdim=True, unbiased=False)
    return (x - m) / torch.sqrt(v + eps)
def _scatter_add(tgt, idx, src, axis=0):
    return tgt.clone().index_add_(axis, idx, src)
def _segment_sum(src, seg, n):
    out = torch.zeros((n,) + src.shape[1:], dtype=src.dtype)
    return out.index_add_(0, seg, src)
def _pad(x, pw):
    flat = tuple(v for pair in reversed(pw) for v in pair)
    return torch.nn.functional.pad(x, flat)

kernel_name = 'gated_mix__sliding_block_cached__glu_gated_reglu__decode'

def setup_inputs():

    _w = (lambda a: (lambda t: t.to(torch.bfloat16) if t.is_floating_point() else t)(torch.as_tensor(a)))
    def _A_setup():
        B, Sq, D = 2, 1, 512
        Hq, Hkv, Sk, Dh = 32, 32, 4096, 128
        assert Hq % Hkv == 0, (Hq, Hkv)
        return {
            "x": _w((lambda *s: torch.randn(*s, dtype=torch.bfloat16) * 0.05)(B, Sq, D)),
            "k_cache": _w((lambda *s: torch.randn(*s, dtype=torch.bfloat16) * 3.2)(B, Hkv, Sk, Dh)),
            "v_cache": _w((lambda *s: torch.randn(*s, dtype=torch.bfloat16) * 0.05)(B, Hkv, Sk, Dh)),
            "wq": _w((lambda *s: torch.randn(*s, dtype=torch.bfloat16) * 3.2)(D, Hq * Dh) * (D ** -0.5)),
            "wo": _w((lambda *s: torch.randn(*s, dtype=torch.bfloat16) * 0.05)(Hq * Dh, D) * ((Hq * Dh) ** -0.5)),
        }
    _A_in = _A_setup()

    def _B_setup():
        B, S, D, F = 2, 1, 512, 1376
        return {
            "x": _w((lambda *s: torch.randn(*s, dtype=torch.bfloat16) * 0.05)(B, S, D)),
            "W_gate": _w((lambda *s: torch.randn(*s, dtype=torch.bfloat16) * 0.2)(D, F) * (2.0 / D) ** 0.5),
            "W_up": _w((lambda *s: torch.randn(*s, dtype=torch.bfloat16) * 0.2)(D, F) * (2.0 / D) ** 0.5),
            "W_down": _w((lambda *s: torch.randn(*s, dtype=torch.bfloat16) * 0.2)(F, D) * (1.0 / F) ** 0.5),
        }
    _B_in = _B_setup()

    return {
        "A_x": _A_in["x"],
        "A_k_cache": _A_in["k_cache"],
        "A_v_cache": _A_in["v_cache"],
        "A_wq": _A_in["wq"],
        "A_wo": _A_in["wo"],
        "B_x": _B_in["x"],
        "B_W_gate": _B_in["W_gate"],
        "B_W_up": _B_in["W_up"],
        "B_W_down": _B_in["W_down"],
        "gate_w": _w((lambda *s: torch.randn(*s, dtype=torch.bfloat16) * 0.05)(512) * 16.0),
    }

def reference(A_x, A_k_cache, A_v_cache, A_wq, A_wo, B_x, B_W_gate, B_W_up, B_W_down, gate_w):
    def _A_ref(x, k_cache, v_cache, wq, wo):
        B, Sq, D = x.shape
        Hq, Dh = 32, 128
        Hkv, Sk = k_cache.shape[1], k_cache.shape[2]
        W = min(4096, max(256, Sk // 4))
        rep = Hq // Hkv
        q = (lambda x, *d: x.permute(*d))((x @ wq).reshape(B, Sq, Hq, Dh), 0, 2, 1, 3)
        k = (lambda x, n, axis: torch.repeat_interleave(x, n, dim=axis))(k_cache[:, :, Sk - W:, :], rep, axis=1)
        v = (lambda x, n, axis: torch.repeat_interleave(x, n, dim=axis))(v_cache[:, :, Sk - W:, :], rep, axis=1)
        scores = torch.einsum("bhqd,bhkd->bhqk", q, k) * (Dh ** -0.5)
        p = _softmax(scores, axis=-1)
        o = torch.einsum("bhqk,bhkd->bhqd", p, v)
        return (lambda x, *d: x.permute(*d))(o, 0, 2, 1, 3).reshape(B, Sq, Hq * Dh) @ wo

    def _B_ref(x, W_gate, W_up, W_down):
        gate = torch.einsum("bsd,df->bsf", x, W_gate)
        up = torch.einsum("bsd,df->bsf", x, W_up)
        gate = gate * (lambda x, dt: x.to(dt))(gate > 0, gate.dtype)
        h = gate * up
        return torch.einsum("bsf,fd->bsd", h, W_down)

    x = A_x
    g = _sigmoid((x * gate_w).sum(-1, keepdims=True))
    a = _A_ref(x, A_k_cache, A_v_cache, A_wq, A_wo)
    b = _B_ref(x, B_W_gate, B_W_up, B_W_down)
    return g * a + (1 - g) * b
```

```python
NAME = "gated_mix__sliding_block_cached__glu_gated_reglu__decode"

class Asm:
    def __init__(self):
        self.lines = []
        self.uid = 0
    def __call__(self, s=""):
        for l in s.strip("\n").split("\n"):
            self.lines.append(l if l.rstrip().endswith(":") else "    " + l.strip())
    def label(self, name):
        self.lines.append(name + ":")
    def newlabel(self, p="L"):
        self.uid += 1
        return f"{p}_{self.uid}"
    def text(self):
        return "\n".join(self.lines) + "\n"

def kernel_begin(name):
    return f""".text
.globl {name}
.p2align 8
.type {name},@function
{name}:
"""

def kernel_desc(name, vgpr, sgpr=102, accum=None):
    if accum is None:
        accum = min(256, (vgpr + 3) // 4 * 4)
    return f""".section .rodata,"a"
.p2align 6
.amdhsa_kernel {name}
  .amdhsa_next_free_vgpr {vgpr}
  .amdhsa_next_free_sgpr {sgpr}
  .amdhsa_accum_offset {accum}
  .amdhsa_group_segment_fixed_size 0
  .amdhsa_kernarg_size 104
  .amdhsa_user_sgpr_count 2
  .amdhsa_user_sgpr_kernarg_segment_ptr 1
  .amdhsa_system_sgpr_workgroup_id_x 1
  .amdhsa_float_denorm_mode_32 3
.end_amdhsa_kernel
"""

HEAD = '.amdgcn_target "amdgcn-amd-amdhsa--gfx950"\n'
```

```python
import sys, math
from asmgen import *

K_OFF = 0
V_OFF = 65536
WQ_OFF = V_OFF
WG_OFF = V_OFF + 16384
WU_OFF = V_OFF + 24576
S2_OFF = 131072
MISC = 153600
PROG, S1DONE, BAR, QRDY = 0, 4, 8, 12
MAXW, SUMW, GV = 16, 32, 48
QB, HID, PB, OB = 64, 320, 576, 1088
LDS_BYTES = 155648
WS_M1 = 0x10000
WS_M3 = 0x100000
WS_M4 = 0x140000
WS_STAMP = 0x200000
WS_SIZE = 0x400000
CEXP = 1.4426950408889634 / math.sqrt(128.0)

import struct
def f2u(x):
    return struct.unpack("<I", struct.pack("<f", x))[0]

class Regs:
    def __init__(self, lo, hi):
        self.free = list(range(lo, hi))
        self.hi = lo
    def alloc(self, n=1, align=1):
        if n > 1 and align == 1:
            align = 2
        for s in self.free:
            if s % align == 0 and all((s + i) in self.free for i in range(n)):
                for i in range(n):
                    self.free.remove(s + i)
                self.hi = max(self.hi, s + n)
                return s
        raise RuntimeError("out of registers")
    def release(self, s, n=1):
        for i in range(n):
            assert (s + i) not in self.free
            self.free.append(s + i)
        self.free.sort()

def vr(b, n=1):
    return f"v{b}" if n == 1 else f"v[{b}:{b+n-1}]"
def sr(b, n=1):
    return f"s{b}" if n == 1 else f"s[{b}:{b+n-1}]"

def gen(W=32, stamps=False, wflags="nt", gflags="nt", kvflags="nt", prefetch_code=True):
    a = Asm()
    KN = NAME + "_kernel"
    sWAVE, sH, sJ, sTAG, sE1 = 3, 4, 5, 6, 7
    pX, pK, pV, pWQ, pWO, pBX, pWG, pWU = 8, 10, 12, 14, 16, 18, 20, 22
    pWD, pGW, pOUT, pWS = 24, 26, 28, 30
    sU, sTMO, sT0, sT1, sT2, sT3 = 60, 61, 62, 63, 64, 65
    sCW, sB = 66, 67
    STAMP0 = 72
    nstamp = [0]
    def stamp(idx):
        if stamps:
            a(f"s_memrealtime s[{STAMP0+2*idx}:{STAMP0+2*idx+1}]")
            a("s_waitcnt lgkmcnt(0)")
    def dump_stamps(vtmp, vaddr):
        if not stamps:
            return
        a(f"""
        s_mov_b64 exec, 1
        s_lshl_b32 s{sT0}, s2, 3
        s_add_u32 s{sT0}, s{sT0}, s{sWAVE}
        s_lshl_b32 s{sT0}, s{sT0}, 6
        s_add_u32 s{sT0}, s{sT0}, {WS_STAMP}
        s_add_u32 s{sT2}, s{pWS}, s{sT0}
        s_addc_u32 s{sT3}, s{pWS+1}, 0
        v_mov_b32 v{vaddr}, 0
        """)
        for i in range(14):
            a(f"v_mov_b32 v{vtmp}, s{STAMP0+2*i}")
            a(f"global_store_dword v{vaddr}, v{vtmp}, s[{sT2}:{sT3}] offset:{4*i}")
            a("s_nop 1")
        a("s_waitcnt vmcnt(0)")

    a(f"""
    s_cmp_ge_u32 s2, 256
    s_cbranch_scc1 L_exit
    s_load_dwordx16 s[8:23], s[0:1], 0
    s_load_dwordx4 s[24:27], s[0:1], 64
    s_load_dwordx2 s[28:29], s[0:1], 80
    s_load_dwordx2 s[30:31], s[0:1], 96
    """)
    if stamps:
        for i in range(14):
            a(f"s_mov_b32 s{STAMP0+2*i}, 0")
        a(f"s_memrealtime s[{STAMP0}:{STAMP0+1}]")
    a(f"""
    v_lshrrev_b32 v1, 6, v0
    s_and_b32 s{sT0}, s2, 7
    s_lshr_b32 s{sT1}, s2, 3
    v_readfirstlane_b32 s{sWAVE}, v1
    s_lshr_b32 s{sH}, s{sT1}, 3
    s_lshl_b32 s{sT0}, s{sT0}, 2
    s_add_u32 s{sH}, s{sH}, s{sT0}
    s_and_b32 s{sJ}, s{sT1}, 7
    s_mul_i32 s{sU}, s{sH}, 43
    s_lshr_b32 s{sU}, s{sU}, 3
    s_mov_b32 s{sTMO}, 400000
    s_cmp_lg_u32 s{sWAVE}, 0
    s_cbranch_scc1 L_compute
    """)

    vRow4, vSl, vCb, vT = 1, 2, 3, 4
    vWQ = [8, 9]; vV = [10, 11]; vK = [12, 13, 14, 15]; vO = [16, 17]; vG = [18, 19]
    a(f"""
    v_lshrrev_b32 v{vRow4}, 4, v0
    v_and_b32 v{vSl}, 15, v0
    v_lshrrev_b32 v{vCb}, 1, v{vSl}
    v_xor_b32 v{vCb}, v{vCb}, v{vRow4}
    v_and_b32 v5, 1, v0
    v_lshlrev_b32 v5, 4, v5
    v_lshl_or_b32 v6, v{vCb}, 5, v5
    v_xor_b32 v7, 0x80, v6
    v_lshl_add_u32 v{vWQ[0]}, v{vRow4}, 13, v6
    v_lshl_add_u32 v{vWQ[1]}, v{vRow4}, 13, v7
    v_lshl_add_u32 v{vV[0]}, v{vRow4}, 8, v6
    v_lshl_add_u32 v{vV[1]}, v{vRow4}, 8, v7
    v_xor_b32 v6, v{vSl}, v{vRow4}
    """)
    for v in range(4):
        a(f"v_xor_b32 v7, {4*v}, v6")
        a(f"v_lshlrev_b32 v7, 4, v7")
        a(f"v_lshl_add_u32 v{vK[v]}, v{vRow4}, 8, v7")
    a(f"""
    v_lshrrev_b32 v20, 3, v0
    v_and_b32 v21, 7, v0
    v_lshrrev_b32 v21, 1, v21
    v_and_b32 v22, 1, v{vRow4}
    v_xor_b32 v21, v21, v22
    s_movk_i32 s{sT0}, 2752
    v_mul_lo_u32 v23, v20, s{sT0}
    v_mov_b32 v24, 0x7fff0000
    """)
    for var in range(2):
        a(f"""
        v_xor_b32 v22, {2*var}, v21
        v_lshl_or_b32 v25, v22, 5, v5
        v_lshl_add_u32 v{vO[var]}, v20, 10, v25
        v_add_u32 v{vG[var]}, v23, v25
        v_cmp_eq_u32 vcc, 3, v22
        s_nop 1
        v_cndmask_b32 v{vG[var]}, v{vG[var]}, v24, vcc
        """)
    rK, rV, rWQ, rWO, rWG, rWU, rWD = 32, 36, 40, 44, 48, 52, 56
    a("s_waitcnt lgkmcnt(0)")
    for r, p, size in [(rWQ, pWQ, 512*4096*2), (rWG, pWG, 512*1376*2), (rWU, pWU, 512*1376*2), (rK, pK, 1 << 26),
                       (rV, pV, 1 << 26), (rWO, pWO, 4096*512*2), (rWD, pWD, 1376*512*2)]:
        a(f"""
        s_mov_b32 s{r}, s{p}
        s_mov_b32 s{r+1}, s{p+1}
        s_mov_b32 s{r+2}, {size}
        s_mov_b32 s{r+3}, 0x20000
        """)
    sOff = 66
    seq = []
    for i in range(16):
        seq.append(("wq", rWQ, vWQ[(i >> 1) & 1], WQ_OFF + i*1024, wflags, i))
    for i in range(8):
        seq.append(("wg", rWG, vG[i & 1], WG_OFF + i*1024, gflags, i))
    for i in range(8):
        seq.append(("wu", rWU, vG[i & 1], WU_OFF + i*1024, gflags, i))
    for i in range(64):
        seq.append(("k", rK, vK[i & 3], K_OFF + i*1024, kvflags, i))
    for i in range(64):
        seq.append(("v", rV, vV[(i >> 1) & 1], V_OFF + i*1024, kvflags, i))
    for i in range(16):
        seq.append(("wo", rWO, vO[i & 1], S2_OFF + i*1024, wflags, i))
    for i in range(6):
        seq.append(("wd", rWD, vO[i & 1], S2_OFF + (16+i)*1024, wflags, i))
    NL = len(seq)
    miles = [16, 32, 48, 64, 80, 96] + list(range(104, 161, 8)) + [176, NL]
    steps = {"wq": 4*8192, "wg": 8*2752, "wu": 8*2752, "k": 1024, "v": 1024, "wo": 8192, "wd": 8192}
    sKV = 67
    a(f"""
    s_lshr_b32 s{sT0}, s{sJ}, 2
    s_lshl_b32 s{sT0}, s{sT0}, 5
    s_add_u32 s{sT0}, s{sT0}, s{sH}
    s_lshl_b32 s{sKV}, s{sT0}, 20
    s_and_b32 s{sT0}, s{sJ}, 3
    s_lshl_b32 s{sT0}, s{sT0}, 16
    s_add_u32 s{sKV}, s{sKV}, s{sT0}
    s_add_u32 s{sKV}, s{sKV}, 0xC0000
    v_mov_b32 v26, {MISC}
    """)
    def first_off(kind):
        if kind == "wq":
            a(f"s_lshl_b32 s{sOff}, s{sJ}, 19")
            a(f"s_lshl_b32 s{sT0}, s{sH}, 8")
            a(f"s_add_u32 s{sOff}, s{sOff}, s{sT0}")
        elif kind in ("wg", "wu"):
            a(f"s_mul_i32 s{sOff}, s{sJ}, {64*2752}")
            a(f"s_lshl_b32 s{sT0}, s{sU}, 4")
            a(f"s_add_u32 s{sOff}, s{sOff}, s{sT0}")
        elif kind in ("k", "v"):
            a(f"s_mov_b32 s{sOff}, s{sKV}")
        elif kind == "wo":
            a(f"s_lshl_b32 s{sOff}, s{sH}, 17")
            a(f"s_lshl_b32 s{sT0}, s{sJ}, 7")
            a(f"s_add_u32 s{sOff}, s{sOff}, s{sT0}")
        elif kind == "wd":
            a(f"s_lshl_b32 s{sOff}, s{sU}, 13")
            a(f"s_lshl_b32 s{sT0}, s{sJ}, 7")
            a(f"s_add_u32 s{sOff}, s{sOff}, s{sT0}")
    landed = 0
    mi = 0
    def publish(n):
        a(f"v_mov_b32 v27, {n}")
        a("s_mov_b64 exec, 1")
        a(f"ds_write_b32 v26, v27 offset:{PROG}")
        a("s_mov_b64 exec, -1")
    stamp(1)
    for n, (kind, srd, voff, lds, fl, i) in enumerate(seq):
        if kind == "v" and i == 0:
            a(f"""
            L_ld_s1:
            ds_read_b32 v27, v26 offset:{S1DONE}
            s_waitcnt lgkmcnt(0)
            v_readfirstlane_b32 s{sT0}, v27
            s_cmp_ge_u32 s{sT0}, 4
            s_cbranch_scc1 L_ld_s1_ok
            s_sub_u32 s{sTMO}, s{sTMO}, 1
            s_cbranch_scc1 L_exit
            s_sleep 1
            s_branch L_ld_s1
            L_ld_s1_ok:
            """)
        a(f"s_mov_b32 m0, {lds}")
        if i == 0:
            first_off(kind)
        else:
            a(f"s_add_u32 s{sOff}, s{sOff}, {steps[kind]}")
        a(f"buffer_load_dwordx4 v{voff}, s[{srd}:{srd+3}], s{sOff} offen {fl} lds")
        if n == min(W, NL) - 2:
            a("s_barrier")
            stamp(2)
        if n >= W - 1:
            a(f"s_waitcnt vmcnt({W-1})")
            landed = n + 2 - W
            while mi < len(miles) and miles[mi] <= landed:
                publish(miles[mi]); mi += 1
                if stamps and miles[mi-1] in (16, 32, 96):
                    stamp({16: 3, 32: 4, 96: 5}[miles[mi-1]])
    while mi < len(miles):
        a(f"s_waitcnt vmcnt({NL - miles[mi]})")
        publish(miles[mi])
        if stamps and miles[mi] in (160, NL):
            stamp({160: 6, NL: 7}[miles[mi]])
        mi += 1
    a("s_waitcnt lgkmcnt(0)")
    dump_stamps(27, 28)
    a("s_endpgm")

    a.label("L_compute")
    R = Regs(1, 256)
    vL = R.alloc(); vN = R.alloc(); vKG = R.alloc(); vR4 = R.alloc(); vC = R.alloc()
    vFF = R.alloc(); vMisc = R.alloc(); vOne = R.alloc()
    vt0 = R.alloc(8, 4); vt = [vt0 + i for i in range(8)]
    vx0 = R.alloc(4, 4); vxt = [vx0 + i for i in range(4)]
    vTR = [R.alloc(), R.alloc()]
    vTRG = R.alloc(); vTRS = R.alloc(); vTR16 = R.alloc()
    vKA = [R.alloc() for _ in range(4)]
    vXB = [R.alloc(4, 4), R.alloc(4, 4)]
    vJunk = R.alloc(4, 4)
    rWS = 32
    sM1, sM3, sM4 = 36, 37, 38
    def wait_lds(off, n, label, cmp="ge"):
        a(f"""
        {label}:
        ds_read_b32 v{vt[7]}, v{vMisc} offset:{off}
        s_waitcnt lgkmcnt(0)
        v_readfirstlane_b32 s{sT0}, v{vt[7]}
        s_cmp_ge_u32 s{sT0}, {n}
        s_cbranch_scc1 {label}_ok
        s_sub_u32 s{sTMO}, s{sTMO}, 1
        s_cbranch_scc1 L_exit
        s_sleep 1
        s_branch {label}
        {label}_ok:
        """)
    def signal(off):
        a(f"""
        s_mov_b64 exec, 1
        ds_add_u32 v{vMisc}, v{vOne} offset:{off}
        s_mov_b64 exec, -1
        """)
    nbar = [0]
    def soft_barrier():
        nbar[0] += 1
        signal(BAR)
        wait_lds(BAR, 4 * nbar[0], f"L_bar{nbar[0]}")
    def tag(v):
        a(f"v_bfi_b32 v{v}, v{vFF}, s{sTAG}, v{v}")
    def exec_n_lt2():
        a("s_mov_b32 exec_lo, 0x00030003")
        a("s_mov_b32 exec_hi, 0x00030003")

    a(f"""
    v_and_b32 v{vL}, 63, v0
    s_sub_u32 s{sCW}, s{sWAVE}, 1
    s_lshr_b32 s{sB}, s{sJ}, 2
    v_and_b32 v{vN}, 15, v{vL}
    v_lshrrev_b32 v{vKG}, 4, v{vL}
    v_lshrrev_b32 v{vR4}, 2, v{vN}
    v_and_b32 v{vC}, 3, v{vN}
    v_mov_b32 v{vFF}, 0xff
    v_mov_b32 v{vMisc}, {MISC}
    v_mov_b32 v{vOne}, 1
    v_and_b32 v{vt[0]}, 1, v{vN}
    v_lshlrev_b32 v{vt[0]}, 10, v{vt[0]}
    v_lshl_add_u32 v{vt[0]}, v{vKG}, 4, v{vt[0]}
    s_lshl_b32 s{sT0}, s{sJ}, 7
    v_add_u32 v{vt[0]}, s{sT0}, v{vt[0]}
    v_mov_b32 v{vt[4]}, 0
    v_mov_b32 v{vt[5]}, 0
    v_mov_b32 v{vt[6]}, 0
    v_mov_b32 v{vt[7]}, 0
    s_waitcnt lgkmcnt(0)
    s_load_dword s{sE1}, s[{pWS}:{pWS+1}], 0
    global_load_dwordx4 {vr(vXB[0],4)}, v{vt[0]}, s[{pX}:{pX+1}]
    global_load_dwordx4 {vr(vXB[1],4)}, v{vt[0]}, s[{pX}:{pX+1}] offset:64
    """)
    assert vt[4] % 2 == 0 and vt[5] == vt[4] + 1 and vt[7] == vt[4] + 3
    a(f"""
    s_cmp_lg_u32 s{sCW}, 0
    s_cbranch_scc1 L_noinit
    ds_write_b128 v{vMisc}, v[{vt[4]}:{vt[7]}]
    L_noinit:
    """)
    if prefetch_code:
        a(f"""
        s_cmp_lg_u32 s{sCW}, 3
        s_cbranch_scc1 L_nopf
        s_getpc_b64 s[{sT2}:{sT3}]
        L_pc:
        s_lshr_b32 s{sT0}, s2, 3
        s_and_b32 s{sT0}, s{sT0}, 15
        s_lshl_b32 s{sT0}, s{sT0}, 10
        s_sub_u32 s{sT2}, s{sT2}, L_pc-{KN}
        s_subb_u32 s{sT3}, s{sT3}, 0
        s_min_u32 s{sT0}, s{sT0}, L_codeend-{KN}-1024
        s_add_u32 s{sT2}, s{sT2}, s{sT0}
        s_addc_u32 s{sT3}, s{sT3}, 0
        v_lshlrev_b32 v{vt[1]}, 4, v{vL}
        global_load_dwordx4 {vr(vJunk,4)}, v{vt[1]}, s[{sT2}:{sT3}]
        L_nopf:
        """)
    a(f"""
    s_mov_b32 s{rWS}, s{pWS}
    s_mov_b32 s{rWS+1}, s{pWS+1}
    s_mov_b32 s{rWS+2}, {WS_SIZE}
    s_mov_b32 s{rWS+3}, 0x20000
    s_lshl_b32 s{sT0}, s{sH}, 3
    s_add_u32 s{sT0}, s{sT0}, s{sJ}
    s_mul_i32 s{sM1}, s{sT0}, 1792
    s_add_u32 s{sM1}, s{sM1}, {WS_M1}
    s_mul_i32 s{sM3}, s{sT0}, 640
    s_add_u32 s{sM3}, s{sM3}, {WS_M3}
    s_lshl_b32 s{sM4}, s{sJ}, 14
    s_lshl_b32 s{sT0}, s{sH}, 9
    s_add_u32 s{sM4}, s{sM4}, s{sT0}
    s_add_u32 s{sM4}, s{sM4}, {WS_M4}
    v_lshl_add_u32 v{vt[0]}, v{vKG}, 3, v{vR4}          ; 8kg + r4
    v_and_b32 v{vt[1]}, 1, v{vKG}
    v_lshl_or_b32 v{vt[2]}, v{vt[1]}, 2, v{vR4}         ; f = r4 | (kg&1)<<2
    v_lshlrev_b32 v{vt[3]}, 8, v{vt[0]}
    v_lshl_add_u32 v{vt[3]}, v{vC}, 3, v{vt[3]}
    v_add_u32 v{vt[3]}, {V_OFF}, v{vt[3]}
    s_lshl_b32 s{sT0}, s{sCW}, 1
    v_xor_b32 v{vTR[0]}, s{sT0}, v{vt[2]}
    v_lshl_add_u32 v{vTR[0]}, v{vTR[0]}, 5, v{vt[3]}
    s_add_u32 s{sT0}, s{sT0}, 1
    v_xor_b32 v{vTR[1]}, s{sT0}, v{vt[2]}
    v_lshl_add_u32 v{vTR[1]}, v{vTR[1]}, 5, v{vt[3]}
    v_lshrrev_b32 v{vt[2]}, 1, v{vR4}
    v_lshl_or_b32 v{vt[3]}, v{vt[1]}, 1, v{vt[2]}
    v_xor_b32 v{vt[3]}, s{sCW}, v{vt[3]}
    v_lshlrev_b32 v{vt[3]}, 5, v{vt[3]}
    v_lshl_add_u32 v{vt[3]}, v{vt[0]}, 7, v{vt[3]}
    v_lshl_add_u32 v{vt[3]}, v{vC}, 3, v{vt[3]}
    v_add_u32 v{vTRG}, {WG_OFF}, v{vt[3]}
    v_add_u32 v{vTRS}, {S2_OFF}, v{vt[3]}
    v_lshrrev_b32 v{vt[3]}, 1, v{vKG}
    v_lshl_or_b32 v{vt[3]}, v{vt[3]}, 1, v{vt[2]}
    v_xor_b32 v{vt[3]}, s{sCW}, v{vt[3]}
    v_lshlrev_b32 v{vt[3]}, 5, v{vt[3]}
    v_lshl_add_u32 v{vt[0]}, v{vKG}, 2, v{vR4}
    v_lshl_add_u32 v{vt[3]}, v{vt[0]}, 7, v{vt[3]}
    v_lshl_add_u32 v{vt[3]}, v{vC}, 3, v{vt[3]}
    v_add_u32 v{vTR16}, {S2_OFF + 160*128}, v{vt[3]}
    s_lshl_b32 s{sT0}, s{sCW}, 14
    v_lshlrev_b32 v{vt[0]}, 8, v{vN}
    v_add_u32 v{vt[0]}, s{sT0}, v{vt[0]}
    v_xor_b32 v{vt[1]}, v{vKG}, v{vN}
    """)
    for t in range(4):
        a(f"v_xor_b32 v{vt[2]}, {4*t}, v{vt[1]}")
        a(f"v_lshl_add_u32 v{vKA[t]}, v{vt[2]}, 4, v{vt[0]}")
    a(f"""
    s_waitcnt lgkmcnt(0)
    s_add_u32 s{sE1}, s{sE1}, 1
    s_and_b32 s{sTAG}, s{sE1}, 0xff
    s_barrier
    """)
    stamp(1)

    vA = R.alloc(16, 4)
    vAcc = R.alloc(8, 4)
    vM1 = R.alloc()
    a(f"""
    v_mul_u32_u24 v{vM1}, 896, v{vN}
    v_lshl_add_u32 v{vM1}, v{vKG}, 4, v{vM1}
    """)
    wait_lds(PROG, 16, "L_w16")
    stamp(2)
    for ti in range(2):
        for u in range(2):
            f = vA + (ti*2 + u) * 4
            a(f"ds_read_b64_tr_b16 {vr(f,2)}, v{vTR[ti]} offset:{u*8192}")
            a(f"ds_read_b64_tr_b16 {vr(f+2,2)}, v{vTR[ti]} offset:{u*8192+1024}")
    a("s_waitcnt vmcnt(0) lgkmcnt(0)")
    for u in range(2):
        for ti in range(2):
            f = vA + (ti*2 + u) * 4
            c = "0" if u == 0 else vr(vAcc + 4*ti, 4)
            a(f"v_mfma_f32_16x16x32_bf16 {vr(vAcc+4*ti,4)}, {vr(f,4)}, {vr(vXB[u],4)}, {c}")
    a(f"""
    s_lshl_b32 s{sT0}, s{sCW}, 7
    s_add_u32 s{sT0}, s{sT0}, s{sM1}
    s_nop 7
    """)
    for i in range(8):
        tag(vAcc + i)
    exec_n_lt2()
    a(f"buffer_store_dwordx4 {vr(vAcc,4)}, v{vM1}, s[{rWS}:{rWS+3}], s{sT0} offen sc1")
    a(f"buffer_store_dwordx4 {vr(vAcc+4,4)}, v{vM1}, s[{rWS}:{rWS+3}], s{sT0} offen offset:64 sc1")
    a("s_mov_b64 exec, -1")
    stamp(3)
    a(f"""
    s_cmp_eq_u32 s{sCW}, 3
    s_cbranch_scc1 L_gate
    """)
    wait_lds(PROG, 32, "L_w32")
    vAcc2 = R.alloc(8, 4)
    for mi_, off in enumerate((0, 8192)):
        for u in range(2):
            f = vA + (mi_*2 + u) * 4
            a(f"ds_read_b64_tr_b16 {vr(f,2)}, v{vTRG} offset:{off + u*4096}")
            a(f"ds_read_b64_tr_b16 {vr(f+2,2)}, v{vTRG} offset:{off + u*4096 + 512}")
    a("s_waitcnt lgkmcnt(0)")
    for u in range(2):
        for mi_ in range(2):
            f = vA + (mi_*2 + u) * 4
            c = "0" if u == 0 else vr(vAcc2 + 4*mi_, 4)
            a(f"v_mfma_f32_16x16x32_bf16 {vr(vAcc2+4*mi_,4)}, {vr(f,4)}, {vr(vXB[u],4)}, {c}")
    signal(S1DONE)
    a(f"""
    s_lshl_b32 s{sT0}, s{sCW}, 6
    s_add_u32 s{sT0}, s{sT0}, s{sM1}
    s_nop 7
    """)
    for i in range(8):
        tag(vAcc2 + i)
    exec_n_lt2()
    a(f"buffer_store_dwordx4 {vr(vAcc2,4)}, v{vM1}, s[{rWS}:{rWS+3}], s{sT0} offen offset:512 sc1")
    a(f"buffer_store_dwordx4 {vr(vAcc2+4,4)}, v{vM1}, s[{rWS}:{rWS+3}], s{sT0} offen offset:704 sc1")
    a("s_mov_b64 exec, -1")
    a("s_branch L_p3")
    a.label("L_gate")
    signal(S1DONE)
    gx0, gx1, gw = vA, vA + 4, vA + 8
    a(f"""
    v_lshlrev_b32 v{vt[0]}, 4, v{vL}
    global_load_dwordx4 {vr(gx0,4)}, v{vt[0]}, s[{pX}:{pX+1}]
    global_load_dwordx4 {vr(gx1,4)}, v{vt[0]}, s[{pX}:{pX+1}] offset:1024
    global_load_dwordx4 {vr(gw,4)}, v{vt[0]}, s[{pGW}:{pGW+1}]
    s_waitcnt vmcnt(0)
    """)
    z = [vt[2], vt[3]]
    a(f"v_mov_b32 v{z[0]}, 0")
    a(f"v_mov_b32 v{z[1]}, 0")
    for i in range(4):
        for bi, gx in enumerate((gx0, gx1)):
            a(f"v_lshlrev_b32 v{vt[5]}, 16, v{gx+i}")
            a(f"v_lshlrev_b32 v{vt[6]}, 16, v{gw+i}")
            a(f"v_fmac_f32 v{z[bi]}, v{vt[5]}, v{vt[6]}")
            a(f"v_and_b32 v{vt[5]}, 0xffff0000, v{gx+i}")
            a(f"v_and_b32 v{vt[6]}, 0xffff0000, v{gw+i}")
            a(f"v_fmac_f32 v{z[bi]}, v{vt[5]}, v{vt[6]}")
    for rot in (8, 4, 2, 1):
        a("s_nop 1")
        for bi in range(2):
            a(f"v_add_f32_dpp v{z[bi]}, v{z[bi]}, v{z[bi]} row_ror:{rot} row_mask:0xf bank_mask:0xf")
    def xrow(regs, op="v_add_f32"):
        tm = vxt
        for ins in ("v_permlane16_swap_b32", "v_permlane32_swap_b32"):
            for k0 in range(0, len(regs), 4):
                grp = regs[k0:k0+4]
                for r, t in zip(grp, tm):
                    a(f"v_mov_b32 v{t}, v{r}")
                a("s_nop 1")
                for r, t in zip(grp, tm):
                    a(f"{ins} v{t}, v{r}")
                a("s_nop 1")
                for r, t in zip(grp, tm):
                    a(f"{op} v{r}, v{t}, v{r}")
    xrow(z)
    a(f"""
    v_mul_f32 v{z[0]}, {hex(f2u(-1.4426950408889634))}, v{z[0]}
    v_mul_f32 v{z[1]}, {hex(f2u(-1.4426950408889634))}, v{z[1]}
    v_exp_f32 v{z[0]}, v{z[0]}
    v_exp_f32 v{z[1]}, v{z[1]}
    s_nop 0
    v_add_f32 v{z[0]}, 1.0, v{z[0]}
    v_add_f32 v{z[1]}, 1.0, v{z[1]}
    v_rcp_f32 v{z[0]}, v{z[0]}
    v_rcp_f32 v{z[1]}, v{z[1]}
    s_nop 0
    s_mov_b64 exec, 1
    ds_write_b64 v{vMisc}, v[{z[0]}:{z[1]}] offset:{GV}
    s_mov_b64 exec, -1
    """)
    assert z[0] % 2 == 0 and z[1] == z[0] + 1
    a.label("L_p3")
    stamp(4)
    vG4 = R.alloc(16, 4)
    vBad = R.alloc()
    def check_tags(regs):
        for r in regs:
            a(f"v_xor_b32 v{r}, s{sTAG}, v{r}")
        a(f"v_or_b32 v{vBad}, v{regs[0]}, v{regs[1]}")
        for k in range(2, len(regs), 2):
            a(f"v_or3_b32 v{vBad}, v{vBad}, v{regs[k]}, v{regs[k+1]}")
        a(f"v_and_b32 v{vBad}, v{vFF}, v{vBad}")
        a(f"v_cmp_ne_u32 vcc, 0, v{vBad}")
    a(f"""
    s_cmp_lg_u32 s{sCW}, 0
    s_cbranch_scc1 L_waitq
    ; scalar hint: last two q words of batch b from each of the 8 producers
    s_mul_i32 s{sT0}, s{sH}, {8*1792}
    s_mul_i32 s{sT1}, s{sB}, 896
    s_add_u32 s{sT0}, s{sT0}, s{sT1}
    s_add_u32 s{sT0}, s{sT0}, {WS_M1}
    s_add_u32 s40, s{pWS}, s{sT0}
    s_addc_u32 s41, s{pWS+1}, 0
    L_hint1:
    """)
    for jj in range(8):
        a(f"s_load_dwordx2 s[{44+2*jj}:{45+2*jj}], s[40:41], {jj*1792 + 504} glc")
    a("s_waitcnt lgkmcnt(0)")
    a(f"s_xor_b32 s42, s44, s{sTAG}")
    for k in range(45, 60):
        a(f"s_xor_b32 s43, s{k}, s{sTAG}")
        a(f"s_or_b32 s42, s42, s43")
    a(f"""
    s_and_b32 s42, s42, 0xff
    s_cbranch_scc0 L_hint1_ok
    s_sub_u32 s{sTMO}, s{sTMO}, 1
    s_cbranch_scc1 L_exit
    s_branch L_hint1
    L_hint1_ok:
    """)
    stamp(5)
    a(f"""
    v_lshrrev_b32 v{vt[1]}, 5, v{vL}
    v_mul_u32_u24 v{vt[1]}, 1792, v{vt[1]}
    v_and_b32 v{vt[2]}, 31, v{vL}
    v_lshl_add_u32 v{vt[1]}, v{vt[2]}, 4, v{vt[1]}
    L_gq:
    s_mov_b32 s{sT1}, s{sT0}
    """)
    for i in range(4):
        a(f"buffer_load_dwordx4 {vr(vG4+4*i,4)}, v{vt[1]}, s[{rWS}:{rWS+3}], s{sT1} offen sc1")
        if i < 3:
            a(f"s_add_u32 s{sT1}, s{sT1}, 3584")
    a("s_waitcnt vmcnt(0)")
    check_tags([vG4 + i for i in range(16)])
    a(f"""
    s_cbranch_vccz L_gq_ok
    s_sub_u32 s{sTMO}, s{sTMO}, 1
    s_cbranch_scc1 L_exit
    s_branch L_gq
    L_gq_ok:
    """)
    for e in range(4):
        a(f"v_add_f32 v{vG4+e}, v{vG4+e}, v{vG4+4+e}")
        a(f"v_add_f32 v{vG4+8+e}, v{vG4+8+e}, v{vG4+12+e}")
    for e in range(4):
        a(f"v_add_f32 v{vG4+e}, v{vG4+e}, v{vG4+8+e}")
    for e in range(4):
        a(f"v_mov_b32 v{vG4+4+e}, v{vG4+e}")
    a("s_nop 1")
    for e in range(4):
        a(f"v_permlane32_swap_b32 v{vG4+4+e}, v{vG4+e}")
    a("s_nop 1")
    for e in range(4):
        a(f"v_add_f32 v{vG4+e}, v{vG4+e}, v{vG4+4+e}")
    a(f"""
    v_cvt_pk_bf16_f32 v{vG4+4}, v{vG4}, v{vG4+1}
    v_cvt_pk_bf16_f32 v{vG4+5}, v{vG4+2}, v{vG4+3}
    v_lshl_add_u32 v{vt[2]}, v{vt[2]}, 3, v{vMisc}
    s_mov_b32 exec_hi, 0
    ds_write_b64 v{vt[2]}, {vr(vG4+4,2)} offset:{QB}
    s_mov_b64 exec, 1
    ds_write_b32 v{vMisc}, v{vOne} offset:{QRDY}
    s_mov_b64 exec, -1
    """)
    a.label("L_waitq")
    wait_lds(QRDY, 1, "L_wq")
    stamp(6)
    vFoff = R.alloc()
    a(f"""
    v_mul_u32_u24 v{vFoff}, 1792, v{vKG}
    v_lshl_add_u32 v{vFoff}, v{vN}, 4, v{vFoff}
    s_sub_u32 s{sT0}, s{sCW}, 1
    s_and_b32 s{sT1}, s{sT0}, 1
    s_mul_i32 s{sT1}, s{sT1}, 896
    s_mul_i32 s39, s{sH}, {8*1792}
    s_add_u32 s39, s39, s{sT1}
    s_add_u32 s39, s39, {WS_M1 + 512}
    s_cmp_gt_u32 s{sT0}, 1
    s_cbranch_scc1 L_noffn1
    """)
    def ffn_loads():
        a(f"""
        v_cmp_gt_u32 vcc, 12, v{vN}
        s_and_b64 exec, exec, vcc
        s_add_u32 s{sT1}, s39, {4*1792}
        buffer_load_dwordx4 {vr(vG4,4)}, v{vFoff}, s[{rWS}:{rWS+3}], s39 offen sc1
        buffer_load_dwordx4 {vr(vG4+4,4)}, v{vFoff}, s[{rWS}:{rWS+3}], s{sT1} offen sc1
        buffer_load_dwordx4 {vr(vG4+8,4)}, v{vFoff}, s[{rWS}:{rWS+3}], s39 offen offset:192 sc1
        buffer_load_dwordx4 {vr(vG4+12,4)}, v{vFoff}, s[{rWS}:{rWS+3}], s{sT1} offen offset:192 sc1
        s_mov_b64 exec, -1
        """)
    ffn_loads()
    a.label("L_noffn1")
    vQ = R.alloc(16, 4)
    vKf = R.alloc(64, 4)
    vS = R.alloc(16, 4)
    a(f"""
    v_lshlrev_b32 v{vt[0]}, 4, v{vKG}
    v_add_u32 v{vt[0]}, v{vMisc}, v{vt[0]}
    """)
    for t in range(4):
        a(f"ds_read_b128 {vr(vQ+4*t,4)}, v{vt[0]} offset:{QB + 64*t}")
    a(f"s_lshl_b32 s{sT1}, s{sCW}, 4")
    a(f"s_add_u32 s{sT1}, s{sT1}, 48")
    a(f"""
    L_wk:
    ds_read_b32 v{vt[7]}, v{vMisc} offset:{PROG}
    s_waitcnt lgkmcnt(0)
    v_readfirstlane_b32 s{sT0}, v{vt[7]}
    s_cmp_ge_u32 s{sT0}, s{sT1}
    s_cbranch_scc1 L_wk_ok
    s_sub_u32 s{sTMO}, s{sTMO}, 1
    s_cbranch_scc1 L_exit
    s_sleep 1
    s_branch L_wk
    L_wk_ok:
    """)
    for T in range(4):
        for t in range(4):
            a(f"ds_read_b128 {vr(vKf + 16*T + 4*t, 4)}, v{vKA[t]} offset:{T*4096}")
    for T in range(4):
        a(f"s_waitcnt lgkmcnt({min(15, 4*(3-T))})")
        for t in range(4):
            c = "0" if t == 0 else vr(vS + 4*T, 4)
            a(f"v_mfma_f32_16x16x32_bf16 {vr(vS+4*T,4)}, {vr(vKf+16*T+4*t,4)}, {vr(vQ+4*t,4)}, {c}")
    a("s_nop 7")
    vMx = R.alloc()
    a(f"v_max3_f32 v{vMx}, v{vS}, v{vS+1}, v{vS+2}")
    for k in range(3, 15, 2):
        a(f"v_max3_f32 v{vMx}, v{vMx}, v{vS+k}, v{vS+k+1}")
    a(f"v_max_f32 v{vMx}, v{vMx}, v{vS+15}")
    xrow([vMx], "v_max_f32")
    a(f"""
    s_lshl_b32 s{sT0}, s{sCW}, 2
    v_add_u32 v{vt[0]}, s{sT0}, v{vMisc}
    s_mov_b64 exec, 1
    ds_write_b32 v{vt[0]}, v{vMx} offset:{MAXW}
    s_mov_b64 exec, -1
    """)
    soft_barrier()
    stamp(7)
    vMc = R.alloc()
    a(f"""
    ds_read_b128 v[{vt[4]}:{vt[7]}], v{vMisc} offset:{MAXW}
    s_mov_b32 s{sT1}, {hex(f2u(CEXP))}
    s_waitcnt lgkmcnt(0)
    v_max3_f32 v{vMc}, v{vt[4]}, v{vt[5]}, v{vt[6]}
    v_max_f32 v{vMc}, v{vMc}, v{vt[7]}
    v_mul_f32 v{vMc}, s{sT1}, v{vMc}
    v_and_b32 v{vMc}, 0xffffff00, v{vMc}
    """)
    for k in range(16):
        a(f"v_fma_f32 v{vS+k}, v{vS+k}, s{sT1}, -v{vMc}")
    for k in range(16):
        a(f"v_exp_f32 v{vS+k}, v{vS+k}")
    vSum = R.alloc()
    a("s_nop 0")
    a(f"v_add_f32 v{vSum}, v{vS}, v{vS+1}")
    for k in range(2, 16):
        a(f"v_add_f32 v{vSum}, v{vSum}, v{vS+k}")
    for T in range(4):
        a(f"v_cvt_pk_bf16_f32 v{vKf+2*T}, v{vS+4*T}, v{vS+4*T+1}")
        a(f"v_cvt_pk_bf16_f32 v{vKf+2*T+1}, v{vS+4*T+2}, v{vS+4*T+3}")
    xrow([vSum])
    a(f"""
    s_lshl_b32 s{sT0}, s{sCW}, 7
    v_lshl_add_u32 v{vt[1]}, v{vKG}, 3, v{vMisc}
    v_add_u32 v{vt[1]}, s{sT0}, v{vt[1]}
    s_mov_b32 exec_lo, 0x00010001
    s_mov_b32 exec_hi, 0x00010001
    """)
    for T in range(4):
        a(f"ds_write_b64 v{vt[1]}, {vr(vKf+2*T,2)} offset:{PB + 32*T}")
    a(f"""
    s_mov_b64 exec, 1
    ds_write_b32 v{vt[0]}, v{vSum} offset:{SUMW}
    s_mov_b64 exec, -1
    """)
    soft_barrier()
    stamp(8)
    R.release(vKf, 64); R.release(vQ, 16)
    vP = R.alloc(32, 4)
    a(f"""
    v_lshl_add_u32 v{vt[0]}, v{vKG}, 4, v{vMisc}
    """)
    for u in range(8):
        a(f"ds_read_b128 {vr(vP+4*u,4)}, v{vt[0]} offset:{PB + 64*u}")
    a(f"""
    s_cmp_lg_u32 s{sCW}, 0
    s_cbranch_scc1 L_nostat
    ds_read_b128 v[{vt[4]}:{vt[7]}], v{vMisc} offset:{SUMW}
    s_waitcnt lgkmcnt(0)
    v_add_f32 v{vt[4]}, v{vt[4]}, v{vt[5]}
    v_add_f32 v{vt[6]}, v{vt[6]}, v{vt[7]}
    v_add_f32 v{vt[5]}, v{vt[4]}, v{vt[6]}
    v_mov_b32 v{vt[4]}, v{vMc}
    """)
    tag(vt[4])
    tag(vt[5])
    a(f"""
    v_mov_b32 v{vt[6]}, v{vt[4]}
    v_mov_b32 v{vt[7]}, v{vt[5]}
    v_mov_b32 v{vt[0]}, 0
    s_mov_b64 exec, 1
    buffer_store_dwordx4 v[{vt[4]}:{vt[7]}], v{vt[0]}, s[{rWS}:{rWS+3}], s{sM3} offen offset:512 sc1
    s_mov_b64 exec, -1
    L_nostat:
    """)
    a(f"""
    s_sub_u32 s{sT0}, s{sCW}, 1
    s_cmp_gt_u32 s{sT0}, 1
    s_cbranch_scc1 L_noffn2
    L_ffnchk:
    s_waitcnt vmcnt(0)
    v_cmp_gt_u32 vcc, 12, v{vN}
    s_and_b64 exec, exec, vcc
    """)
    check_tags([vG4 + i for i in range(16)])
    a(f"""
    s_mov_b64 exec, -1
    s_cbranch_vccz L_ffn_ok
    s_sub_u32 s{sTMO}, s{sTMO}, 1
    s_cbranch_scc1 L_exit
    """)
    ffn_loads()
    a("s_branch L_ffnchk")
    a.label("L_ffn_ok")
    gsum = [vG4 + e for e in range(4)]; usum = [vG4 + 8 + e for e in range(4)]
    for e in range(4):
        a(f"v_add_f32 v{vG4+e}, v{vG4+e}, v{vG4+4+e}")
        a(f"v_add_f32 v{vG4+8+e}, v{vG4+8+e}, v{vG4+12+e}")
    xrow(gsum + usum)
    a(f"""
    s_add_u32 s{sT1}, s{sH}, 1
    s_mul_i32 s{sT1}, s{sT1}, 43
    s_lshr_b32 s{sT1}, s{sT1}, 3
    s_sub_u32 s{sT1}, s{sT1}, s{sU}
    s_lshl_b32 s{sT1}, s{sT1}, 1
    v_cmp_gt_u32 vcc, s{sT1}, v{vN}
    """)
    for e in range(4):
        a(f"v_max_f32 v{gsum[e]}, 0, v{gsum[e]}")
        a(f"v_mul_f32 v{gsum[e]}, v{gsum[e]}, v{usum[e]}")
        a(f"v_cndmask_b32 v{gsum[e]}, 0, v{gsum[e]}, vcc")
    a(f"""
    v_cvt_pk_bf16_f32 v{vG4+4}, v{gsum[0]}, v{gsum[1]}
    v_cvt_pk_bf16_f32 v{vG4+5}, v{gsum[2]}, v{gsum[3]}
    s_lshl_b32 s{sT0}, s{sT0}, 7
    v_lshl_add_u32 v{vt[1]}, v{vN}, 3, v{vMisc}
    v_add_u32 v{vt[1]}, s{sT0}, v{vt[1]}
    s_mov_b64 exec, 0xfff
    ds_write_b64 v{vt[1]}, {vr(vG4+4,2)} offset:{HID}
    s_mov_b64 exec, -1
    L_noffn2:
    """)
    stamp(9)
    vO = R.alloc(8, 4)
    vVf = R.alloc(16, 4)
    for u in range(8):
        wait_lds(PROG, 104 + 8*u, f"L_wv{u}")
        f0 = vVf + (u & 1) * 8
        for ti in range(2):
            a(f"ds_read_b64_tr_b16 {vr(f0+4*ti,2)}, v{vTR[ti]} offset:{u*8192}")
            a(f"ds_read_b64_tr_b16 {vr(f0+4*ti+2,2)}, v{vTR[ti]} offset:{u*8192+1024}")
        a("s_waitcnt lgkmcnt(0)")
        for ti in range(2):
            c = "0" if u == 0 else vr(vO + 4*ti, 4)
            a(f"v_mfma_f32_16x16x32_bf16 {vr(vO+4*ti,4)}, {vr(f0+4*ti,4)}, {vr(vP+4*u,4)}, {c}")
    stamp(10)
    a(f"""
    v_and_b32 v{vt[0]}, 1, v{vN}
    v_cmp_eq_u32 vcc, 1, v{vt[0]}
    v_lshlrev_b32 v{vt[1]}, 6, v{vt[0]}
    v_lshl_add_u32 v{vt[1]}, v{vKG}, 4, v{vt[1]}
    s_lshl_b32 s{sT0}, s{sCW}, 7
    s_add_u32 s{sT0}, s{sT0}, s{sM3}
    s_nop 5
    """)
    for e in range(4):
        a(f"v_cndmask_b32 v{vO+e}, v{vO+e}, v{vO+4+e}, vcc")
    for e in range(4):
        tag(vO + e)
    exec_n_lt2()
    a(f"buffer_store_dwordx4 {vr(vO,4)}, v{vt[1]}, s[{rWS}:{rWS+3}], s{sT0} offen sc1")
    a("s_mov_b64 exec, -1")
    R.release(vP, 32); R.release(vVf, 16)
    vWf = R.alloc(16, 4)
    vDf = R.alloc(8, 4)
    vHf = R.alloc(8, 4)
    vYa = R.alloc(4, 4); vYf = R.alloc(4, 4)
    vGl = R.alloc()
    vX3 = R.alloc(); vX3s = R.alloc()
    a(f"""
    s_lshr_b32 s{sT1}, s{sCW}, 1
    s_lshl_b32 s{sT2}, s{sH}, 3
    s_lshl_b32 s{sT3}, s{sT1}, 2
    s_add_u32 s{sT2}, s{sT2}, s{sT3}
    s_mul_i32 s40, s{sT2}, 640
    s_add_u32 s40, s40, {WS_M3}
    s_and_b32 s{sT3}, s{sCW}, 1
    s_lshl_b32 s{sT3}, s{sT3}, 8
    v_mul_u32_u24 v{vX3s}, 640, v{vKG}
    v_lshl_add_u32 v{vX3}, v{vN}, 4, v{vX3s}
    v_add_u32 v{vX3}, s{sT3}, v{vX3}
    """)
    wait_lds(PROG, NL, "L_wall")
    for u in range(4):
        a(f"ds_read_b64_tr_b16 {vr(vWf+4*u,2)}, v{vTRS} offset:{u*4096}")
        a(f"ds_read_b64_tr_b16 {vr(vWf+4*u+2,2)}, v{vTRS} offset:{u*4096+512}")
    a(f"""
    ds_read_b64_tr_b16 {vr(vDf,2)}, v{vTRS} offset:{4*4096}
    ds_read_b64_tr_b16 {vr(vDf+2,2)}, v{vTRS} offset:{4*4096+512}
    ds_read_b64_tr_b16 {vr(vDf+4,2)}, v{vTR16}
    v_and_b32 v{vt[0]}, 1, v{vN}
    v_lshlrev_b32 v{vt[1]}, 7, v{vt[0]}
    v_add_u32 v{vt[1]}, v{vMisc}, v{vt[1]}
    v_lshl_add_u32 v{vt[2]}, v{vKG}, 4, v{vt[1]}
    v_lshl_add_u32 v{vt[3]}, v{vKG}, 3, v{vt[1]}
    v_lshl_add_u32 v{vt[4]}, v{vt[0]}, 2, v{vMisc}
    """)
    stamp(11)
    vG3 = vG4
    a(f"""
    L_g3:
    buffer_load_dwordx4 {vr(vG3,4)}, v{vX3}, s[{rWS}:{rWS+3}], s40 offen sc1
    buffer_load_dwordx2 {vr(vG3+4,2)}, v{vX3s}, s[{rWS}:{rWS+3}], s40 offen offset:512 sc1
    s_waitcnt vmcnt(0)
    """)
    check_tags([vG3 + i for i in range(6)])
    a(f"""
    s_cbranch_vccz L_g3_ok
    s_sub_u32 s{sTMO}, s{sTMO}, 1
    s_cbranch_scc1 L_exit
    s_branch L_g3
    L_g3_ok:
    """)
    stamp(12)
    vm = vG3 + 6; vw = vG3 + 7
    a(f"v_mov_b32 v{vm}, v{vG3+4}")
    xrow([vm], "v_max_f32")
    a(f"""
    v_sub_f32 v{vw}, v{vG3+4}, v{vm}
    v_exp_f32 v{vw}, v{vw}
    s_nop 0
    v_mul_f32 v{vm}, v{vw}, v{vG3+5}
    """)
    for e in range(4):
        a(f"v_mul_f32 v{vG3+e}, v{vw}, v{vG3+e}")
    xrow([vG3, vG3+1, vG3+2, vG3+3]); xrow([vm])
    a(f"""
    v_rcp_f32 v{vm}, v{vm}
    s_nop 0
    """)
    for e in range(4):
        a(f"v_mul_f32 v{vG3+e}, v{vm}, v{vG3+e}")
    a(f"""
    v_cvt_pk_bf16_f32 v{vG3+4}, v{vG3}, v{vG3+1}
    v_cvt_pk_bf16_f32 v{vG3+5}, v{vG3+2}, v{vG3+3}
    s_lshl_b32 s{sT0}, s{sCW}, 7
    v_lshl_add_u32 v{vt[5]}, v{vN}, 3, v{vMisc}
    v_add_u32 v{vt[5]}, s{sT0}, v{vt[5]}
    s_mov_b64 exec, 0xffff
    ds_write_b64 v{vt[5]}, {vr(vG3+4,2)} offset:{OB}
    s_mov_b64 exec, -1
    s_waitcnt lgkmcnt(0)
    s_barrier
    ds_read_b128 {vr(vHf,4)}, v{vt[2]} offset:{HID}
    ds_read_b64 {vr(vHf+4,2)}, v{vt[3]} offset:{HID+64}
    ds_read_b32 v{vGl}, v{vt[4]} offset:{GV}
    v_and_b32 v{vt[0]}, 1, v{vN}
    v_lshlrev_b32 v{vt[1]}, 8, v{vt[0]}
    v_add_u32 v{vt[1]}, v{vMisc}, v{vt[1]}
    v_lshl_add_u32 v{vt[2]}, v{vKG}, 4, v{vt[1]}
    """)
    vOf = R.alloc(16, 4)
    for u in range(4):
        a(f"ds_read_b128 {vr(vOf+4*u,4)}, v{vt[2]} offset:{OB + 64*u}")
    a("s_waitcnt lgkmcnt(4)")
    a(f"v_mfma_f32_16x16x32_bf16 {vr(vYf,4)}, {vr(vDf,4)}, {vr(vHf,4)}, 0")
    for u in range(4):
        a(f"s_waitcnt lgkmcnt({3-u})")
        c = "0" if u == 0 else vr(vYa, 4)
        a(f"v_mfma_f32_16x16x32_bf16 {vr(vYa,4)}, {vr(vWf+4*u,4)}, {vr(vOf+4*u,4)}, {c}")
    a(f"v_mfma_f32_16x16x16_bf16 {vr(vYf,4)}, {vr(vDf+4,2)}, {vr(vHf+4,2)}, {vr(vYf,4)}")
    a(f"""
    v_sub_f32 v{vt[0]}, 1.0, v{vGl}
    v_and_b32 v{vt[1]}, 1, v{vN}
    v_lshlrev_b32 v{vt[1]}, 8, v{vt[1]}
    v_lshl_add_u32 v{vt[1]}, v{vKG}, 4, v{vt[1]}
    s_lshl_b32 s{sT0}, s{sCW}, 6
    s_add_u32 s{sT0}, s{sT0}, s{sM4}
    s_nop 7
    """)
    for e in range(4):
        a(f"v_mul_f32 v{vYf+e}, v{vt[0]}, v{vYf+e}")
    for e in range(4):
        a(f"v_fmac_f32 v{vYf+e}, v{vGl}, v{vYa+e}")
    for e in range(4):
        tag(vYf + e)
    exec_n_lt2()
    a(f"buffer_store_dwordx4 {vr(vYf,4)}, v{vt[1]}, s[{rWS}:{rWS+3}], s{sT0} offen sc1")
    a("s_mov_b64 exec, -1")
    a(f"""
    s_lshl_b32 s{sT0}, s{sJ}, 2
    s_cmp_lg_u32 s{sT0}, s{sH}
    s_cbranch_scc1 L_done
    s_lshl_b32 s{sT0}, s{sJ}, 14
    s_lshl_b32 s{sT1}, s{sCW}, 7
    s_add_u32 s{sT0}, s{sT0}, s{sT1}
    s_add_u32 s40, s{sT0}, {WS_M4}
    s_add_u32 s41, s40, 4096
    s_add_u32 s42, s40, 8192
    s_add_u32 s43, s40, 12288
    v_lshrrev_b32 v{vt[1]}, 3, v{vL}
    v_lshlrev_b32 v{vt[1]}, 9, v{vt[1]}
    v_and_b32 v{vt[2]}, 7, v{vL}
    v_lshl_add_u32 v{vt[1]}, v{vt[2]}, 4, v{vt[1]}
    L_g4:
    """)
    for i in range(4):
        a(f"buffer_load_dwordx4 {vr(vG4+4*i,4)}, v{vt[1]}, s[{rWS}:{rWS+3}], s{40+i} offen sc1")
    a("s_waitcnt vmcnt(0)")
    check_tags([vG4 + i for i in range(16)])
    a(f"""
    s_cbranch_vccz L_g4_ok
    s_sub_u32 s{sTMO}, s{sTMO}, 1
    s_cbranch_scc1 L_exit
    s_branch L_g4
    L_g4_ok:
    """)
    for e in range(4):
        a(f"v_add_f32 v{vG4+e}, v{vG4+e}, v{vG4+4+e}")
        a(f"v_add_f32 v{vG4+8+e}, v{vG4+8+e}, v{vG4+12+e}")
    for e in range(4):
        a(f"v_add_f32 v{vG4+e}, v{vG4+e}, v{vG4+8+e}")
    a("s_nop 1")
    for e in range(4):
        a(f"v_add_f32_dpp v{vG4+e}, v{vG4+e}, v{vG4+e} row_ror:8 row_mask:0xf bank_mask:0xf")
    xrow([vG4, vG4+1, vG4+2, vG4+3])
    a(f"""
    v_cvt_pk_bf16_f32 v{vG4+4}, v{vG4}, v{vG4+1}
    v_cvt_pk_bf16_f32 v{vG4+5}, v{vG4+2}, v{vG4+3}
    s_lshr_b32 s{sT0}, s{sCW}, 1
    s_lshl_b32 s{sT0}, s{sT0}, 10
    s_and_b32 s{sT1}, s{sCW}, 1
    s_lshl_b32 s{sT1}, s{sT1}, 6
    s_add_u32 s{sT0}, s{sT0}, s{sT1}
    s_lshl_b32 s{sT1}, s{sJ}, 7
    s_add_u32 s{sT0}, s{sT0}, s{sT1}
    v_lshlrev_b32 v{vt[2]}, 3, v{vt[2]}
    v_add_u32 v{vt[2]}, s{sT0}, v{vt[2]}
    s_mov_b64 exec, 0xff
    global_store_dwordx2 v{vt[2]}, {vr(vG4+4,2)}, s[{pOUT}:{pOUT+1}]
    ; every workgroup has read the epoch by now: advance it for the next launch
    s_or_b32 s{sT0}, s{sJ}, s{sCW}
    s_cmp_lg_u32 s{sT0}, 0
    s_cbranch_scc1 L_done
    s_mov_b64 exec, 1
    v_mov_b32 v{vt[0]}, 0
    v_mov_b32 v{vt[1]}, s{sE1}
    global_store_dword v{vt[0]}, v{vt[1]}, s[{pWS}:{pWS+1}] sc1
    L_done:
    """)
    stamp(13)
    dump_stamps(vt[0], vt[1])
    a.label("L_exit")
    a("s_endpgm")
    a.label("L_codeend")
    nv = R.hi
    txt = (f"; @launch grid=(256,1,1) block=(320,1,1) lds={LDS_BYTES}\n" + HEAD + kernel_begin(KN) + a.text()
           + kernel_desc(KN, nv, sgpr=100))
    return txt

if __name__ == "__main__":
    import argparse
    ap = argparse.ArgumentParser()
    ap.add_argument("-o", default="main.s"); ap.add_argument("--stamps", action="store_true")
    ap.add_argument("-W", type=int, default=32)
    ap.add_argument("--nopf", action="store_true")
    x = ap.parse_args()
    open(x.o, "w").write(gen(W=x.W, stamps=x.stamps, prefetch_code=not x.nopf))
```

```python
import sys, math
from asmgen import *

K_OFF = 0
V_OFF = 65536
WQ_OFF = V_OFF
WG_OFF = V_OFF + 16384
WU_OFF = V_OFF + 24576
S2_OFF = 131072
MISC = 153600
PROG, S1DONE, BAR, QRDY = 0, 4, 8, 12
MAXW, SUMW, GV = 16, 32, 48
QB, HID, PB, OB = 64, 320, 576, 1088
LDS_BYTES = 155648
WS_M1 = 0x10000
WS_M3 = 0x100000
WS_M4 = 0x140000
WS_STAMP = 0x200000
WS_SIZE = 0x400000
CEXP = 1.4426950408889634 / math.sqrt(128.0)

import struct
def f2u(x):
    return struct.unpack("<I", struct.pack("<f", x))[0]

class Regs:
    def __init__(self, lo, hi):
        self.free = list(range(lo, hi))
        self.hi = lo
    def alloc(self, n=1, align=1):
        if n > 1 and align == 1:
            align = 2
        for s in self.free:
            if s % align == 0 and all((s + i) in self.free for i in range(n)):
                for i in range(n):
                    self.free.remove(s + i)
                self.hi = max(self.hi, s + n)
                return s
        raise RuntimeError("out of registers")
    def release(self, s, n=1):
        for i in range(n):
            assert (s + i) not in self.free
            self.free.append(s + i)
        self.free.sort()

def vr(b, n=1):
    return f"v{b}" if n == 1 else f"v[{b}:{b+n-1}]"
def sr(b, n=1):
    return f"s{b}" if n == 1 else f"s[{b}:{b+n-1}]"

def gen(W=32, stamps=False, wflags="nt", gflags="nt", kvflags="nt", prefetch_code=True, xcdmap=True):
    a = Asm()
    KN = NAME + "_kernel"
    sWAVE, sH, sJ, sTAG, sE1 = 3, 4, 5, 6, 7
    pX, pK, pV, pWQ, pWO, pBX, pWG, pWU = 8, 10, 12, 14, 16, 18, 20, 22
    pWD, pGW, pOUT, pWS = 24, 26, 28, 30
    sU, sTMO, sT0, sT1, sT2, sT3 = 60, 61, 62, 63, 64, 65
    sCW, sB = 66, 67
    STAMP0 = 72
    nstamp = [0]
    def stamp(idx):
        if stamps:
            a(f"s_memrealtime s[{STAMP0+2*idx}:{STAMP0+2*idx+1}]")
            a("s_waitcnt lgkmcnt(0)")
    def dump_stamps(vtmp, vaddr):
        if not stamps:
            return
        a(f"""
        s_mov_b64 exec, 1
        s_lshl_b32 s{sT0}, s2, 3
        s_add_u32 s{sT0}, s{sT0}, s{sWAVE}
        s_lshl_b32 s{sT0}, s{sT0}, 6
        s_add_u32 s{sT0}, s{sT0}, {WS_STAMP}
        s_add_u32 s{sT2}, s{pWS}, s{sT0}
        s_addc_u32 s{sT3}, s{pWS+1}, 0
        v_mov_b32 v{vaddr}, 0
        """)
        for i in range(14):
            a(f"v_mov_b32 v{vtmp}, s{STAMP0+2*i}")
            a(f"global_store_dword v{vaddr}, v{vtmp}, s[{sT2}:{sT3}] offset:{4*i}")
            a("s_nop 1")
        a("s_waitcnt vmcnt(0)")

    a(f"""
    s_cmp_ge_u32 s2, 256
    s_cbranch_scc1 L_exit
    s_load_dwordx16 s[8:23], s[0:1], 0
    s_load_dwordx4 s[24:27], s[0:1], 64
    s_load_dwordx2 s[28:29], s[0:1], 80
    s_load_dwordx2 s[30:31], s[0:1], 96
    """)
    if stamps:
        for i in range(14):
            a(f"s_mov_b32 s{STAMP0+2*i}, 0")
        a(f"s_memrealtime s[{STAMP0}:{STAMP0+1}]")
    a(f"""
    v_lshrrev_b32 v1, 6, v0
    s_and_b32 s{sT0}, s2, 7
    s_lshr_b32 s{sT1}, s2, 3
    v_readfirstlane_b32 s{sWAVE}, v1
    s_lshr_b32 s{sH}, s{sT1}, 3
    s_lshl_b32 s{sT0}, s{sT0}, 2
    s_add_u32 s{sH}, s{sH}, s{sT0}
    s_and_b32 s{sJ}, s{sT1}, 7
    {"" if xcdmap else f"s_lshr_b32 s{sH}, s2, 3"}
    {"" if xcdmap else f"s_and_b32 s{sJ}, s2, 7"}
    s_mul_i32 s{sU}, s{sH}, 43
    s_lshr_b32 s{sU}, s{sU}, 3
    s_mov_b32 s{sTMO}, 400000
    s_cmp_lg_u32 s{sWAVE}, 0
    s_cbranch_scc1 L_compute
    """)

    vRow4, vSl, vCb, vT = 1, 2, 3, 4
    vWQ = [8, 9]; vV = [10, 11]; vK = [12, 13, 14, 15]; vO = [16, 17]; vG = [18, 19]
    a(f"""
    v_lshrrev_b32 v{vRow4}, 4, v0
    v_and_b32 v{vSl}, 15, v0
    v_lshrrev_b32 v{vCb}, 1, v{vSl}
    v_xor_b32 v{vCb}, v{vCb}, v{vRow4}
    v_and_b32 v5, 1, v0
    v_lshlrev_b32 v5, 4, v5
    v_lshl_or_b32 v6, v{vCb}, 5, v5
    v_xor_b32 v7, 0x80, v6
    v_lshl_add_u32 v{vWQ[0]}, v{vRow4}, 13, v6
    v_lshl_add_u32 v{vWQ[1]}, v{vRow4}, 13, v7
    v_lshl_add_u32 v{vV[0]}, v{vRow4}, 8, v6
    v_lshl_add_u32 v{vV[1]}, v{vRow4}, 8, v7
    v_xor_b32 v6, v{vSl}, v{vRow4}
    """)
    for v in range(4):
        a(f"v_xor_b32 v7, {4*v}, v6")
        a(f"v_lshlrev_b32 v7, 4, v7")
        a(f"v_lshl_add_u32 v{vK[v]}, v{vRow4}, 8, v7")
    a(f"""
    v_lshrrev_b32 v20, 3, v0
    v_and_b32 v21, 7, v0
    v_lshrrev_b32 v21, 1, v21
    v_and_b32 v22, 1, v{vRow4}
    v_xor_b32 v21, v21, v22
    s_movk_i32 s{sT0}, 2752
    v_mul_lo_u32 v23, v20, s{sT0}
    v_mov_b32 v24, 0x7fff0000
    """)
    for var in range(2):
        a(f"""
        v_xor_b32 v22, {2*var}, v21
        v_lshl_or_b32 v25, v22, 5, v5
        v_lshl_add_u32 v{vO[var]}, v20, 10, v25
        v_add_u32 v{vG[var]}, v23, v25
        v_cmp_eq_u32 vcc, 3, v22
        s_nop 1
        v_cndmask_b32 v{vG[var]}, v{vG[var]}, v24, vcc
        """)
    rK, rV, rWQ, rWO, rWG, rWU, rWD = 32, 36, 40, 44, 48, 52, 56
    a("s_waitcnt lgkmcnt(0)")
    for r, p, size in [(rWQ, pWQ, 512*4096*2), (rWG, pWG, 512*1376*2), (rWU, pWU, 512*1376*2), (rK, pK, 1 << 26),
                       (rV, pV, 1 << 26), (rWO, pWO, 4096*512*2), (rWD, pWD, 1376*512*2)]:
        a(f"""
        s_mov_b32 s{r}, s{p}
        s_mov_b32 s{r+1}, s{p+1}
        s_mov_b32 s{r+2}, {size}
        s_mov_b32 s{r+3}, 0x20000
        """)
    sOff = 66
    seq = []
    for i in range(16):
        seq.append(("wq", rWQ, vWQ[(i >> 1) & 1], WQ_OFF + i*1024, wflags, i))
    for i in range(8):
        seq.append(("wg", rWG, vG[i & 1], WG_OFF + i*1024, gflags, i))
    for i in range(8):
        seq.append(("wu", rWU, vG[i & 1], WU_OFF + i*1024, gflags, i))
    for i in range(64):
        seq.append(("k", rK, vK[i & 3], K_OFF + i*1024, kvflags, i))
    for i in range(64):
        seq.append(("v", rV, vV[(i >> 1) & 1], V_OFF + i*1024, kvflags, i))
    for i in range(16):
        seq.append(("wo", rWO, vO[i & 1], S2_OFF + i*1024, wflags, i))
    for i in range(6):
        seq.append(("wd", rWD, vO[i & 1], S2_OFF + (16+i)*1024, wflags, i))
    NL = len(seq)
    miles = [16, 32, 48, 64, 80, 96] + list(range(104, 161, 8)) + [176, NL]
    steps = {"wq": 4*8192, "wg": 8*2752, "wu": 8*2752, "k": 1024, "v": 1024, "wo": 8192, "wd": 8192}
    sKV = 67
    a(f"""
    s_lshr_b32 s{sT0}, s{sJ}, 2
    s_lshl_b32 s{sT0}, s{sT0}, 5
    s_add_u32 s{sT0}, s{sT0}, s{sH}
    s_lshl_b32 s{sKV}, s{sT0}, 20
    s_and_b32 s{sT0}, s{sJ}, 3
    s_lshl_b32 s{sT0}, s{sT0}, 16
    s_add_u32 s{sKV}, s{sKV}, s{sT0}
    s_add_u32 s{sKV}, s{sKV}, 0xC0000
    v_mov_b32 v26, {MISC}
    """)
    def first_off(kind):
        if kind == "wq":
            a(f"s_lshl_b32 s{sOff}, s{sJ}, 19")
            a(f"s_lshl_b32 s{sT0}, s{sH}, 8")
            a(f"s_add_u32 s{sOff}, s{sOff}, s{sT0}")
        elif kind in ("wg", "wu"):
            a(f"s_mul_i32 s{sOff}, s{sJ}, {64*2752}")
            a(f"s_lshl_b32 s{sT0}, s{sU}, 4")
            a(f"s_add_u32 s{sOff}, s{sOff}, s{sT0}")
        elif kind in ("k", "v"):
            a(f"s_mov_b32 s{sOff}, s{sKV}")
        elif kind == "wo":
            a(f"s_lshl_b32 s{sOff}, s{sH}, 17")
            a(f"s_lshl_b32 s{sT0}, s{sJ}, 7")
            a(f"s_add_u32 s{sOff}, s{sOff}, s{sT0}")
        elif kind == "wd":
            a(f"s_lshl_b32 s{sOff}, s{sU}, 13")
            a(f"s_lshl_b32 s{sT0}, s{sJ}, 7")
            a(f"s_add_u32 s{sOff}, s{sOff}, s{sT0}")
    landed = 0
    mi = 0
    def publish(n):
        a(f"v_mov_b32 v27, {n}")
        a("s_mov_b64 exec, 1")
        a(f"ds_write_b32 v26, v27 offset:{PROG}")
        a("s_mov_b64 exec, -1")
    stamp(1)
    for n, (kind, srd, voff, lds, fl, i) in enumerate(seq):
        if kind == "v" and i == 0:
            a(f"""
            L_ld_s1:
            ds_read_b32 v27, v26 offset:{S1DONE}
            s_waitcnt lgkmcnt(0)
            v_readfirstlane_b32 s{sT0}, v27
            s_cmp_ge_u32 s{sT0}, 4
            s_cbranch_scc1 L_ld_s1_ok
            s_sub_u32 s{sTMO}, s{sTMO}, 1
            s_cbranch_scc1 L_exit
            s_sleep 1
            s_branch L_ld_s1
            L_ld_s1_ok:
            """)
        a(f"s_mov_b32 m0, {lds}")
        if i == 0:
            first_off(kind)
        else:
            a(f"s_add_u32 s{sOff}, s{sOff}, {steps[kind]}")
        a(f"buffer_load_dwordx4 v{voff}, s[{srd}:{srd+3}], s{sOff} offen {fl} lds")
        if n == min(W, NL) - 2:
            a("s_barrier")
            stamp(2)
        if n >= W - 1:
            a(f"s_waitcnt vmcnt({W-1})")
            landed = n + 2 - W
            while mi < len(miles) and miles[mi] <= landed:
                publish(miles[mi]); mi += 1
                if stamps and miles[mi-1] in (16, 32, 96):
                    stamp({16: 3, 32: 4, 96: 5}[miles[mi-1]])
    while mi < len(miles):
        a(f"s_waitcnt vmcnt({NL - miles[mi]})")
        publish(miles[mi])
        if stamps and miles[mi] in (160, NL):
            stamp({160: 6, NL: 7}[miles[mi]])
        mi += 1
    a("s_waitcnt lgkmcnt(0)")
    dump_stamps(27, 28)
    a("s_endpgm")

    a.label("L_compute")
    R = Regs(1, 256)
    vL = R.alloc(); vN = R.alloc(); vKG = R.alloc(); vR4 = R.alloc(); vC = R.alloc()
    vFF = R.alloc(); vMisc = R.alloc(); vOne = R.alloc()
    vt0 = R.alloc(8, 4); vt = [vt0 + i for i in range(8)]
    vx0 = R.alloc(4, 4); vxt = [vx0 + i for i in range(4)]
    vTR = [R.alloc(), R.alloc()]
    vTRG = R.alloc(); vTRS = R.alloc(); vTR16 = R.alloc()
    vKA = [R.alloc() for _ in range(4)]
    vXB = [R.alloc(4, 4), R.alloc(4, 4)]
    vJunk = R.alloc(4, 4)
    rWS = 32
    sM1, sM3, sM4 = 36, 37, 38
    def wait_lds(off, n, label, cmp="ge"):
        a(f"""
        {label}:
        ds_read_b32 v{vt[7]}, v{vMisc} offset:{off}
        s_waitcnt lgkmcnt(0)
        v_readfirstlane_b32 s{sT0}, v{vt[7]}
        s_cmp_ge_u32 s{sT0}, {n}
        s_cbranch_scc1 {label}_ok
        s_sub_u32 s{sTMO}, s{sTMO}, 1
        s_cbranch_scc1 L_exit
        s_sleep 1
        s_branch {label}
        {label}_ok:
        """)
    def signal(off):
        a(f"""
        s_mov_b64 exec, 1
        ds_add_u32 v{vMisc}, v{vOne} offset:{off}
        s_mov_b64 exec, -1
        """)
    nbar = [0]
    def soft_barrier():
        nbar[0] += 1
        signal(BAR)
        wait_lds(BAR, 4 * nbar[0], f"L_bar{nbar[0]}")
    def tag(v):
        a(f"v_bfi_b32 v{v}, v{vFF}, s{sTAG}, v{v}")
    def exec_n_lt2():
        a("s_mov_b32 exec_lo, 0x00030003")
        a("s_mov_b32 exec_hi, 0x00030003")

    a(f"""
    v_and_b32 v{vL}, 63, v0
    s_sub_u32 s{sCW}, s{sWAVE}, 1
    s_lshr_b32 s{sB}, s{sJ}, 2
    v_and_b32 v{vN}, 15, v{vL}
    v_lshrrev_b32 v{vKG}, 4, v{vL}
    v_lshrrev_b32 v{vR4}, 2, v{vN}
    v_and_b32 v{vC}, 3, v{vN}
    v_mov_b32 v{vFF}, 0xff
    v_mov_b32 v{vMisc}, {MISC}
    v_mov_b32 v{vOne}, 1
    v_and_b32 v{vt[0]}, 1, v{vN}
    v_lshlrev_b32 v{vt[0]}, 10, v{vt[0]}
    v_lshl_add_u32 v{vt[0]}, v{vKG}, 4, v{vt[0]}
    s_lshl_b32 s{sT0}, s{sJ}, 7
    v_add_u32 v{vt[0]}, s{sT0}, v{vt[0]}
    v_mov_b32 v{vt[4]}, 0
    v_mov_b32 v{vt[5]}, 0
    v_mov_b32 v{vt[6]}, 0
    v_mov_b32 v{vt[7]}, 0
    s_waitcnt lgkmcnt(0)
    s_load_dword s{sE1}, s[{pWS}:{pWS+1}], 0
    global_load_dwordx4 {vr(vXB[0],4)}, v{vt[0]}, s[{pX}:{pX+1}]
    global_load_dwordx4 {vr(vXB[1],4)}, v{vt[0]}, s[{pX}:{pX+1}] offset:64
    """)
    assert vt[4] % 2 == 0 and vt[5] == vt[4] + 1 and vt[7] == vt[4] + 3
    a(f"""
    s_cmp_lg_u32 s{sCW}, 0
    s_cbranch_scc1 L_noinit
    ds_write_b128 v{vMisc}, v[{vt[4]}:{vt[7]}]
    L_noinit:
    """)
    if prefetch_code:
        a(f"""
        s_cmp_lg_u32 s{sCW}, 3
        s_cbranch_scc1 L_nopf
        s_getpc_b64 s[{sT2}:{sT3}]
        L_pc:
        s_lshr_b32 s{sT0}, s2, 3
        s_and_b32 s{sT0}, s{sT0}, 15
        s_lshl_b32 s{sT0}, s{sT0}, 10
        s_sub_u32 s{sT2}, s{sT2}, L_pc-{KN}
        s_subb_u32 s{sT3}, s{sT3}, 0
        s_min_u32 s{sT0}, s{sT0}, L_codeend-{KN}-1024
        s_add_u32 s{sT2}, s{sT2}, s{sT0}
        s_addc_u32 s{sT3}, s{sT3}, 0
        v_lshlrev_b32 v{vt[1]}, 4, v{vL}
        global_load_dwordx4 {vr(vJunk,4)}, v{vt[1]}, s[{sT2}:{sT3}]
        L_nopf:
        """)
    a(f"""
    s_mov_b32 s{rWS}, s{pWS}
    s_mov_b32 s{rWS+1}, s{pWS+1}
    s_mov_b32 s{rWS+2}, {WS_SIZE}
    s_mov_b32 s{rWS+3}, 0x20000
    s_lshl_b32 s{sT0}, s{sH}, 3
    s_add_u32 s{sT0}, s{sT0}, s{sJ}
    s_mul_i32 s{sM1}, s{sT0}, 1792
    s_add_u32 s{sM1}, s{sM1}, {WS_M1}
    s_mul_i32 s{sM3}, s{sT0}, 640
    s_add_u32 s{sM3}, s{sM3}, {WS_M3}
    s_lshl_b32 s{sM4}, s{sJ}, 14
    s_lshl_b32 s{sT0}, s{sH}, 9
    s_add_u32 s{sM4}, s{sM4}, s{sT0}
    s_add_u32 s{sM4}, s{sM4}, {WS_M4}
    v_lshl_add_u32 v{vt[0]}, v{vKG}, 3, v{vR4}          ; 8kg + r4
    v_and_b32 v{vt[1]}, 1, v{vKG}
    v_lshl_or_b32 v{vt[2]}, v{vt[1]}, 2, v{vR4}         ; f = r4 | (kg&1)<<2
    v_lshlrev_b32 v{vt[3]}, 8, v{vt[0]}
    v_lshl_add_u32 v{vt[3]}, v{vC}, 3, v{vt[3]}
    v_add_u32 v{vt[3]}, {V_OFF}, v{vt[3]}
    s_lshl_b32 s{sT0}, s{sCW}, 1
    v_xor_b32 v{vTR[0]}, s{sT0}, v{vt[2]}
    v_lshl_add_u32 v{vTR[0]}, v{vTR[0]}, 5, v{vt[3]}
    s_add_u32 s{sT0}, s{sT0}, 1
    v_xor_b32 v{vTR[1]}, s{sT0}, v{vt[2]}
    v_lshl_add_u32 v{vTR[1]}, v{vTR[1]}, 5, v{vt[3]}
    v_lshrrev_b32 v{vt[2]}, 1, v{vR4}
    v_lshl_or_b32 v{vt[3]}, v{vt[1]}, 1, v{vt[2]}
    v_xor_b32 v{vt[3]}, s{sCW}, v{vt[3]}
    v_lshlrev_b32 v{vt[3]}, 5, v{vt[3]}
    v_lshl_add_u32 v{vt[3]}, v{vt[0]}, 7, v{vt[3]}
    v_lshl_add_u32 v{vt[3]}, v{vC}, 3, v{vt[3]}
    v_add_u32 v{vTRG}, {WG_OFF}, v{vt[3]}
    v_add_u32 v{vTRS}, {S2_OFF}, v{vt[3]}
    v_lshrrev_b32 v{vt[3]}, 1, v{vKG}
    v_lshl_or_b32 v{vt[3]}, v{vt[3]}, 1, v{vt[2]}
    v_xor_b32 v{vt[3]}, s{sCW}, v{vt[3]}
    v_lshlrev_b32 v{vt[3]}, 5, v{vt[3]}
    v_lshl_add_u32 v{vt[0]}, v{vKG}, 2, v{vR4}
    v_lshl_add_u32 v{vt[3]}, v{vt[0]}, 7, v{vt[3]}
    v_lshl_add_u32 v{vt[3]}, v{vC}, 3, v{vt[3]}
    v_add_u32 v{vTR16}, {S2_OFF + 160*128}, v{vt[3]}
    s_lshl_b32 s{sT0}, s{sCW}, 14
    v_lshlrev_b32 v{vt[0]}, 8, v{vN}
    v_add_u32 v{vt[0]}, s{sT0}, v{vt[0]}
    v_xor_b32 v{vt[1]}, v{vKG}, v{vN}
    """)
    for t in range(4):
        a(f"v_xor_b32 v{vt[2]}, {4*t}, v{vt[1]}")
        a(f"v_lshl_add_u32 v{vKA[t]}, v{vt[2]}, 4, v{vt[0]}")
    a(f"""
    s_waitcnt lgkmcnt(0)
    s_add_u32 s{sE1}, s{sE1}, 1
    s_and_b32 s{sTAG}, s{sE1}, 0xff
    s_barrier
    """)
    stamp(1)

    vA = R.alloc(16, 4)
    vAcc = R.alloc(8, 4)
    vM1 = R.alloc()
    a(f"""
    v_mul_u32_u24 v{vM1}, 896, v{vN}
    v_lshl_add_u32 v{vM1}, v{vKG}, 4, v{vM1}
    """)
    wait_lds(PROG, 16, "L_w16")
    stamp(2)
    for ti in range(2):
        for u in range(2):
            f = vA + (ti*2 + u) * 4
            a(f"ds_read_b64_tr_b16 {vr(f,2)}, v{vTR[ti]} offset:{u*8192}")
            a(f"ds_read_b64_tr_b16 {vr(f+2,2)}, v{vTR[ti]} offset:{u*8192+1024}")
    a("s_waitcnt vmcnt(0) lgkmcnt(0)")
    for u in range(2):
        for ti in range(2):
            f = vA + (ti*2 + u) * 4
            c = "0" if u == 0 else vr(vAcc + 4*ti, 4)
            a(f"v_mfma_f32_16x16x32_bf16 {vr(vAcc+4*ti,4)}, {vr(f,4)}, {vr(vXB[u],4)}, {c}")
    a(f"""
    s_lshl_b32 s{sT0}, s{sCW}, 7
    s_add_u32 s{sT0}, s{sT0}, s{sM1}
    s_nop 7
    """)
    for i in range(8):
        tag(vAcc + i)
    exec_n_lt2()
    a(f"buffer_store_dwordx4 {vr(vAcc,4)}, v{vM1}, s[{rWS}:{rWS+3}], s{sT0} offen sc1")
    a(f"buffer_store_dwordx4 {vr(vAcc+4,4)}, v{vM1}, s[{rWS}:{rWS+3}], s{sT0} offen offset:64 sc1")
    a("s_mov_b64 exec, -1")
    stamp(3)
    a(f"""
    s_cmp_eq_u32 s{sCW}, 3
    s_cbranch_scc1 L_gate
    """)
    wait_lds(PROG, 32, "L_w32")
    vAcc2 = R.alloc(8, 4)
    for mi_, off in enumerate((0, 8192)):
        for u in range(2):
            f = vA + (mi_*2 + u) * 4
            a(f"ds_read_b64_tr_b16 {vr(f,2)}, v{vTRG} offset:{off + u*4096}")
            a(f"ds_read_b64_tr_b16 {vr(f+2,2)}, v{vTRG} offset:{off + u*4096 + 512}")
    a("s_waitcnt lgkmcnt(0)")
    for u in range(2):
        for mi_ in range(2):
            f = vA + (mi_*2 + u) * 4
            c = "0" if u == 0 else vr(vAcc2 + 4*mi_, 4)
            a(f"v_mfma_f32_16x16x32_bf16 {vr(vAcc2+4*mi_,4)}, {vr(f,4)}, {vr(vXB[u],4)}, {c}")
    signal(S1DONE)
    a(f"""
    s_lshl_b32 s{sT0}, s{sCW}, 6
    s_add_u32 s{sT0}, s{sT0}, s{sM1}
    s_nop 7
    """)
    for i in range(8):
        tag(vAcc2 + i)
    exec_n_lt2()
    a(f"buffer_store_dwordx4 {vr(vAcc2,4)}, v{vM1}, s[{rWS}:{rWS+3}], s{sT0} offen offset:512 sc1")
    a(f"buffer_store_dwordx4 {vr(vAcc2+4,4)}, v{vM1}, s[{rWS}:{rWS+3}], s{sT0} offen offset:704 sc1")
    a("s_mov_b64 exec, -1")
    a("s_branch L_p3")
    a.label("L_gate")
    signal(S1DONE)
    gx0, gx1, gw = vA, vA + 4, vA + 8
    a(f"""
    v_lshlrev_b32 v{vt[0]}, 4, v{vL}
    global_load_dwordx4 {vr(gx0,4)}, v{vt[0]}, s[{pX}:{pX+1}]
    global_load_dwordx4 {vr(gx1,4)}, v{vt[0]}, s[{pX}:{pX+1}] offset:1024
    global_load_dwordx4 {vr(gw,4)}, v{vt[0]}, s[{pGW}:{pGW+1}]
    s_waitcnt vmcnt(0)
    """)
    z = [vt[2], vt[3]]
    a(f"v_mov_b32 v{z[0]}, 0")
    a(f"v_mov_b32 v{z[1]}, 0")
    for i in range(4):
        for bi, gx in enumerate((gx0, gx1)):
            a(f"v_lshlrev_b32 v{vt[5]}, 16, v{gx+i}")
            a(f"v_lshlrev_b32 v{vt[6]}, 16, v{gw+i}")
            a(f"v_fmac_f32 v{z[bi]}, v{vt[5]}, v{vt[6]}")
            a(f"v_and_b32 v{vt[5]}, 0xffff0000, v{gx+i}")
            a(f"v_and_b32 v{vt[6]}, 0xffff0000, v{gw+i}")
            a(f"v_fmac_f32 v{z[bi]}, v{vt[5]}, v{vt[6]}")
    for rot in (8, 4, 2, 1):
        a("s_nop 1")
        for bi in range(2):
            a(f"v_add_f32_dpp v{z[bi]}, v{z[bi]}, v{z[bi]} row_ror:{rot} row_mask:0xf bank_mask:0xf")
    def xrow(regs, op="v_add_f32"):
        tm = vxt
        for ins in ("v_permlane16_swap_b32", "v_permlane32_swap_b32"):
            for k0 in range(0, len(regs), 4):
                grp = regs[k0:k0+4]
                for r, t in zip(grp, tm):
                    a(f"v_mov_b32 v{t}, v{r}")
                a("s_nop 1")
                for r, t in zip(grp, tm):
                    a(f"{ins} v{t}, v{r}")
                a("s_nop 1")
                for r, t in zip(grp, tm):
                    a(f"{op} v{r}, v{t}, v{r}")
    xrow(z)
    a(f"""
    v_mul_f32 v{z[0]}, {hex(f2u(-1.4426950408889634))}, v{z[0]}
    v_mul_f32 v{z[1]}, {hex(f2u(-1.4426950408889634))}, v{z[1]}
    v_exp_f32 v{z[0]}, v{z[0]}
    v_exp_f32 v{z[1]}, v{z[1]}
    s_nop 0
    v_add_f32 v{z[0]}, 1.0, v{z[0]}
    v_add_f32 v{z[1]}, 1.0, v{z[1]}
    v_rcp_f32 v{z[0]}, v{z[0]}
    v_rcp_f32 v{z[1]}, v{z[1]}
    s_nop 0
    s_mov_b64 exec, 1
    ds_write_b64 v{vMisc}, v[{z[0]}:{z[1]}] offset:{GV}
    s_mov_b64 exec, -1
    """)
    assert z[0] % 2 == 0 and z[1] == z[0] + 1
    a.label("L_p3")
    stamp(4)
    vG4 = R.alloc(16, 4)
    vBad = R.alloc()
    def check_tags(regs):
        for r in regs:
            a(f"v_xor_b32 v{r}, s{sTAG}, v{r}")
        a(f"v_or_b32 v{vBad}, v{regs[0]}, v{regs[1]}")
        for k in range(2, len(regs), 2):
            a(f"v_or3_b32 v{vBad}, v{vBad}, v{regs[k]}, v{regs[k+1]}")
        a(f"v_and_b32 v{vBad}, v{vFF}, v{vBad}")
        a(f"v_cmp_ne_u32 vcc, 0, v{vBad}")
    a(f"""
    s_cmp_lg_u32 s{sCW}, 0
    s_cbranch_scc1 L_waitq
    ; scalar hint: last two q words of batch b from each of the 8 producers
    s_mul_i32 s{sT0}, s{sH}, {8*1792}
    s_mul_i32 s{sT1}, s{sB}, 896
    s_add_u32 s{sT0}, s{sT0}, s{sT1}
    s_add_u32 s{sT0}, s{sT0}, {WS_M1}
    s_add_u32 s40, s{pWS}, s{sT0}
    s_addc_u32 s41, s{pWS+1}, 0
    L_hint1:
    """)
    for jj in range(8):
        a(f"s_load_dwordx2 s[{44+2*jj}:{45+2*jj}], s[40:41], {jj*1792 + 504} glc")
    a("s_waitcnt lgkmcnt(0)")
    a(f"s_xor_b32 s42, s44, s{sTAG}")
    for k in range(45, 60):
        a(f"s_xor_b32 s43, s{k}, s{sTAG}")
        a(f"s_or_b32 s42, s42, s43")
    a(f"""
    s_and_b32 s42, s42, 0xff
    s_cbranch_scc0 L_hint1_ok
    s_sub_u32 s{sTMO}, s{sTMO}, 1
    s_cbranch_scc1 L_exit
    s_branch L_hint1
    L_hint1_ok:
    """)
    stamp(5)
    a(f"""
    v_lshrrev_b32 v{vt[1]}, 5, v{vL}
    v_mul_u32_u24 v{vt[1]}, 1792, v{vt[1]}
    v_and_b32 v{vt[2]}, 31, v{vL}
    v_lshl_add_u32 v{vt[1]}, v{vt[2]}, 4, v{vt[1]}
    L_gq:
    s_mov_b32 s{sT1}, s{sT0}
    """)
    for i in range(4):
        a(f"buffer_load_dwordx4 {vr(vG4+4*i,4)}, v{vt[1]}, s[{rWS}:{rWS+3}], s{sT1} offen sc1")
        if i < 3:
            a(f"s_add_u32 s{sT1}, s{sT1}, 3584")
    a("s_waitcnt vmcnt(0)")
    check_tags([vG4 + i for i in range(16)])
    a(f"""
    s_cbranch_vccz L_gq_ok
    s_sub_u32 s{sTMO}, s{sTMO}, 1
    s_cbranch_scc1 L_exit
    s_branch L_gq
    L_gq_ok:
    """)
    for e in range(4):
        a(f"v_add_f32 v{vG4+e}, v{vG4+e}, v{vG4+4+e}")
        a(f"v_add_f32 v{vG4+8+e}, v{vG4+8+e}, v{vG4+12+e}")
    for e in range(4):
        a(f"v_add_f32 v{vG4+e}, v{vG4+e}, v{vG4+8+e}")
    for e in range(4):
        a(f"v_mov_b32 v{vG4+4+e}, v{vG4+e}")
    a("s_nop 1")
    for e in range(4):
        a(f"v_permlane32_swap_b32 v{vG4+4+e}, v{vG4+e}")
    a("s_nop 1")
    for e in range(4):
        a(f"v_add_f32 v{vG4+e}, v{vG4+e}, v{vG4+4+e}")
    a(f"""
    v_cvt_pk_bf16_f32 v{vG4+4}, v{vG4}, v{vG4+1}
    v_cvt_pk_bf16_f32 v{vG4+5}, v{vG4+2}, v{vG4+3}
    v_lshl_add_u32 v{vt[2]}, v{vt[2]}, 3, v{vMisc}
    s_mov_b32 exec_hi, 0
    ds_write_b64 v{vt[2]}, {vr(vG4+4,2)} offset:{QB}
    s_mov_b64 exec, 1
    ds_write_b32 v{vMisc}, v{vOne} offset:{QRDY}
    s_mov_b64 exec, -1
    """)
    a.label("L_waitq")
    wait_lds(QRDY, 1, "L_wq")
    stamp(6)
    vFoff = R.alloc()
    a(f"""
    v_mul_u32_u24 v{vFoff}, 1792, v{vKG}
    v_lshl_add_u32 v{vFoff}, v{vN}, 4, v{vFoff}
    s_sub_u32 s{sT0}, s{sCW}, 1
    s_and_b32 s{sT1}, s{sT0}, 1
    s_mul_i32 s{sT1}, s{sT1}, 896
    s_mul_i32 s39, s{sH}, {8*1792}
    s_add_u32 s39, s39, s{sT1}
    s_add_u32 s39, s39, {WS_M1 + 512}
    s_cmp_gt_u32 s{sT0}, 1
    s_cbranch_scc1 L_noffn1
    """)
    def ffn_loads():
        a(f"""
        v_cmp_gt_u32 vcc, 12, v{vN}
        s_and_b64 exec, exec, vcc
        s_add_u32 s{sT1}, s39, {4*1792}
        buffer_load_dwordx4 {vr(vG4,4)}, v{vFoff}, s[{rWS}:{rWS+3}], s39 offen sc1
        buffer_load_dwordx4 {vr(vG4+4,4)}, v{vFoff}, s[{rWS}:{rWS+3}], s{sT1} offen sc1
        buffer_load_dwordx4 {vr(vG4+8,4)}, v{vFoff}, s[{rWS}:{rWS+3}], s39 offen offset:192 sc1
        buffer_load_dwordx4 {vr(vG4+12,4)}, v{vFoff}, s[{rWS}:{rWS+3}], s{sT1} offen offset:192 sc1
        s_mov_b64 exec, -1
        """)
    ffn_loads()
    a.label("L_noffn1")
    vQ = R.alloc(16, 4)
    vKf = R.alloc(64, 4)
    vS = R.alloc(16, 4)
    a(f"""
    v_lshlrev_b32 v{vt[0]}, 4, v{vKG}
    v_add_u32 v{vt[0]}, v{vMisc}, v{vt[0]}
    """)
    for t in range(4):
        a(f"ds_read_b128 {vr(vQ+4*t,4)}, v{vt[0]} offset:{QB + 64*t}")
    a(f"s_lshl_b32 s{sT1}, s{sCW}, 4")
    a(f"s_add_u32 s{sT1}, s{sT1}, 48")
    a(f"""
    L_wk:
    ds_read_b32 v{vt[7]}, v{vMisc} offset:{PROG}
    s_waitcnt lgkmcnt(0)
    v_readfirstlane_b32 s{sT0}, v{vt[7]}
    s_cmp_ge_u32 s{sT0}, s{sT1}
    s_cbranch_scc1 L_wk_ok
    s_sub_u32 s{sTMO}, s{sTMO}, 1
    s_cbranch_scc1 L_exit
    s_sleep 1
    s_branch L_wk
    L_wk_ok:
    """)
    for T in range(4):
        for t in range(4):
            a(f"ds_read_b128 {vr(vKf + 16*T + 4*t, 4)}, v{vKA[t]} offset:{T*4096}")
    for T in range(4):
        a(f"s_waitcnt lgkmcnt({min(15, 4*(3-T))})")
        for t in range(4):
            c = "0" if t == 0 else vr(vS + 4*T, 4)
            a(f"v_mfma_f32_16x16x32_bf16 {vr(vS+4*T,4)}, {vr(vKf+16*T+4*t,4)}, {vr(vQ+4*t,4)}, {c}")
    a("s_nop 7")
    vMx = R.alloc()
    a(f"v_max3_f32 v{vMx}, v{vS}, v{vS+1}, v{vS+2}")
    for k in range(3, 15, 2):
        a(f"v_max3_f32 v{vMx}, v{vMx}, v{vS+k}, v{vS+k+1}")
    a(f"v_max_f32 v{vMx}, v{vMx}, v{vS+15}")
    xrow([vMx], "v_max_f32")
    a(f"""
    s_lshl_b32 s{sT0}, s{sCW}, 2
    v_add_u32 v{vt[0]}, s{sT0}, v{vMisc}
    s_mov_b64 exec, 1
    ds_write_b32 v{vt[0]}, v{vMx} offset:{MAXW}
    s_mov_b64 exec, -1
    """)
    soft_barrier()
    stamp(7)
    vMc = R.alloc()
    a(f"""
    ds_read_b128 v[{vt[4]}:{vt[7]}], v{vMisc} offset:{MAXW}
    s_mov_b32 s{sT1}, {hex(f2u(CEXP))}
    s_waitcnt lgkmcnt(0)
    v_max3_f32 v{vMc}, v{vt[4]}, v{vt[5]}, v{vt[6]}
    v_max_f32 v{vMc}, v{vMc}, v{vt[7]}
    v_mul_f32 v{vMc}, s{sT1}, v{vMc}
    v_and_b32 v{vMc}, 0xffffff00, v{vMc}
    """)
    for k in range(16):
        a(f"v_fma_f32 v{vS+k}, v{vS+k}, s{sT1}, -v{vMc}")
    for k in range(16):
        a(f"v_exp_f32 v{vS+k}, v{vS+k}")
    vSum = R.alloc()
    a("s_nop 0")
    a(f"v_add_f32 v{vSum}, v{vS}, v{vS+1}")
    for k in range(2, 16):
        a(f"v_add_f32 v{vSum}, v{vSum}, v{vS+k}")
    for T in range(4):
        a(f"v_cvt_pk_bf16_f32 v{vKf+2*T}, v{vS+4*T}, v{vS+4*T+1}")
        a(f"v_cvt_pk_bf16_f32 v{vKf+2*T+1}, v{vS+4*T+2}, v{vS+4*T+3}")
    xrow([vSum])
    a(f"""
    s_lshl_b32 s{sT0}, s{sCW}, 7
    v_lshl_add_u32 v{vt[1]}, v{vKG}, 3, v{vMisc}
    v_add_u32 v{vt[1]}, s{sT0}, v{vt[1]}
    s_mov_b32 exec_lo, 0x00010001
    s_mov_b32 exec_hi, 0x00010001
    """)
    for T in range(4):
        a(f"ds_write_b64 v{vt[1]}, {vr(vKf+2*T,2)} offset:{PB + 32*T}")
    a(f"""
    s_mov_b64 exec, 1
    ds_write_b32 v{vt[0]}, v{vSum} offset:{SUMW}
    s_mov_b64 exec, -1
    """)
    soft_barrier()
    stamp(8)
    R.release(vKf, 64); R.release(vQ, 16)
    vP = R.alloc(32, 4)
    a(f"""
    v_lshl_add_u32 v{vt[0]}, v{vKG}, 4, v{vMisc}
    """)
    for u in range(8):
        a(f"ds_read_b128 {vr(vP+4*u,4)}, v{vt[0]} offset:{PB + 64*u}")
    a(f"""
    s_cmp_lg_u32 s{sCW}, 0
    s_cbranch_scc1 L_nostat
    ds_read_b128 v[{vt[4]}:{vt[7]}], v{vMisc} offset:{SUMW}
    s_waitcnt lgkmcnt(0)
    v_add_f32 v{vt[4]}, v{vt[4]}, v{vt[5]}
    v_add_f32 v{vt[6]}, v{vt[6]}, v{vt[7]}
    v_add_f32 v{vt[5]}, v{vt[4]}, v{vt[6]}
    v_mov_b32 v{vt[4]}, v{vMc}
    """)
    tag(vt[4])
    tag(vt[5])
    a(f"""
    v_mov_b32 v{vt[6]}, v{vt[4]}
    v_mov_b32 v{vt[7]}, v{vt[5]}
    v_mov_b32 v{vt[0]}, 0
    s_mov_b64 exec, 1
    buffer_store_dwordx4 v[{vt[4]}:{vt[7]}], v{vt[0]}, s[{rWS}:{rWS+3}], s{sM3} offen offset:512 sc1
    s_mov_b64 exec, -1
    L_nostat:
    """)
    a(f"""
    s_sub_u32 s{sT0}, s{sCW}, 1
    s_cmp_gt_u32 s{sT0}, 1
    s_cbranch_scc1 L_noffn2
    L_ffnchk:
    s_waitcnt vmcnt(0)
    v_cmp_gt_u32 vcc, 12, v{vN}
    s_and_b64 exec, exec, vcc
    """)
    check_tags([vG4 + i for i in range(16)])
    a(f"""
    s_mov_b64 exec, -1
    s_cbranch_vccz L_ffn_ok
    s_sub_u32 s{sTMO}, s{sTMO}, 1
    s_cbranch_scc1 L_exit
    """)
    ffn_loads()
    a("s_branch L_ffnchk")
    a.label("L_ffn_ok")
    gsum = [vG4 + e for e in range(4)]; usum = [vG4 + 8 + e for e in range(4)]
    for e in range(4):
        a(f"v_add_f32 v{vG4+e}, v{vG4+e}, v{vG4+4+e}")
        a(f"v_add_f32 v{vG4+8+e}, v{vG4+8+e}, v{vG4+12+e}")
    xrow(gsum + usum)
    a(f"""
    s_add_u32 s{sT1}, s{sH}, 1
    s_mul_i32 s{sT1}, s{sT1}, 43
    s_lshr_b32 s{sT1}, s{sT1}, 3
    s_sub_u32 s{sT1}, s{sT1}, s{sU}
    s_lshl_b32 s{sT1}, s{sT1}, 1
    v_cmp_gt_u32 vcc, s{sT1}, v{vN}
    """)
    for e in range(4):
        a(f"v_max_f32 v{gsum[e]}, 0, v{gsum[e]}")
        a(f"v_mul_f32 v{gsum[e]}, v{gsum[e]}, v{usum[e]}")
        a(f"v_cndmask_b32 v{gsum[e]}, 0, v{gsum[e]}, vcc")
    a(f"""
    v_cvt_pk_bf16_f32 v{vG4+4}, v{gsum[0]}, v{gsum[1]}
    v_cvt_pk_bf16_f32 v{vG4+5}, v{gsum[2]}, v{gsum[3]}
    s_lshl_b32 s{sT0}, s{sT0}, 7
    v_lshl_add_u32 v{vt[1]}, v{vN}, 3, v{vMisc}
    v_add_u32 v{vt[1]}, s{sT0}, v{vt[1]}
    s_mov_b64 exec, 0xfff
    ds_write_b64 v{vt[1]}, {vr(vG4+4,2)} offset:{HID}
    s_mov_b64 exec, -1
    L_noffn2:
    """)
    stamp(9)
    vO = R.alloc(8, 4)
    vVf = R.alloc(16, 4)
    for u in range(8):
        wait_lds(PROG, 104 + 8*u, f"L_wv{u}")
        f0 = vVf + (u & 1) * 8
        for ti in range(2):
            a(f"ds_read_b64_tr_b16 {vr(f0+4*ti,2)}, v{vTR[ti]} offset:{u*8192}")
            a(f"ds_read_b64_tr_b16 {vr(f0+4*ti+2,2)}, v{vTR[ti]} offset:{u*8192+1024}")
        a("s_waitcnt lgkmcnt(0)")
        for ti in range(2):
            c = "0" if u == 0 else vr(vO + 4*ti, 4)
            a(f"v_mfma_f32_16x16x32_bf16 {vr(vO+4*ti,4)}, {vr(f0+4*ti,4)}, {vr(vP+4*u,4)}, {c}")
    stamp(10)
    a(f"""
    v_and_b32 v{vt[0]}, 1, v{vN}
    v_cmp_eq_u32 vcc, 1, v{vt[0]}
    v_lshlrev_b32 v{vt[1]}, 6, v{vt[0]}
    v_lshl_add_u32 v{vt[1]}, v{vKG}, 4, v{vt[1]}
    s_lshl_b32 s{sT0}, s{sCW}, 7
    s_add_u32 s{sT0}, s{sT0}, s{sM3}
    s_nop 5
    """)
    for e in range(4):
        a(f"v_cndmask_b32 v{vO+e}, v{vO+e}, v{vO+4+e}, vcc")
    for e in range(4):
        tag(vO + e)
    exec_n_lt2()
    a(f"buffer_store_dwordx4 {vr(vO,4)}, v{vt[1]}, s[{rWS}:{rWS+3}], s{sT0} offen sc1")
    a("s_mov_b64 exec, -1")
    R.release(vP, 32); R.release(vVf, 16)
    vWf = R.alloc(16, 4)
    vDf = R.alloc(8, 4)
    vHf = R.alloc(8, 4)
    vYa = R.alloc(4, 4); vYf = R.alloc(4, 4)
    vGl = R.alloc()
    vX3 = R.alloc(); vX3s = R.alloc()
    a(f"""
    s_lshr_b32 s{sT1}, s{sCW}, 1
    s_lshl_b32 s{sT2}, s{sH}, 3
    s_lshl_b32 s{sT3}, s{sT1}, 2
    s_add_u32 s{sT2}, s{sT2}, s{sT3}
    s_mul_i32 s40, s{sT2}, 640
    s_add_u32 s40, s40, {WS_M3}
    s_and_b32 s{sT3}, s{sCW}, 1
    s_lshl_b32 s{sT3}, s{sT3}, 8
    v_mul_u32_u24 v{vX3s}, 640, v{vKG}
    v_lshl_add_u32 v{vX3}, v{vN}, 4, v{vX3s}
    v_add_u32 v{vX3}, s{sT3}, v{vX3}
    """)
    wait_lds(PROG, NL, "L_wall")
    for u in range(4):
        a(f"ds_read_b64_tr_b16 {vr(vWf+4*u,2)}, v{vTRS} offset:{u*4096}")
        a(f"ds_read_b64_tr_b16 {vr(vWf+4*u+2,2)}, v{vTRS} offset:{u*4096+512}")
    a(f"""
    ds_read_b64_tr_b16 {vr(vDf,2)}, v{vTRS} offset:{4*4096}
    ds_read_b64_tr_b16 {vr(vDf+2,2)}, v{vTRS} offset:{4*4096+512}
    ds_read_b64_tr_b16 {vr(vDf+4,2)}, v{vTR16}
    v_and_b32 v{vt[0]}, 1, v{vN}
    v_lshlrev_b32 v{vt[1]}, 7, v{vt[0]}
    v_add_u32 v{vt[1]}, v{vMisc}, v{vt[1]}
    v_lshl_add_u32 v{vt[2]}, v{vKG}, 4, v{vt[1]}
    v_lshl_add_u32 v{vt[3]}, v{vKG}, 3, v{vt[1]}
    v_lshl_add_u32 v{vt[4]}, v{vt[0]}, 2, v{vMisc}
    """)
    stamp(11)
    vG3 = vG4
    a(f"""
    L_g3:
    buffer_load_dwordx4 {vr(vG3,4)}, v{vX3}, s[{rWS}:{rWS+3}], s40 offen sc1
    buffer_load_dwordx2 {vr(vG3+4,2)}, v{vX3s}, s[{rWS}:{rWS+3}], s40 offen offset:512 sc1
    s_waitcnt vmcnt(0)
    """)
    check_tags([vG3 + i for i in range(6)])
    a(f"""
    s_cbranch_vccz L_g3_ok
    s_sub_u32 s{sTMO}, s{sTMO}, 1
    s_cbranch_scc1 L_exit
    s_branch L_g3
    L_g3_ok:
    """)
    stamp(12)
    vm = vG3 + 6; vw = vG3 + 7
    a(f"v_mov_b32 v{vm}, v{vG3+4}")
    xrow([vm], "v_max_f32")
    a(f"""
    v_sub_f32 v{vw}, v{vG3+4}, v{vm}
    v_exp_f32 v{vw}, v{vw}
    s_nop 0
    v_mul_f32 v{vm}, v{vw}, v{vG3+5}
    """)
    for e in range(4):
        a(f"v_mul_f32 v{vG3+e}, v{vw}, v{vG3+e}")
    xrow([vG3, vG3+1, vG3+2, vG3+3]); xrow([vm])
    a(f"""
    v_rcp_f32 v{vm}, v{vm}
    s_nop 0
    """)
    for e in range(4):
        a(f"v_mul_f32 v{vG3+e}, v{vm}, v{vG3+e}")
    a(f"""
    v_cvt_pk_bf16_f32 v{vG3+4}, v{vG3}, v{vG3+1}
    v_cvt_pk_bf16_f32 v{vG3+5}, v{vG3+2}, v{vG3+3}
    s_lshl_b32 s{sT0}, s{sCW}, 7
    v_lshl_add_u32 v{vt[5]}, v{vN}, 3, v{vMisc}
    v_add_u32 v{vt[5]}, s{sT0}, v{vt[5]}
    s_mov_b64 exec, 0xffff
    ds_write_b64 v{vt[5]}, {vr(vG3+4,2)} offset:{OB}
    s_mov_b64 exec, -1
    s_waitcnt lgkmcnt(0)
    s_barrier
    ds_read_b128 {vr(vHf,4)}, v{vt[2]} offset:{HID}
    ds_read_b64 {vr(vHf+4,2)}, v{vt[3]} offset:{HID+64}
    ds_read_b32 v{vGl}, v{vt[4]} offset:{GV}
    v_and_b32 v{vt[0]}, 1, v{vN}
    v_lshlrev_b32 v{vt[1]}, 8, v{vt[0]}
    v_add_u32 v{vt[1]}, v{vMisc}, v{vt[1]}
    v_lshl_add_u32 v{vt[2]}, v{vKG}, 4, v{vt[1]}
    """)
    vOf = R.alloc(16, 4)
    for u in range(4):
        a(f"ds_read_b128 {vr(vOf+4*u,4)}, v{vt[2]} offset:{OB + 64*u}")
    a("s_waitcnt lgkmcnt(4)")
    a(f"v_mfma_f32_16x16x32_bf16 {vr(vYf,4)}, {vr(vDf,4)}, {vr(vHf,4)}, 0")
    for u in range(4):
        a(f"s_waitcnt lgkmcnt({3-u})")
        c = "0" if u == 0 else vr(vYa, 4)
        a(f"v_mfma_f32_16x16x32_bf16 {vr(vYa,4)}, {vr(vWf+4*u,4)}, {vr(vOf+4*u,4)}, {c}")
    a(f"v_mfma_f32_16x16x16_bf16 {vr(vYf,4)}, {vr(vDf+4,2)}, {vr(vHf+4,2)}, {vr(vYf,4)}")
    a(f"""
    v_sub_f32 v{vt[0]}, 1.0, v{vGl}
    v_and_b32 v{vt[1]}, 1, v{vN}
    v_lshlrev_b32 v{vt[1]}, 8, v{vt[1]}
    v_lshl_add_u32 v{vt[1]}, v{vKG}, 4, v{vt[1]}
    s_lshl_b32 s{sT0}, s{sCW}, 6
    s_add_u32 s{sT0}, s{sT0}, s{sM4}
    s_nop 7
    """)
    for e in range(4):
        a(f"v_mul_f32 v{vYf+e}, v{vt[0]}, v{vYf+e}")
    for e in range(4):
        a(f"v_fmac_f32 v{vYf+e}, v{vGl}, v{vYa+e}")
    for e in range(4):
        tag(vYf + e)
    exec_n_lt2()
    a(f"buffer_store_dwordx4 {vr(vYf,4)}, v{vt[1]}, s[{rWS}:{rWS+3}], s{sT0} offen sc1")
    a("s_mov_b64 exec, -1")
    a(f"""
    s_lshl_b32 s{sT0}, s{sJ}, 2
    s_cmp_lg_u32 s{sT0}, s{sH}
    s_cbranch_scc1 L_done
    s_lshl_b32 s{sT0}, s{sJ}, 14
    s_lshl_b32 s{sT1}, s{sCW}, 7
    s_add_u32 s{sT0}, s{sT0}, s{sT1}
    s_add_u32 s40, s{sT0}, {WS_M4}
    s_add_u32 s41, s40, 4096
    s_add_u32 s42, s40, 8192
    s_add_u32 s43, s40, 12288
    v_lshrrev_b32 v{vt[1]}, 3, v{vL}
    v_lshlrev_b32 v{vt[1]}, 9, v{vt[1]}
    v_and_b32 v{vt[2]}, 7, v{vL}
    v_lshl_add_u32 v{vt[1]}, v{vt[2]}, 4, v{vt[1]}
    L_g4:
    """)
    for i in range(4):
        a(f"buffer_load_dwordx4 {vr(vG4+4*i,4)}, v{vt[1]}, s[{rWS}:{rWS+3}], s{40+i} offen sc1")
    a("s_waitcnt vmcnt(0)")
    check_tags([vG4 + i for i in range(16)])
    a(f"""
    s_cbranch_vccz L_g4_ok
    s_sub_u32 s{sTMO}, s{sTMO}, 1
    s_cbranch_scc1 L_exit
    s_branch L_g4
    L_g4_ok:
    """)
    for e in range(4):
        a(f"v_add_f32 v{vG4+e}, v{vG4+e}, v{vG4+4+e}")
        a(f"v_add_f32 v{vG4+8+e}, v{vG4+8+e}, v{vG4+12+e}")
    for e in range(4):
        a(f"v_add_f32 v{vG4+e}, v{vG4+e}, v{vG4+8+e}")
    a("s_nop 1")
    for e in range(4):
        a(f"v_add_f32_dpp v{vG4+e}, v{vG4+e}, v{vG4+e} row_ror:8 row_mask:0xf bank_mask:0xf")
    xrow([vG4, vG4+1, vG4+2, vG4+3])
    a(f"""
    v_cvt_pk_bf16_f32 v{vG4+4}, v{vG4}, v{vG4+1}
    v_cvt_pk_bf16_f32 v{vG4+5}, v{vG4+2}, v{vG4+3}
    s_lshr_b32 s{sT0}, s{sCW}, 1
    s_lshl_b32 s{sT0}, s{sT0}, 10
    s_and_b32 s{sT1}, s{sCW}, 1
    s_lshl_b32 s{sT1}, s{sT1}, 6
    s_add_u32 s{sT0}, s{sT0}, s{sT1}
    s_lshl_b32 s{sT1}, s{sJ}, 7
    s_add_u32 s{sT0}, s{sT0}, s{sT1}
    v_lshlrev_b32 v{vt[2]}, 3, v{vt[2]}
    v_add_u32 v{vt[2]}, s{sT0}, v{vt[2]}
    s_mov_b64 exec, 0xff
    global_store_dwordx2 v{vt[2]}, {vr(vG4+4,2)}, s[{pOUT}:{pOUT+1}]
    ; every workgroup has read the epoch by now: advance it for the next launch
    s_or_b32 s{sT0}, s{sJ}, s{sCW}
    s_cmp_lg_u32 s{sT0}, 0
    s_cbranch_scc1 L_done
    s_mov_b64 exec, 1
    v_mov_b32 v{vt[0]}, 0
    v_mov_b32 v{vt[1]}, s{sE1}
    global_store_dword v{vt[0]}, v{vt[1]}, s[{pWS}:{pWS+1}] sc1
    L_done:
    """)
    stamp(13)
    dump_stamps(vt[0], vt[1])
    a.label("L_exit")
    a("s_endpgm")
    a.label("L_codeend")
    nv = R.hi
    txt = (f"; @launch grid=(256,1,1) block=(320,1,1) lds={LDS_BYTES}\n" + HEAD + kernel_begin(KN) + a.text()
           + kernel_desc(KN, nv, sgpr=100))
    return txt

if __name__ == "__main__":
    import argparse
    ap = argparse.ArgumentParser()
    ap.add_argument("-o", default="main.s"); ap.add_argument("--stamps", action="store_true")
    ap.add_argument("-W", type=int, default=32)
    ap.add_argument("--nopf", action="store_true")
    ap.add_argument("--nont", action="store_true")
    ap.add_argument("--noxcd", action="store_true")
    x = ap.parse_args()
    fl = "" if x.nont else "nt"
    open(x.o, "w").write(gen(W=x.W, stamps=x.stamps, prefetch_code=not x.nopf, wflags=fl, gflags=fl, kvflags=fl, xcdmap=not x.noxcd))
```

```python
import sys, math
from asmgen import *

K_OFF = 0
V_OFF = 65536
WQ_OFF = V_OFF
WG_OFF = V_OFF + 16384
WU_OFF = V_OFF + 24576
S2_OFF = 131072
MISC = 153600
PROG, S1DONE, BAR, QRDY = 0, 4, 8, 12
MAXW, SUMW, GV = 16, 32, 48
QB, HID, PB, OB = 64, 320, 576, 1088
LDS_BYTES = 155648
WS_M1 = 0x10000
WS_M3 = 0x100000
WS_M4 = 0x140000
WS_STAMP = 0x200000
WS_SIZE = 0x400000
CEXP = 1.4426950408889634 / math.sqrt(128.0)

import struct
def f2u(x):
    return struct.unpack("<I", struct.pack("<f", x))[0]

class Regs:
    def __init__(self, lo, hi):
        self.free = list(range(lo, hi))
        self.hi = lo
    def alloc(self, n=1, align=1):
        if n > 1 and align == 1:
            align = 2
        for s in self.free:
            if s % align == 0 and all((s + i) in self.free for i in range(n)):
                for i in range(n):
                    self.free.remove(s + i)
                self.hi = max(self.hi, s + n)
                return s
        raise RuntimeError("out of registers")
    def release(self, s, n=1):
        for i in range(n):
            assert (s + i) not in self.free
            self.free.append(s + i)
        self.free.sort()

def vr(b, n=1):
    return f"v{b}" if n == 1 else f"v[{b}:{b+n-1}]"
def sr(b, n=1):
    return f"s{b}" if n == 1 else f"s[{b}:{b+n-1}]"

def gen(W=32, stamps=False, dbgstamps=False, wflags="nt", gflags="nt", kvflags="nt", prefetch_code=True, xcdmap=True):
    a = Asm()
    KN = NAME + "_kernel"
    sWAVE, sH, sJ, sTAG, sE1 = 3, 4, 5, 6, 7
    pX, pK, pV, pWQ, pWO, pBX, pWG, pWU = 8, 10, 12, 14, 16, 18, 20, 22
    pWD, pGW, pOUT, pWS = 24, 26, 28, 30
    sU, sTMO, sT0, sT1, sT2, sT3 = 60, 61, 62, 63, 64, 65
    sCW, sB = 66, 67
    STAMP0 = 72
    nstamp = [0]
    def stamp(idx):
        if stamps:
            a(f"s_memrealtime s[{STAMP0+2*idx}:{STAMP0+2*idx+1}]")
            a("s_waitcnt lgkmcnt(0)")
    def dump_stamps(vtmp, vaddr, dbg_slots=None):
        if not stamps:
            return
        if dbgstamps:
            lab = a.newlabel("L_nodbg")
            a(f"""
            s_cmp_lg_u32 s2, 0
            s_cbranch_scc1 {lab}
            s_cmp_gt_u32 s{sWAVE}, 1
            s_cbranch_scc1 {lab}
            s_load_dwordx2 s[{sT2}:{sT3}], s[0:1], 88
            s_waitcnt lgkmcnt(0)
            s_mov_b64 exec, 1
            v_mov_b32 v{vaddr}, 0
            """)
            for slot, idx in dbg_slots:
                a(f"s_sub_u32 s{sT0}, s{STAMP0+2*idx}, s{STAMP0}")
                a(f"v_mov_b32 v{vtmp}, s{sT0}")
                a(f"global_store_dword v{vaddr}, v{vtmp}, s[{sT2}:{sT3}] offset:{4*slot}")
                a("s_nop 1")
            a("s_waitcnt vmcnt(0)")
            a.label(lab)
            return
        a(f"""
        s_mov_b64 exec, 1
        s_lshl_b32 s{sT0}, s2, 3
        s_add_u32 s{sT0}, s{sT0}, s{sWAVE}
        s_lshl_b32 s{sT0}, s{sT0}, 6
        s_add_u32 s{sT0}, s{sT0}, {WS_STAMP}
        s_add_u32 s{sT2}, s{pWS}, s{sT0}
        s_addc_u32 s{sT3}, s{pWS+1}, 0
        v_mov_b32 v{vaddr}, 0
        """)
        for i in range(14):
            a(f"v_mov_b32 v{vtmp}, s{STAMP0+2*i}")
            a(f"global_store_dword v{vaddr}, v{vtmp}, s[{sT2}:{sT3}] offset:{4*i}")
            a("s_nop 1")
        a("s_waitcnt vmcnt(0)")

    a(f"""
    s_cmp_ge_u32 s2, 256
    s_cbranch_scc1 L_exit
    s_load_dwordx16 s[8:23], s[0:1], 0
    s_load_dwordx4 s[24:27], s[0:1], 64
    s_load_dwordx2 s[28:29], s[0:1], 80
    s_load_dwordx2 s[30:31], s[0:1], 96
    """)
    if stamps:
        for i in range(14):
            a(f"s_mov_b32 s{STAMP0+2*i}, 0")
        a(f"s_memrealtime s[{STAMP0}:{STAMP0+1}]")
    a(f"""
    v_lshrrev_b32 v1, 6, v0
    s_and_b32 s{sT0}, s2, 7
    s_lshr_b32 s{sT1}, s2, 3
    v_readfirstlane_b32 s{sWAVE}, v1
    s_lshr_b32 s{sH}, s{sT1}, 3
    s_lshl_b32 s{sT0}, s{sT0}, 2
    s_add_u32 s{sH}, s{sH}, s{sT0}
    s_and_b32 s{sJ}, s{sT1}, 7
    {"" if xcdmap else f"s_lshr_b32 s{sH}, s2, 3"}
    {"" if xcdmap else f"s_and_b32 s{sJ}, s2, 7"}
    s_mul_i32 s{sU}, s{sH}, 43
    s_lshr_b32 s{sU}, s{sU}, 3
    s_mov_b32 s{sTMO}, 400000
    s_cmp_lg_u32 s{sWAVE}, 0
    s_cbranch_scc1 L_compute
    """)

    vRow4, vSl, vCb, vT = 1, 2, 3, 4
    vWQ = [8, 9]; vV = [10, 11]; vK = [12, 13, 14, 15]; vO = [16, 17]; vG = [18, 19]
    a(f"""
    v_lshrrev_b32 v{vRow4}, 4, v0
    v_and_b32 v{vSl}, 15, v0
    v_lshrrev_b32 v{vCb}, 1, v{vSl}
    v_xor_b32 v{vCb}, v{vCb}, v{vRow4}
    v_and_b32 v5, 1, v0
    v_lshlrev_b32 v5, 4, v5
    v_lshl_or_b32 v6, v{vCb}, 5, v5
    v_xor_b32 v7, 0x80, v6
    v_lshl_add_u32 v{vWQ[0]}, v{vRow4}, 13, v6
    v_lshl_add_u32 v{vWQ[1]}, v{vRow4}, 13, v7
    v_lshl_add_u32 v{vV[0]}, v{vRow4}, 8, v6
    v_lshl_add_u32 v{vV[1]}, v{vRow4}, 8, v7
    v_xor_b32 v6, v{vSl}, v{vRow4}
    """)
    for v in range(4):
        a(f"v_xor_b32 v7, {4*v}, v6")
        a(f"v_lshlrev_b32 v7, 4, v7")
        a(f"v_lshl_add_u32 v{vK[v]}, v{vRow4}, 8, v7")
    a(f"""
    v_lshrrev_b32 v20, 3, v0
    v_and_b32 v21, 7, v0
    v_lshrrev_b32 v21, 1, v21
    v_and_b32 v22, 1, v{vRow4}
    v_xor_b32 v21, v21, v22
    s_movk_i32 s{sT0}, 2752
    v_mul_lo_u32 v23, v20, s{sT0}
    v_mov_b32 v24, 0x7fff0000
    """)
    for var in range(2):
        a(f"""
        v_xor_b32 v22, {2*var}, v21
        v_lshl_or_b32 v25, v22, 5, v5
        v_lshl_add_u32 v{vO[var]}, v20, 10, v25
        v_add_u32 v{vG[var]}, v23, v25
        v_cmp_eq_u32 vcc, 3, v22
        s_nop 1
        v_cndmask_b32 v{vG[var]}, v{vG[var]}, v24, vcc
        """)
    rK, rV, rWQ, rWO, rWG, rWU, rWD = 32, 36, 40, 44, 48, 52, 56
    a("s_waitcnt lgkmcnt(0)")
    for r, p, size in [(rWQ, pWQ, 512*4096*2), (rWG, pWG, 512*1376*2), (rWU, pWU, 512*1376*2), (rK, pK, 1 << 26),
                       (rV, pV, 1 << 26), (rWO, pWO, 4096*512*2), (rWD, pWD, 1376*512*2)]:
        a(f"""
        s_mov_b32 s{r}, s{p}
        s_mov_b32 s{r+1}, s{p+1}
        s_mov_b32 s{r+2}, {size}
        s_mov_b32 s{r+3}, 0x20000
        """)
    sOff = 66
    seq = []
    for i in range(16):
        seq.append(("wq", rWQ, vWQ[(i >> 1) & 1], WQ_OFF + i*1024, wflags, i))
    for i in range(8):
        seq.append(("wg", rWG, vG[i & 1], WG_OFF + i*1024, gflags, i))
    for i in range(8):
        seq.append(("wu", rWU, vG[i & 1], WU_OFF + i*1024, gflags, i))
    for i in range(64):
        seq.append(("k", rK, vK[i & 3], K_OFF + i*1024, kvflags, i))
    for i in range(64):
        seq.append(("v", rV, vV[(i >> 1) & 1], V_OFF + i*1024, kvflags, i))
    for i in range(16):
        seq.append(("wo", rWO, vO[i & 1], S2_OFF + i*1024, wflags, i))
    for i in range(6):
        seq.append(("wd", rWD, vO[i & 1], S2_OFF + (16+i)*1024, wflags, i))
    NL = len(seq)
    miles = [16, 32, 48, 64, 80, 96] + list(range(104, 161, 8)) + [176, NL]
    steps = {"wq": 4*8192, "wg": 8*2752, "wu": 8*2752, "k": 1024, "v": 1024, "wo": 8192, "wd": 8192}
    sKV = 67
    a(f"""
    s_lshr_b32 s{sT0}, s{sJ}, 2
    s_lshl_b32 s{sT0}, s{sT0}, 5
    s_add_u32 s{sT0}, s{sT0}, s{sH}
    s_lshl_b32 s{sKV}, s{sT0}, 20
    s_and_b32 s{sT0}, s{sJ}, 3
    s_lshl_b32 s{sT0}, s{sT0}, 16
    s_add_u32 s{sKV}, s{sKV}, s{sT0}
    s_add_u32 s{sKV}, s{sKV}, 0xC0000
    v_mov_b32 v26, {MISC}
    """)
    def first_off(kind):
        if kind == "wq":
            a(f"s_lshl_b32 s{sOff}, s{sJ}, 19")
            a(f"s_lshl_b32 s{sT0}, s{sH}, 8")
            a(f"s_add_u32 s{sOff}, s{sOff}, s{sT0}")
        elif kind in ("wg", "wu"):
            a(f"s_mul_i32 s{sOff}, s{sJ}, {64*2752}")
            a(f"s_lshl_b32 s{sT0}, s{sU}, 4")
            a(f"s_add_u32 s{sOff}, s{sOff}, s{sT0}")
        elif kind in ("k", "v"):
            a(f"s_mov_b32 s{sOff}, s{sKV}")
        elif kind == "wo":
            a(f"s_lshl_b32 s{sOff}, s{sH}, 17")
            a(f"s_lshl_b32 s{sT0}, s{sJ}, 7")
            a(f"s_add_u32 s{sOff}, s{sOff}, s{sT0}")
        elif kind == "wd":
            a(f"s_lshl_b32 s{sOff}, s{sU}, 13")
            a(f"s_lshl_b32 s{sT0}, s{sJ}, 7")
            a(f"s_add_u32 s{sOff}, s{sOff}, s{sT0}")
    landed = 0
    mi = 0
    def publish(n):
        a(f"v_mov_b32 v27, {n}")
        a("s_mov_b64 exec, 1")
        a(f"ds_write_b32 v26, v27 offset:{PROG}")
        a("s_mov_b64 exec, -1")
    stamp(1)
    for n, (kind, srd, voff, lds, fl, i) in enumerate(seq):
        if kind == "v" and i == 0:
            a(f"""
            L_ld_s1:
            ds_read_b32 v27, v26 offset:{S1DONE}
            s_waitcnt lgkmcnt(0)
            v_readfirstlane_b32 s{sT0}, v27
            s_cmp_ge_u32 s{sT0}, 4
            s_cbranch_scc1 L_ld_s1_ok
            s_sub_u32 s{sTMO}, s{sTMO}, 1
            s_cbranch_scc1 L_exit
            s_sleep 1
            s_branch L_ld_s1
            L_ld_s1_ok:
            """)
        a(f"s_mov_b32 m0, {lds}")
        if i == 0:
            first_off(kind)
        else:
            a(f"s_add_u32 s{sOff}, s{sOff}, {steps[kind]}")
        a(f"buffer_load_dwordx4 v{voff}, s[{srd}:{srd+3}], s{sOff} offen {fl} lds")
        if n == min(W, NL) - 2:
            a("s_barrier")
            stamp(2)
        if n >= W - 1:
            a(f"s_waitcnt vmcnt({W-1})")
            landed = n + 2 - W
            while mi < len(miles) and miles[mi] <= landed:
                publish(miles[mi]); mi += 1
                if stamps and miles[mi-1] in (16, 32, 96):
                    stamp({16: 3, 32: 4, 96: 5}[miles[mi-1]])
    while mi < len(miles):
        a(f"s_waitcnt vmcnt({NL - miles[mi]})")
        publish(miles[mi])
        if stamps and miles[mi] in (160, NL):
            stamp({160: 6, NL: 7}[miles[mi]])
        mi += 1
    a("s_waitcnt lgkmcnt(0)")
    dump_stamps(27, 28, [(0, 1), (1, 3), (2, 4), (3, 5), (4, 6), (5, 7)])
    a("s_endpgm")

    a.label("L_compute")
    R = Regs(1, 256)
    vL = R.alloc(); vN = R.alloc(); vKG = R.alloc(); vR4 = R.alloc(); vC = R.alloc()
    vFF = R.alloc(); vMisc = R.alloc(); vOne = R.alloc()
    vt0 = R.alloc(8, 4); vt = [vt0 + i for i in range(8)]
    vx0 = R.alloc(4, 4); vxt = [vx0 + i for i in range(4)]
    vTR = [R.alloc(), R.alloc()]
    vTRG = R.alloc(); vTRS = R.alloc(); vTR16 = R.alloc()
    vKA = [R.alloc() for _ in range(4)]
    vXB = [R.alloc(4, 4), R.alloc(4, 4)]
    vJunk = R.alloc(4, 4)
    rWS = 32
    sM1, sM3, sM4 = 36, 37, 38
    def wait_lds(off, n, label, cmp="ge"):
        a(f"""
        {label}:
        ds_read_b32 v{vt[7]}, v{vMisc} offset:{off}
        s_waitcnt lgkmcnt(0)
        v_readfirstlane_b32 s{sT0}, v{vt[7]}
        s_cmp_ge_u32 s{sT0}, {n}
        s_cbranch_scc1 {label}_ok
        s_sub_u32 s{sTMO}, s{sTMO}, 1
        s_cbranch_scc1 L_exit
        s_sleep 1
        s_branch {label}
        {label}_ok:
        """)
    def signal(off):
        a(f"""
        s_mov_b64 exec, 1
        ds_add_u32 v{vMisc}, v{vOne} offset:{off}
        s_mov_b64 exec, -1
        """)
    nbar = [0]
    def soft_barrier():
        nbar[0] += 1
        signal(BAR)
        wait_lds(BAR, 4 * nbar[0], f"L_bar{nbar[0]}")
    def tag(v):
        a(f"v_bfi_b32 v{v}, v{vFF}, s{sTAG}, v{v}")
    def exec_n_lt2():
        a("s_mov_b32 exec_lo, 0x00030003")
        a("s_mov_b32 exec_hi, 0x00030003")

    a(f"""
    v_and_b32 v{vL}, 63, v0
    s_sub_u32 s{sCW}, s{sWAVE}, 1
    s_lshr_b32 s{sB}, s{sJ}, 2
    v_and_b32 v{vN}, 15, v{vL}
    v_lshrrev_b32 v{vKG}, 4, v{vL}
    v_lshrrev_b32 v{vR4}, 2, v{vN}
    v_and_b32 v{vC}, 3, v{vN}
    v_mov_b32 v{vFF}, 0xff
    v_mov_b32 v{vMisc}, {MISC}
    v_mov_b32 v{vOne}, 1
    v_and_b32 v{vt[0]}, 1, v{vN}
    v_lshlrev_b32 v{vt[0]}, 10, v{vt[0]}
    v_lshl_add_u32 v{vt[0]}, v{vKG}, 4, v{vt[0]}
    s_lshl_b32 s{sT0}, s{sJ}, 7
    v_add_u32 v{vt[0]}, s{sT0}, v{vt[0]}
    v_mov_b32 v{vt[4]}, 0
    v_mov_b32 v{vt[5]}, 0
    v_mov_b32 v{vt[6]}, 0
    v_mov_b32 v{vt[7]}, 0
    s_waitcnt lgkmcnt(0)
    s_load_dword s{sE1}, s[{pWS}:{pWS+1}], 0
    global_load_dwordx4 {vr(vXB[0],4)}, v{vt[0]}, s[{pX}:{pX+1}]
    global_load_dwordx4 {vr(vXB[1],4)}, v{vt[0]}, s[{pX}:{pX+1}] offset:64
    """)
    assert vt[4] % 2 == 0 and vt[5] == vt[4] + 1 and vt[7] == vt[4] + 3
    a(f"""
    s_cmp_lg_u32 s{sCW}, 0
    s_cbranch_scc1 L_noinit
    ds_write_b128 v{vMisc}, v[{vt[4]}:{vt[7]}]
    L_noinit:
    """)
    if prefetch_code:
        a(f"""
        s_cmp_lg_u32 s{sCW}, 3
        s_cbranch_scc1 L_nopf
        s_getpc_b64 s[{sT2}:{sT3}]
        L_pc:
        s_lshr_b32 s{sT0}, s2, 3
        s_and_b32 s{sT0}, s{sT0}, 15
        s_lshl_b32 s{sT0}, s{sT0}, 10
        s_sub_u32 s{sT2}, s{sT2}, L_pc-{KN}
        s_subb_u32 s{sT3}, s{sT3}, 0
        s_min_u32 s{sT0}, s{sT0}, L_codeend-{KN}-1024
        s_add_u32 s{sT2}, s{sT2}, s{sT0}
        s_addc_u32 s{sT3}, s{sT3}, 0
        v_lshlrev_b32 v{vt[1]}, 4, v{vL}
        global_load_dwordx4 {vr(vJunk,4)}, v{vt[1]}, s[{sT2}:{sT3}]
        L_nopf:
        """)
    a(f"""
    s_mov_b32 s{rWS}, s{pWS}
    s_mov_b32 s{rWS+1}, s{pWS+1}
    s_mov_b32 s{rWS+2}, {WS_SIZE}
    s_mov_b32 s{rWS+3}, 0x20000
    s_lshl_b32 s{sT0}, s{sH}, 3
    s_add_u32 s{sT0}, s{sT0}, s{sJ}
    s_mul_i32 s{sM1}, s{sT0}, 1792
    s_add_u32 s{sM1}, s{sM1}, {WS_M1}
    s_mul_i32 s{sM3}, s{sT0}, 640
    s_add_u32 s{sM3}, s{sM3}, {WS_M3}
    s_lshl_b32 s{sM4}, s{sJ}, 14
    s_lshl_b32 s{sT0}, s{sH}, 9
    s_add_u32 s{sM4}, s{sM4}, s{sT0}
    s_add_u32 s{sM4}, s{sM4}, {WS_M4}
    v_lshl_add_u32 v{vt[0]}, v{vKG}, 3, v{vR4}          ; 8kg + r4
    v_and_b32 v{vt[1]}, 1, v{vKG}
    v_lshl_or_b32 v{vt[2]}, v{vt[1]}, 2, v{vR4}         ; f = r4 | (kg&1)<<2
    v_lshlrev_b32 v{vt[3]}, 8, v{vt[0]}
    v_lshl_add_u32 v{vt[3]}, v{vC}, 3, v{vt[3]}
    v_add_u32 v{vt[3]}, {V_OFF}, v{vt[3]}
    s_lshl_b32 s{sT0}, s{sCW}, 1
    v_xor_b32 v{vTR[0]}, s{sT0}, v{vt[2]}
    v_lshl_add_u32 v{vTR[0]}, v{vTR[0]}, 5, v{vt[3]}
    s_add_u32 s{sT0}, s{sT0}, 1
    v_xor_b32 v{vTR[1]}, s{sT0}, v{vt[2]}
    v_lshl_add_u32 v{vTR[1]}, v{vTR[1]}, 5, v{vt[3]}
    v_lshrrev_b32 v{vt[2]}, 1, v{vR4}
    v_lshl_or_b32 v{vt[3]}, v{vt[1]}, 1, v{vt[2]}
    v_xor_b32 v{vt[3]}, s{sCW}, v{vt[3]}
    v_lshlrev_b32 v{vt[3]}, 5, v{vt[3]}
    v_lshl_add_u32 v{vt[3]}, v{vt[0]}, 7, v{vt[3]}
    v_lshl_add_u32 v{vt[3]}, v{vC}, 3, v{vt[3]}
    v_add_u32 v{vTRG}, {WG_OFF}, v{vt[3]}
    v_add_u32 v{vTRS}, {S2_OFF}, v{vt[3]}
    v_lshrrev_b32 v{vt[3]}, 1, v{vKG}
    v_lshl_or_b32 v{vt[3]}, v{vt[3]}, 1, v{vt[2]}
    v_xor_b32 v{vt[3]}, s{sCW}, v{vt[3]}
    v_lshlrev_b32 v{vt[3]}, 5, v{vt[3]}
    v_lshl_add_u32 v{vt[0]}, v{vKG}, 2, v{vR4}
    v_lshl_add_u32 v{vt[3]}, v{vt[0]}, 7, v{vt[3]}
    v_lshl_add_u32 v{vt[3]}, v{vC}, 3, v{vt[3]}
    v_add_u32 v{vTR16}, {S2_OFF + 160*128}, v{vt[3]}
    s_lshl_b32 s{sT0}, s{sCW}, 14
    v_lshlrev_b32 v{vt[0]}, 8, v{vN}
    v_add_u32 v{vt[0]}, s{sT0}, v{vt[0]}
    v_xor_b32 v{vt[1]}, v{vKG}, v{vN}
    """)
    for t in range(4):
        a(f"v_xor_b32 v{vt[2]}, {4*t}, v{vt[1]}")
        a(f"v_lshl_add_u32 v{vKA[t]}, v{vt[2]}, 4, v{vt[0]}")
    a(f"""
    s_waitcnt lgkmcnt(0)
    s_add_u32 s{sE1}, s{sE1}, 1
    s_and_b32 s{sTAG}, s{sE1}, 0xff
    s_barrier
    """)
    stamp(1)

    vA = R.alloc(16, 4)
    vAcc = R.alloc(8, 4)
    vM1 = R.alloc()
    a(f"""
    v_mul_u32_u24 v{vM1}, 896, v{vN}
    v_lshl_add_u32 v{vM1}, v{vKG}, 4, v{vM1}
    """)
    wait_lds(PROG, 16, "L_w16")
    stamp(2)
    for ti in range(2):
        for u in range(2):
            f = vA + (ti*2 + u) * 4
            a(f"ds_read_b64_tr_b16 {vr(f,2)}, v{vTR[ti]} offset:{u*8192}")
            a(f"ds_read_b64_tr_b16 {vr(f+2,2)}, v{vTR[ti]} offset:{u*8192+1024}")
    a("s_waitcnt vmcnt(0) lgkmcnt(0)")
    for u in range(2):
        for ti in range(2):
            f = vA + (ti*2 + u) * 4
            c = "0" if u == 0 else vr(vAcc + 4*ti, 4)
            a(f"v_mfma_f32_16x16x32_bf16 {vr(vAcc+4*ti,4)}, {vr(f,4)}, {vr(vXB[u],4)}, {c}")
    a(f"""
    s_lshl_b32 s{sT0}, s{sCW}, 7
    s_add_u32 s{sT0}, s{sT0}, s{sM1}
    s_nop 7
    """)
    for i in range(8):
        tag(vAcc + i)
    exec_n_lt2()
    a(f"buffer_store_dwordx4 {vr(vAcc,4)}, v{vM1}, s[{rWS}:{rWS+3}], s{sT0} offen sc1")
    a(f"buffer_store_dwordx4 {vr(vAcc+4,4)}, v{vM1}, s[{rWS}:{rWS+3}], s{sT0} offen offset:64 sc1")
    a("s_mov_b64 exec, -1")
    stamp(3)
    a(f"""
    s_cmp_eq_u32 s{sCW}, 3
    s_cbranch_scc1 L_gate
    """)
    wait_lds(PROG, 32, "L_w32")
    vAcc2 = R.alloc(8, 4)
    for mi_, off in enumerate((0, 8192)):
        for u in range(2):
            f = vA + (mi_*2 + u) * 4
            a(f"ds_read_b64_tr_b16 {vr(f,2)}, v{vTRG} offset:{off + u*4096}")
            a(f"ds_read_b64_tr_b16 {vr(f+2,2)}, v{vTRG} offset:{off + u*4096 + 512}")
    a("s_waitcnt lgkmcnt(0)")
    for u in range(2):
        for mi_ in range(2):
            f = vA + (mi_*2 + u) * 4
            c = "0" if u == 0 else vr(vAcc2 + 4*mi_, 4)
            a(f"v_mfma_f32_16x16x32_bf16 {vr(vAcc2+4*mi_,4)}, {vr(f,4)}, {vr(vXB[u],4)}, {c}")
    signal(S1DONE)
    a(f"""
    s_lshl_b32 s{sT0}, s{sCW}, 6
    s_add_u32 s{sT0}, s{sT0}, s{sM1}
    s_nop 7
    """)
    for i in range(8):
        tag(vAcc2 + i)
    exec_n_lt2()
    a(f"buffer_store_dwordx4 {vr(vAcc2,4)}, v{vM1}, s[{rWS}:{rWS+3}], s{sT0} offen offset:512 sc1")
    a(f"buffer_store_dwordx4 {vr(vAcc2+4,4)}, v{vM1}, s[{rWS}:{rWS+3}], s{sT0} offen offset:704 sc1")
    a("s_mov_b64 exec, -1")
    a("s_branch L_p3")
    a.label("L_gate")
    signal(S1DONE)
    gx0, gx1, gw = vA, vA + 4, vA + 8
    a(f"""
    v_lshlrev_b32 v{vt[0]}, 4, v{vL}
    global_load_dwordx4 {vr(gx0,4)}, v{vt[0]}, s[{pX}:{pX+1}]
    global_load_dwordx4 {vr(gx1,4)}, v{vt[0]}, s[{pX}:{pX+1}] offset:1024
    global_load_dwordx4 {vr(gw,4)}, v{vt[0]}, s[{pGW}:{pGW+1}]
    s_waitcnt vmcnt(0)
    """)
    z = [vt[2], vt[3]]
    a(f"v_mov_b32 v{z[0]}, 0")
    a(f"v_mov_b32 v{z[1]}, 0")
    for i in range(4):
        for bi, gx in enumerate((gx0, gx1)):
            a(f"v_lshlrev_b32 v{vt[5]}, 16, v{gx+i}")
            a(f"v_lshlrev_b32 v{vt[6]}, 16, v{gw+i}")
            a(f"v_fmac_f32 v{z[bi]}, v{vt[5]}, v{vt[6]}")
            a(f"v_and_b32 v{vt[5]}, 0xffff0000, v{gx+i}")
            a(f"v_and_b32 v{vt[6]}, 0xffff0000, v{gw+i}")
            a(f"v_fmac_f32 v{z[bi]}, v{vt[5]}, v{vt[6]}")
    for rot in (8, 4, 2, 1):
        a("s_nop 1")
        for bi in range(2):
            a(f"v_add_f32_dpp v{z[bi]}, v{z[bi]}, v{z[bi]} row_ror:{rot} row_mask:0xf bank_mask:0xf")
    def xrow(regs, op="v_add_f32"):
        tm = vxt
        for ins in ("v_permlane16_swap_b32", "v_permlane32_swap_b32"):
            for k0 in range(0, len(regs), 4):
                grp = regs[k0:k0+4]
                for r, t in zip(grp, tm):
                    a(f"v_mov_b32 v{t}, v{r}")
                a("s_nop 1")
                for r, t in zip(grp, tm):
                    a(f"{ins} v{t}, v{r}")
                a("s_nop 1")
                for r, t in zip(grp, tm):
                    a(f"{op} v{r}, v{t}, v{r}")
    xrow(z)
    a(f"""
    v_mul_f32 v{z[0]}, {hex(f2u(-1.4426950408889634))}, v{z[0]}
    v_mul_f32 v{z[1]}, {hex(f2u(-1.4426950408889634))}, v{z[1]}
    v_exp_f32 v{z[0]}, v{z[0]}
    v_exp_f32 v{z[1]}, v{z[1]}
    s_nop 0
    v_add_f32 v{z[0]}, 1.0, v{z[0]}
    v_add_f32 v{z[1]}, 1.0, v{z[1]}
    v_rcp_f32 v{z[0]}, v{z[0]}
    v_rcp_f32 v{z[1]}, v{z[1]}
    s_nop 0
    s_mov_b64 exec, 1
    ds_write_b64 v{vMisc}, v[{z[0]}:{z[1]}] offset:{GV}
    s_mov_b64 exec, -1
    """)
    assert z[0] % 2 == 0 and z[1] == z[0] + 1
    a.label("L_p3")
    stamp(4)
    vG4 = R.alloc(16, 4)
    vBad = R.alloc()
    def check_tags(regs):
        for r in regs:
            a(f"v_xor_b32 v{r}, s{sTAG}, v{r}")
        a(f"v_or_b32 v{vBad}, v{regs[0]}, v{regs[1]}")
        for k in range(2, len(regs), 2):
            a(f"v_or3_b32 v{vBad}, v{vBad}, v{regs[k]}, v{regs[k+1]}")
        a(f"v_and_b32 v{vBad}, v{vFF}, v{vBad}")
        a(f"v_cmp_ne_u32 vcc, 0, v{vBad}")
    a(f"""
    s_cmp_lg_u32 s{sCW}, 0
    s_cbranch_scc1 L_waitq
    ; scalar hint: last two q words of batch b from each of the 8 producers
    s_mul_i32 s{sT0}, s{sH}, {8*1792}
    s_mul_i32 s{sT1}, s{sB}, 896
    s_add_u32 s{sT0}, s{sT0}, s{sT1}
    s_add_u32 s{sT0}, s{sT0}, {WS_M1}
    s_add_u32 s40, s{pWS}, s{sT0}
    s_addc_u32 s41, s{pWS+1}, 0
    L_hint1:
    """)
    for jj in range(8):
        a(f"s_load_dwordx2 s[{44+2*jj}:{45+2*jj}], s[40:41], {jj*1792 + 504} glc")
    a("s_waitcnt lgkmcnt(0)")
    a(f"s_xor_b32 s42, s44, s{sTAG}")
    for k in range(45, 60):
        a(f"s_xor_b32 s43, s{k}, s{sTAG}")
        a(f"s_or_b32 s42, s42, s43")
    a(f"""
    s_and_b32 s42, s42, 0xff
    s_cbranch_scc0 L_hint1_ok
    s_sub_u32 s{sTMO}, s{sTMO}, 1
    s_cbranch_scc1 L_exit
    s_branch L_hint1
    L_hint1_ok:
    """)
    stamp(5)
    a(f"""
    v_lshrrev_b32 v{vt[1]}, 5, v{vL}
    v_mul_u32_u24 v{vt[1]}, 1792, v{vt[1]}
    v_and_b32 v{vt[2]}, 31, v{vL}
    v_lshl_add_u32 v{vt[1]}, v{vt[2]}, 4, v{vt[1]}
    L_gq:
    s_mov_b32 s{sT1}, s{sT0}
    """)
    for i in range(4):
        a(f"buffer_load_dwordx4 {vr(vG4+4*i,4)}, v{vt[1]}, s[{rWS}:{rWS+3}], s{sT1} offen sc1")
        if i < 3:
            a(f"s_add_u32 s{sT1}, s{sT1}, 3584")
    a("s_waitcnt vmcnt(0)")
    check_tags([vG4 + i for i in range(16)])
    a(f"""
    s_cbranch_vccz L_gq_ok
    s_sub_u32 s{sTMO}, s{sTMO}, 1
    s_cbranch_scc1 L_exit
    s_branch L_gq
    L_gq_ok:
    """)
    for e in range(4):
        a(f"v_add_f32 v{vG4+e}, v{vG4+e}, v{vG4+4+e}")
        a(f"v_add_f32 v{vG4+8+e}, v{vG4+8+e}, v{vG4+12+e}")
    for e in range(4):
        a(f"v_add_f32 v{vG4+e}, v{vG4+e}, v{vG4+8+e}")
    for e in range(4):
        a(f"v_mov_b32 v{vG4+4+e}, v{vG4+e}")
    a("s_nop 1")
    for e in range(4):
        a(f"v_permlane32_swap_b32 v{vG4+4+e}, v{vG4+e}")
    a("s_nop 1")
    for e in range(4):
        a(f"v_add_f32 v{vG4+e}, v{vG4+e}, v{vG4+4+e}")
    a(f"""
    v_cvt_pk_bf16_f32 v{vG4+4}, v{vG4}, v{vG4+1}
    v_cvt_pk_bf16_f32 v{vG4+5}, v{vG4+2}, v{vG4+3}
    v_lshl_add_u32 v{vt[2]}, v{vt[2]}, 3, v{vMisc}
    s_mov_b32 exec_hi, 0
    ds_write_b64 v{vt[2]}, {vr(vG4+4,2)} offset:{QB}
    s_mov_b64 exec, 1
    ds_write_b32 v{vMisc}, v{vOne} offset:{QRDY}
    s_mov_b64 exec, -1
    """)
    a.label("L_waitq")
    wait_lds(QRDY, 1, "L_wq")
    stamp(6)
    vFoff = R.alloc()
    a(f"""
    v_mul_u32_u24 v{vFoff}, 1792, v{vKG}
    v_lshl_add_u32 v{vFoff}, v{vN}, 4, v{vFoff}
    s_sub_u32 s{sT0}, s{sCW}, 1
    s_and_b32 s{sT1}, s{sT0}, 1
    s_mul_i32 s{sT1}, s{sT1}, 896
    s_mul_i32 s39, s{sH}, {8*1792}
    s_add_u32 s39, s39, s{sT1}
    s_add_u32 s39, s39, {WS_M1 + 512}
    s_cmp_gt_u32 s{sT0}, 1
    s_cbranch_scc1 L_noffn1
    """)
    def ffn_loads():
        a(f"""
        v_cmp_gt_u32 vcc, 12, v{vN}
        s_and_b64 exec, exec, vcc
        s_add_u32 s{sT1}, s39, {4*1792}
        buffer_load_dwordx4 {vr(vG4,4)}, v{vFoff}, s[{rWS}:{rWS+3}], s39 offen sc1
        buffer_load_dwordx4 {vr(vG4+4,4)}, v{vFoff}, s[{rWS}:{rWS+3}], s{sT1} offen sc1
        buffer_load_dwordx4 {vr(vG4+8,4)}, v{vFoff}, s[{rWS}:{rWS+3}], s39 offen offset:192 sc1
        buffer_load_dwordx4 {vr(vG4+12,4)}, v{vFoff}, s[{rWS}:{rWS+3}], s{sT1} offen offset:192 sc1
        s_mov_b64 exec, -1
        """)
    ffn_loads()
    a.label("L_noffn1")
    vQ = R.alloc(16, 4)
    vKf = R.alloc(64, 4)
    vS = R.alloc(16, 4)
    a(f"""
    v_lshlrev_b32 v{vt[0]}, 4, v{vKG}
    v_add_u32 v{vt[0]}, v{vMisc}, v{vt[0]}
    """)
    for t in range(4):
        a(f"ds_read_b128 {vr(vQ+4*t,4)}, v{vt[0]} offset:{QB + 64*t}")
    a(f"s_lshl_b32 s{sT1}, s{sCW}, 4")
    a(f"s_add_u32 s{sT1}, s{sT1}, 48")
    a(f"""
    L_wk:
    ds_read_b32 v{vt[7]}, v{vMisc} offset:{PROG}
    s_waitcnt lgkmcnt(0)
    v_readfirstlane_b32 s{sT0}, v{vt[7]}
    s_cmp_ge_u32 s{sT0}, s{sT1}
    s_cbranch_scc1 L_wk_ok
    s_sub_u32 s{sTMO}, s{sTMO}, 1
    s_cbranch_scc1 L_exit
    s_sleep 1
    s_branch L_wk
    L_wk_ok:
    """)
    for T in range(4):
        for t in range(4):
            a(f"ds_read_b128 {vr(vKf + 16*T + 4*t, 4)}, v{vKA[t]} offset:{T*4096}")
    for T in range(4):
        a(f"s_waitcnt lgkmcnt({min(15, 4*(3-T))})")
        for t in range(4):
            c = "0" if t == 0 else vr(vS + 4*T, 4)
            a(f"v_mfma_f32_16x16x32_bf16 {vr(vS+4*T,4)}, {vr(vKf+16*T+4*t,4)}, {vr(vQ+4*t,4)}, {c}")
    a("s_nop 7")
    vMx = R.alloc()
    a(f"v_max3_f32 v{vMx}, v{vS}, v{vS+1}, v{vS+2}")
    for k in range(3, 15, 2):
        a(f"v_max3_f32 v{vMx}, v{vMx}, v{vS+k}, v{vS+k+1}")
    a(f"v_max_f32 v{vMx}, v{vMx}, v{vS+15}")
    xrow([vMx], "v_max_f32")
    a(f"""
    s_lshl_b32 s{sT0}, s{sCW}, 2
    v_add_u32 v{vt[0]}, s{sT0}, v{vMisc}
    s_mov_b64 exec, 1
    ds_write_b32 v{vt[0]}, v{vMx} offset:{MAXW}
    s_mov_b64 exec, -1
    """)
    soft_barrier()
    stamp(7)
    vMc = R.alloc()
    a(f"""
    ds_read_b128 v[{vt[4]}:{vt[7]}], v{vMisc} offset:{MAXW}
    s_mov_b32 s{sT1}, {hex(f2u(CEXP))}
    s_waitcnt lgkmcnt(0)
    v_max3_f32 v{vMc}, v{vt[4]}, v{vt[5]}, v{vt[6]}
    v_max_f32 v{vMc}, v{vMc}, v{vt[7]}
    v_mul_f32 v{vMc}, s{sT1}, v{vMc}
    v_and_b32 v{vMc}, 0xffffff00, v{vMc}
    """)
    for k in range(16):
        a(f"v_fma_f32 v{vS+k}, v{vS+k}, s{sT1}, -v{vMc}")
    for k in range(16):
        a(f"v_exp_f32 v{vS+k}, v{vS+k}")
    vSum = R.alloc()
    a("s_nop 0")
    a(f"v_add_f32 v{vSum}, v{vS}, v{vS+1}")
    for k in range(2, 16):
        a(f"v_add_f32 v{vSum}, v{vSum}, v{vS+k}")
    for T in range(4):
        a(f"v_cvt_pk_bf16_f32 v{vKf+2*T}, v{vS+4*T}, v{vS+4*T+1}")
        a(f"v_cvt_pk_bf16_f32 v{vKf+2*T+1}, v{vS+4*T+2}, v{vS+4*T+3}")
    xrow([vSum])
    a(f"""
    s_lshl_b32 s{sT0}, s{sCW}, 7
    v_lshl_add_u32 v{vt[1]}, v{vKG}, 3, v{vMisc}
    v_add_u32 v{vt[1]}, s{sT0}, v{vt[1]}
    s_mov_b32 exec_lo, 0x00010001
    s_mov_b32 exec_hi, 0x00010001
    """)
    for T in range(4):
        a(f"ds_write_b64 v{vt[1]}, {vr(vKf+2*T,2)} offset:{PB + 32*T}")
    a(f"""
    s_mov_b64 exec, 1
    ds_write_b32 v{vt[0]}, v{vSum} offset:{SUMW}
    s_mov_b64 exec, -1
    """)
    soft_barrier()
    stamp(8)
    R.release(vKf, 64); R.release(vQ, 16)
    vP = R.alloc(32, 4)
    a(f"""
    v_lshl_add_u32 v{vt[0]}, v{vKG}, 4, v{vMisc}
    """)
    for u in range(8):
        a(f"ds_read_b128 {vr(vP+4*u,4)}, v{vt[0]} offset:{PB + 64*u}")
    a(f"""
    s_cmp_lg_u32 s{sCW}, 0
    s_cbranch_scc1 L_nostat
    ds_read_b128 v[{vt[4]}:{vt[7]}], v{vMisc} offset:{SUMW}
    s_waitcnt lgkmcnt(0)
    v_add_f32 v{vt[4]}, v{vt[4]}, v{vt[5]}
    v_add_f32 v{vt[6]}, v{vt[6]}, v{vt[7]}
    v_add_f32 v{vt[5]}, v{vt[4]}, v{vt[6]}
    v_mov_b32 v{vt[4]}, v{vMc}
    """)
    tag(vt[4])
    tag(vt[5])
    a(f"""
    v_mov_b32 v{vt[6]}, v{vt[4]}
    v_mov_b32 v{vt[7]}, v{vt[5]}
    v_mov_b32 v{vt[0]}, 0
    s_mov_b64 exec, 1
    buffer_store_dwordx4 v[{vt[4]}:{vt[7]}], v{vt[0]}, s[{rWS}:{rWS+3}], s{sM3} offen offset:512 sc1
    s_mov_b64 exec, -1
    L_nostat:
    """)
    a(f"""
    s_sub_u32 s{sT0}, s{sCW}, 1
    s_cmp_gt_u32 s{sT0}, 1
    s_cbranch_scc1 L_noffn2
    L_ffnchk:
    s_waitcnt vmcnt(0)
    v_cmp_gt_u32 vcc, 12, v{vN}
    s_and_b64 exec, exec, vcc
    """)
    check_tags([vG4 + i for i in range(16)])
    a(f"""
    s_mov_b64 exec, -1
    s_cbranch_vccz L_ffn_ok
    s_sub_u32 s{sTMO}, s{sTMO}, 1
    s_cbranch_scc1 L_exit
    """)
    ffn_loads()
    a("s_branch L_ffnchk")
    a.label("L_ffn_ok")
    gsum = [vG4 + e for e in range(4)]; usum = [vG4 + 8 + e for e in range(4)]
    for e in range(4):
        a(f"v_add_f32 v{vG4+e}, v{vG4+e}, v{vG4+4+e}")
        a(f"v_add_f32 v{vG4+8+e}, v{vG4+8+e}, v{vG4+12+e}")
    xrow(gsum + usum)
    a(f"""
    s_add_u32 s{sT1}, s{sH}, 1
    s_mul_i32 s{sT1}, s{sT1}, 43
    s_lshr_b32 s{sT1}, s{sT1}, 3
    s_sub_u32 s{sT1}, s{sT1}, s{sU}
    s_lshl_b32 s{sT1}, s{sT1}, 1
    v_cmp_gt_u32 vcc, s{sT1}, v{vN}
    """)
    for e in range(4):
        a(f"v_max_f32 v{gsum[e]}, 0, v{gsum[e]}")
        a(f"v_mul_f32 v{gsum[e]}, v{gsum[e]}, v{usum[e]}")
        a(f"v_cndmask_b32 v{gsum[e]}, 0, v{gsum[e]}, vcc")
    a(f"""
    v_cvt_pk_bf16_f32 v{vG4+4}, v{gsum[0]}, v{gsum[1]}
    v_cvt_pk_bf16_f32 v{vG4+5}, v{gsum[2]}, v{gsum[3]}
    s_lshl_b32 s{sT0}, s{sT0}, 7
    v_lshl_add_u32 v{vt[1]}, v{vN}, 3, v{vMisc}
    v_add_u32 v{vt[1]}, s{sT0}, v{vt[1]}
    s_mov_b64 exec, 0xfff
    ds_write_b64 v{vt[1]}, {vr(vG4+4,2)} offset:{HID}
    s_mov_b64 exec, -1
    L_noffn2:
    """)
    stamp(9)
    vO = R.alloc(8, 4)
    vVf = R.alloc(16, 4)
    for u in range(8):
        wait_lds(PROG, 104 + 8*u, f"L_wv{u}")
        f0 = vVf + (u & 1) * 8
        for ti in range(2):
            a(f"ds_read_b64_tr_b16 {vr(f0+4*ti,2)}, v{vTR[ti]} offset:{u*8192}")
            a(f"ds_read_b64_tr_b16 {vr(f0+4*ti+2,2)}, v{vTR[ti]} offset:{u*8192+1024}")
        a("s_waitcnt lgkmcnt(0)")
        for ti in range(2):
            c = "0" if u == 0 else vr(vO + 4*ti, 4)
            a(f"v_mfma_f32_16x16x32_bf16 {vr(vO+4*ti,4)}, {vr(f0+4*ti,4)}, {vr(vP+4*u,4)}, {c}")
    stamp(10)
    a(f"""
    v_and_b32 v{vt[0]}, 1, v{vN}
    v_cmp_eq_u32 vcc, 1, v{vt[0]}
    v_lshlrev_b32 v{vt[1]}, 6, v{vt[0]}
    v_lshl_add_u32 v{vt[1]}, v{vKG}, 4, v{vt[1]}
    s_lshl_b32 s{sT0}, s{sCW}, 7
    s_add_u32 s{sT0}, s{sT0}, s{sM3}
    s_nop 5
    """)
    for e in range(4):
        a(f"v_cndmask_b32 v{vO+e}, v{vO+e}, v{vO+4+e}, vcc")
    for e in range(4):
        tag(vO + e)
    exec_n_lt2()
    a(f"buffer_store_dwordx4 {vr(vO,4)}, v{vt[1]}, s[{rWS}:{rWS+3}], s{sT0} offen sc1")
    a("s_mov_b64 exec, -1")
    R.release(vP, 32); R.release(vVf, 16)
    vWf = R.alloc(16, 4)
    vDf = R.alloc(8, 4)
    vHf = R.alloc(8, 4)
    vYa = R.alloc(4, 4); vYf = R.alloc(4, 4)
    vGl = R.alloc()
    vX3 = R.alloc(); vX3s = R.alloc()
    a(f"""
    s_lshr_b32 s{sT1}, s{sCW}, 1
    s_lshl_b32 s{sT2}, s{sH}, 3
    s_lshl_b32 s{sT3}, s{sT1}, 2
    s_add_u32 s{sT2}, s{sT2}, s{sT3}
    s_mul_i32 s40, s{sT2}, 640
    s_add_u32 s40, s40, {WS_M3}
    s_and_b32 s{sT3}, s{sCW}, 1
    s_lshl_b32 s{sT3}, s{sT3}, 8
    v_mul_u32_u24 v{vX3s}, 640, v{vKG}
    v_lshl_add_u32 v{vX3}, v{vN}, 4, v{vX3s}
    v_add_u32 v{vX3}, s{sT3}, v{vX3}
    """)
    wait_lds(PROG, NL, "L_wall")
    for u in range(4):
        a(f"ds_read_b64_tr_b16 {vr(vWf+4*u,2)}, v{vTRS} offset:{u*4096}")
        a(f"ds_read_b64_tr_b16 {vr(vWf+4*u+2,2)}, v{vTRS} offset:{u*4096+512}")
    a(f"""
    ds_read_b64_tr_b16 {vr(vDf,2)}, v{vTRS} offset:{4*4096}
    ds_read_b64_tr_b16 {vr(vDf+2,2)}, v{vTRS} offset:{4*4096+512}
    ds_read_b64_tr_b16 {vr(vDf+4,2)}, v{vTR16}
    v_and_b32 v{vt[0]}, 1, v{vN}
    v_lshlrev_b32 v{vt[1]}, 7, v{vt[0]}
    v_add_u32 v{vt[1]}, v{vMisc}, v{vt[1]}
    v_lshl_add_u32 v{vt[2]}, v{vKG}, 4, v{vt[1]}
    v_lshl_add_u32 v{vt[3]}, v{vKG}, 3, v{vt[1]}
    v_lshl_add_u32 v{vt[4]}, v{vt[0]}, 2, v{vMisc}
    """)
    stamp(11)
    vG3 = vG4
    a(f"""
    L_g3:
    buffer_load_dwordx4 {vr(vG3,4)}, v{vX3}, s[{rWS}:{rWS+3}], s40 offen sc1
    buffer_load_dwordx2 {vr(vG3+4,2)}, v{vX3s}, s[{rWS}:{rWS+3}], s40 offen offset:512 sc1
    s_waitcnt vmcnt(0)
    """)
    check_tags([vG3 + i for i in range(6)])
    a(f"""
    s_cbranch_vccz L_g3_ok
    s_sub_u32 s{sTMO}, s{sTMO}, 1
    s_cbranch_scc1 L_exit
    s_branch L_g3
    L_g3_ok:
    """)
    stamp(12)
    vm = vG3 + 6; vw = vG3 + 7
    a(f"v_mov_b32 v{vm}, v{vG3+4}")
    xrow([vm], "v_max_f32")
    a(f"""
    v_sub_f32 v{vw}, v{vG3+4}, v{vm}
    v_exp_f32 v{vw}, v{vw}
    s_nop 0
    v_mul_f32 v{vm}, v{vw}, v{vG3+5}
    """)
    for e in range(4):
        a(f"v_mul_f32 v{vG3+e}, v{vw}, v{vG3+e}")
    xrow([vG3, vG3+1, vG3+2, vG3+3]); xrow([vm])
    a(f"""
    v_rcp_f32 v{vm}, v{vm}
    s_nop 0
    """)
    for e in range(4):
        a(f"v_mul_f32 v{vG3+e}, v{vm}, v{vG3+e}")
    a(f"""
    v_cvt_pk_bf16_f32 v{vG3+4}, v{vG3}, v{vG3+1}
    v_cvt_pk_bf16_f32 v{vG3+5}, v{vG3+2}, v{vG3+3}
    s_lshl_b32 s{sT0}, s{sCW}, 7
    v_lshl_add_u32 v{vt[5]}, v{vN}, 3, v{vMisc}
    v_add_u32 v{vt[5]}, s{sT0}, v{vt[5]}
    s_mov_b64 exec, 0xffff
    ds_write_b64 v{vt[5]}, {vr(vG3+4,2)} offset:{OB}
    s_mov_b64 exec, -1
    s_waitcnt lgkmcnt(0)
    s_barrier
    ds_read_b128 {vr(vHf,4)}, v{vt[2]} offset:{HID}
    ds_read_b64 {vr(vHf+4,2)}, v{vt[3]} offset:{HID+64}
    ds_read_b32 v{vGl}, v{vt[4]} offset:{GV}
    v_and_b32 v{vt[0]}, 1, v{vN}
    v_lshlrev_b32 v{vt[1]}, 8, v{vt[0]}
    v_add_u32 v{vt[1]}, v{vMisc}, v{vt[1]}
    v_lshl_add_u32 v{vt[2]}, v{vKG}, 4, v{vt[1]}
    """)
    vOf = R.alloc(16, 4)
    for u in range(4):
        a(f"ds_read_b128 {vr(vOf+4*u,4)}, v{vt[2]} offset:{OB + 64*u}")
    a("s_waitcnt lgkmcnt(4)")
    a(f"v_mfma_f32_16x16x32_bf16 {vr(vYf,4)}, {vr(vDf,4)}, {vr(vHf,4)}, 0")
    for u in range(4):
        a(f"s_waitcnt lgkmcnt({3-u})")
        c = "0" if u == 0 else vr(vYa, 4)
        a(f"v_mfma_f32_16x16x32_bf16 {vr(vYa,4)}, {vr(vWf+4*u,4)}, {vr(vOf+4*u,4)}, {c}")
    a(f"v_mfma_f32_16x16x16_bf16 {vr(vYf,4)}, {vr(vDf+4,2)}, {vr(vHf+4,2)}, {vr(vYf,4)}")
    a(f"""
    v_sub_f32 v{vt[0]}, 1.0, v{vGl}
    v_and_b32 v{vt[1]}, 1, v{vN}
    v_lshlrev_b32 v{vt[1]}, 8, v{vt[1]}
    v_lshl_add_u32 v{vt[1]}, v{vKG}, 4, v{vt[1]}
    s_lshl_b32 s{sT0}, s{sCW}, 6
    s_add_u32 s{sT0}, s{sT0}, s{sM4}
    s_nop 7
    """)
    for e in range(4):
        a(f"v_mul_f32 v{vYf+e}, v{vt[0]}, v{vYf+e}")
    for e in range(4):
        a(f"v_fmac_f32 v{vYf+e}, v{vGl}, v{vYa+e}")
    for e in range(4):
        tag(vYf + e)
    exec_n_lt2()
    a(f"buffer_store_dwordx4 {vr(vYf,4)}, v{vt[1]}, s[{rWS}:{rWS+3}], s{sT0} offen sc1")
    a("s_mov_b64 exec, -1")
    a(f"""
    s_lshl_b32 s{sT0}, s{sJ}, 2
    s_cmp_lg_u32 s{sT0}, s{sH}
    s_cbranch_scc1 L_done
    s_lshl_b32 s{sT0}, s{sJ}, 14
    s_lshl_b32 s{sT1}, s{sCW}, 7
    s_add_u32 s{sT0}, s{sT0}, s{sT1}
    s_add_u32 s40, s{sT0}, {WS_M4}
    s_add_u32 s41, s40, 4096
    s_add_u32 s42, s40, 8192
    s_add_u32 s43, s40, 12288
    v_lshrrev_b32 v{vt[1]}, 3, v{vL}
    v_lshlrev_b32 v{vt[1]}, 9, v{vt[1]}
    v_and_b32 v{vt[2]}, 7, v{vL}
    v_lshl_add_u32 v{vt[1]}, v{vt[2]}, 4, v{vt[1]}
    L_g4:
    """)
    for i in range(4):
        a(f"buffer_load_dwordx4 {vr(vG4+4*i,4)}, v{vt[1]}, s[{rWS}:{rWS+3}], s{40+i} offen sc1")
    a("s_waitcnt vmcnt(0)")
    check_tags([vG4 + i for i in range(16)])
    a(f"""
    s_cbranch_vccz L_g4_ok
    s_sub_u32 s{sTMO}, s{sTMO}, 1
    s_cbranch_scc1 L_exit
    s_branch L_g4
    L_g4_ok:
    """)
    for e in range(4):
        a(f"v_add_f32 v{vG4+e}, v{vG4+e}, v{vG4+4+e}")
        a(f"v_add_f32 v{vG4+8+e}, v{vG4+8+e}, v{vG4+12+e}")
    for e in range(4):
        a(f"v_add_f32 v{vG4+e}, v{vG4+e}, v{vG4+8+e}")
    a("s_nop 1")
    for e in range(4):
        a(f"v_add_f32_dpp v{vG4+e}, v{vG4+e}, v{vG4+e} row_ror:8 row_mask:0xf bank_mask:0xf")
    xrow([vG4, vG4+1, vG4+2, vG4+3])
    a(f"""
    v_cvt_pk_bf16_f32 v{vG4+4}, v{vG4}, v{vG4+1}
    v_cvt_pk_bf16_f32 v{vG4+5}, v{vG4+2}, v{vG4+3}
    s_lshr_b32 s{sT0}, s{sCW}, 1
    s_lshl_b32 s{sT0}, s{sT0}, 10
    s_and_b32 s{sT1}, s{sCW}, 1
    s_lshl_b32 s{sT1}, s{sT1}, 6
    s_add_u32 s{sT0}, s{sT0}, s{sT1}
    s_lshl_b32 s{sT1}, s{sJ}, 7
    s_add_u32 s{sT0}, s{sT0}, s{sT1}
    v_lshlrev_b32 v{vt[2]}, 3, v{vt[2]}
    v_add_u32 v{vt[2]}, s{sT0}, v{vt[2]}
    s_mov_b64 exec, 0xff
    global_store_dwordx2 v{vt[2]}, {vr(vG4+4,2)}, s[{pOUT}:{pOUT+1}]
    ; every workgroup has read the epoch by now: advance it for the next launch
    s_or_b32 s{sT0}, s{sJ}, s{sCW}
    s_cmp_lg_u32 s{sT0}, 0
    s_cbranch_scc1 L_done
    s_mov_b64 exec, 1
    v_mov_b32 v{vt[0]}, 0
    v_mov_b32 v{vt[1]}, s{sE1}
    global_store_dword v{vt[0]}, v{vt[1]}, s[{pWS}:{pWS+1}] sc1
    L_done:
    """)
    stamp(13)
    dump_stamps(vt[0], vt[1], [(6, 1), (7, 3), (8, 5), (9, 6), (10, 8), (11, 10), (12, 11), (13, 12), (14, 13)])
    a.label("L_exit")
    a("s_endpgm")
    a.label("L_codeend")
    nv = R.hi
    txt = (f"; @launch grid=(256,1,1) block=(320,1,1) lds={LDS_BYTES}\n" + HEAD + kernel_begin(KN) + a.text()
           + kernel_desc(KN, nv, sgpr=100))
    return txt

if __name__ == "__main__":
    import argparse
    ap = argparse.ArgumentParser()
    ap.add_argument("-o", default="main.s"); ap.add_argument("--stamps", action="store_true")
    ap.add_argument("-W", type=int, default=32)
    ap.add_argument("--nopf", action="store_true")
    ap.add_argument("--dbg", action="store_true")
    ap.add_argument("--nont", action="store_true")
    ap.add_argument("--noxcd", action="store_true")
    x = ap.parse_args()
    fl = "" if x.nont else "nt"
    open(x.o, "w").write(gen(W=x.W, stamps=x.stamps or x.dbg, dbgstamps=x.dbg, prefetch_code=not x.nopf, wflags=fl, gflags=fl, kvflags=fl, xcdmap=not x.noxcd))
```

```python
import sys, math, struct
from asmgen import *

K_OFF = 0
V_OFF = 65536
WQ_OFF = V_OFF
WG_OFF = V_OFF + 16384
WU_OFF = V_OFF + 24576
S2_OFF = 131072
MISC = 153600
PROG, S1DONE, BAR, QRDY = 0, 4, 8, 12
STATW, GV = 16, 48
QB, HID, PB, OB = 64, 320, 576, 1088
LDS_BYTES = 155648
WS_M1 = 0x10000
WS_M3 = 0x100000
WS_M4 = 0x140000
WS_STAMP = 0x200000
WS_SIZE = 0x400000
CEXP = 1.4426950408889634 / math.sqrt(128.0)

def f2u(x):
    return struct.unpack("<I", struct.pack("<f", x))[0]

class Regs:
    def __init__(self, lo, hi):
        self.free = list(range(lo, hi))
        self.hi = lo
    def alloc(self, n=1, align=1):
        if n > 1 and align == 1:
            align = 2
        for s in self.free:
            if s % align == 0 and all((s + i) in self.free for i in range(n)):
                for i in range(n):
                    self.free.remove(s + i)
                self.hi = max(self.hi, s + n)
                return s
        raise RuntimeError("out of registers")
    def release(self, s, n=1):
        for i in range(n):
            assert (s + i) not in self.free
            self.free.append(s + i)
        self.free.sort()

def vr(b, n=1):
    return f"v{b}" if n == 1 else f"v[{b}:{b+n-1}]"

def gen(W=24, stamps=False, dbgstamps=False, wflags="nt", gflags="nt", kvflags="nt", prefetch_code=True, xcdmap=True,
        sleep=1, W1=None):
    a = Asm()
    KN = NAME + "_kernel"
    sWAVE, sH, sJ, sTAG, sE1 = 3, 4, 5, 6, 7
    pX, pK, pV, pWQ, pWO, pBX, pWG, pWU = 8, 10, 12, 14, 16, 18, 20, 22
    pWD, pGW, pOUT, pWS = 24, 26, 28, 30
    sU, sTMO, sT0, sT1, sT2, sT3 = 60, 61, 62, 63, 64, 65
    sCW, sB, sPG = 66, 67, 68
    STAMP0 = 72
    def stamp(idx):
        if stamps:
            a(f"s_memrealtime s[{STAMP0+2*idx}:{STAMP0+2*idx+1}]")
            a("s_waitcnt lgkmcnt(0)")
    def dump_stamps(vtmp, vaddr, dbg_slots=None):
        if not stamps:
            return
        if dbgstamps:
            lab = a.newlabel("L_nodbg")
            a(f"""
            s_cmp_lg_u32 s2, 0
            s_cbranch_scc1 {lab}
            s_cmp_gt_u32 s{sWAVE}, 1
            s_cbranch_scc1 {lab}
            s_load_dwordx2 s[{sT2}:{sT3}], s[0:1], 88
            s_waitcnt lgkmcnt(0)
            s_mov_b64 exec, 1
            v_mov_b32 v{vaddr}, 0
            """)
            for slot, idx in dbg_slots:
                a(f"s_sub_u32 s{sT0}, s{STAMP0+2*idx}, s{STAMP0}")
                a(f"v_mov_b32 v{vtmp}, s{sT0}")
                a(f"global_store_dword v{vaddr}, v{vtmp}, s[{sT2}:{sT3}] offset:{4*slot}")
                a("s_nop 1")
            a("s_waitcnt vmcnt(0)")
            a.label(lab)
            return
        a(f"""
        s_mov_b64 exec, 1
        s_lshl_b32 s{sT0}, s2, 3
        s_add_u32 s{sT0}, s{sT0}, s{sWAVE}
        s_lshl_b32 s{sT0}, s{sT0}, 6
        s_add_u32 s{sT0}, s{sT0}, {WS_STAMP}
        s_add_u32 s{sT2}, s{pWS}, s{sT0}
        s_addc_u32 s{sT3}, s{pWS+1}, 0
        v_mov_b32 v{vaddr}, 0
        """)
        for i in range(14):
            a(f"v_mov_b32 v{vtmp}, s{STAMP0+2*i}")
            a(f"global_store_dword v{vaddr}, v{vtmp}, s[{sT2}:{sT3}] offset:{4*i}")
            a("s_nop 1")
        a("s_waitcnt vmcnt(0)")

    a(f"""
    s_cmp_ge_u32 s2, 256
    s_cbranch_scc1 L_exit
    s_load_dwordx16 s[8:23], s[0:1], 0
    s_load_dwordx4 s[24:27], s[0:1], 64
    s_load_dwordx2 s[28:29], s[0:1], 80
    s_load_dwordx2 s[30:31], s[0:1], 96
    """)
    if stamps:
        for i in range(14):
            a(f"s_mov_b32 s{STAMP0+2*i}, 0")
        a(f"s_memrealtime s[{STAMP0}:{STAMP0+1}]")
    a(f"""
    v_lshrrev_b32 v1, 6, v0
    s_and_b32 s{sT0}, s2, 7
    s_lshr_b32 s{sT1}, s2, 3
    v_readfirstlane_b32 s{sWAVE}, v1
    s_lshr_b32 s{sH}, s{sT1}, 3
    s_lshl_b32 s{sT0}, s{sT0}, 2
    s_add_u32 s{sH}, s{sH}, s{sT0}
    s_and_b32 s{sJ}, s{sT1}, 7
    {"" if xcdmap else f"s_lshr_b32 s{sH}, s2, 3"}
    {"" if xcdmap else f"s_and_b32 s{sJ}, s2, 7"}
    s_mul_i32 s{sU}, s{sH}, 43
    s_lshr_b32 s{sU}, s{sU}, 3
    s_mov_b32 s{sTMO}, 400000
    s_cmp_lg_u32 s{sWAVE}, 0
    s_cbranch_scc1 L_compute
    s_setprio 3
    """)

    vRow4, vSl, vCb = 1, 2, 3
    vWQ = [8, 9]; vV = [10, 11]; vK = [12, 13, 14, 15]; vO = [16, 17]; vG = [18, 19]
    a(f"""
    v_lshrrev_b32 v{vRow4}, 4, v0
    v_and_b32 v{vSl}, 15, v0
    v_lshrrev_b32 v{vCb}, 1, v{vSl}
    v_xor_b32 v{vCb}, v{vCb}, v{vRow4}
    v_and_b32 v5, 1, v0
    v_lshlrev_b32 v5, 4, v5
    v_lshl_or_b32 v6, v{vCb}, 5, v5
    v_xor_b32 v7, 0x80, v6
    v_lshl_add_u32 v{vWQ[0]}, v{vRow4}, 13, v6
    v_lshl_add_u32 v{vWQ[1]}, v{vRow4}, 13, v7
    v_lshl_add_u32 v{vV[0]}, v{vRow4}, 8, v6
    v_lshl_add_u32 v{vV[1]}, v{vRow4}, 8, v7
    v_xor_b32 v6, v{vSl}, v{vRow4}
    """)
    for v in range(4):
        a(f"v_xor_b32 v7, {4*v}, v6")
        a(f"v_lshlrev_b32 v7, 4, v7")
        a(f"v_lshl_add_u32 v{vK[v]}, v{vRow4}, 8, v7")
    a(f"""
    v_lshrrev_b32 v20, 3, v0
    v_and_b32 v21, 7, v0
    v_lshrrev_b32 v21, 1, v21
    v_and_b32 v22, 1, v{vRow4}
    v_xor_b32 v21, v21, v22
    v_mul_u32_u24 v23, 2752, v20
    v_mov_b32 v24, 0x7fff0000
    v_mov_b32 v26, {MISC}
    """)
    for var in range(2):
        a(f"""
        v_xor_b32 v22, {2*var}, v21
        v_lshl_or_b32 v25, v22, 5, v5
        v_cmp_eq_u32 vcc, 3, v22
        v_lshl_add_u32 v{vO[var]}, v20, 10, v25
        v_add_u32 v{vG[var]}, v23, v25
        v_cndmask_b32 v{vG[var]}, v{vG[var]}, v24, vcc
        """)
    rK, rV, rWQ, rWO, rWG, rWU, rWD = 32, 36, 40, 44, 48, 52, 56
    sOff, sKV, sCnt, sN = 66, 67, 68, 69
    a(f"""
    s_lshr_b32 s{sT0}, s{sJ}, 2
    s_lshl_b32 s{sT0}, s{sT0}, 5
    s_add_u32 s{sT0}, s{sT0}, s{sH}
    s_lshl_b32 s{sKV}, s{sT0}, 20
    s_and_b32 s{sT0}, s{sJ}, 3
    s_lshl_b32 s{sT0}, s{sT0}, 16
    s_add_u32 s{sKV}, s{sKV}, s{sT0}
    s_add_u32 s{sKV}, s{sKV}, 0xC0000
    s_lshl_b32 s{sOff}, s{sJ}, 19
    s_lshl_b32 s{sT0}, s{sH}, 8
    s_add_u32 s{sOff}, s{sOff}, s{sT0}
    s_mov_b32 s{sN}, {2 - W}
    s_waitcnt lgkmcnt(0)
    """)
    def srd(r, p, size):
        a(f"""
        s_mov_b32 s{r}, s{p}
        s_mov_b32 s{r+1}, s{p+1}
        s_mov_b32 s{r+2}, {size}
        s_mov_b32 s{r+3}, 0x20000
        """)
    srd(rWQ, pWQ, 512*4096*2)
    a("s_barrier")
    stamp(1)
    NL = 182
    def stream(name, cnt, unr, srdr, voffs, lds0, step, fl, pre=None, wait=None):
        Wc = wait or W
        a(f"s_mov_b32 m0, {lds0}")
        if pre:
            pre()
        a(f"s_mov_b32 s{sCnt}, {cnt // unr}")
        a.label(f"L_ld_{name}")
        for i in range(unr):
            a(f"buffer_load_dwordx4 v{voffs[i]}, s[{srdr}:{srdr+3}], s{sOff} offen {fl} lds")
            a(f"s_add_u32 m0, m0, 1024")
            a(f"s_add_u32 s{sOff}, s{sOff}, {step}")
            a(f"s_waitcnt vmcnt({Wc-1})")
        a(f"""
        s_add_i32 s{sN}, s{sN}, {unr}
        s_sub_i32 s{sT0}, s{sN}, 1
        s_max_i32 s{sT0}, s{sT0}, 0
        v_mov_b32 v27, s{sT0}
        s_mov_b64 exec, 1
        ds_write_b32 v26, v27 offset:{PROG}
        s_mov_b64 exec, -1
        s_sub_u32 s{sCnt}, s{sCnt}, 1
        s_cmp_lg_u32 s{sCnt}, 0
        s_cbranch_scc1 L_ld_{name}
        """)
    stream("wq", 16, 4, rWQ, [vWQ[0], vWQ[0], vWQ[1], vWQ[1]], WQ_OFF, 4*8192, wflags)
    stamp(2)
    srd(rWG, pWG, 512*1376*2); srd(rWU, pWU, 512*1376*2)
    def pre_g():
        a(f"s_mul_i32 s{sOff}, s{sJ}, {64*2752}")
        a(f"s_lshl_b32 s{sT0}, s{sU}, 4")
        a(f"s_add_u32 s{sOff}, s{sOff}, s{sT0}")
    stream("wg", 8, 4, rWG, [vG[0], vG[1], vG[0], vG[1]], WG_OFF, 8*2752, gflags, pre_g)
    stream("wu", 8, 4, rWU, [vG[0], vG[1], vG[0], vG[1]], WU_OFF, 8*2752, gflags, pre_g)
    srd(rK, pK, 1 << 26); srd(rV, pV, 1 << 26)
    stream("k", 64, 4, rK, vK, K_OFF, 1024, kvflags, lambda: a(f"s_mov_b32 s{sOff}, s{sKV}"))
    stamp(3)
    srd(rWO, pWO, 4096*512*2); srd(rWD, pWD, 1376*512*2)
    a(f"""
    L_ld_s1:
    ds_read_b32 v27, v26 offset:{S1DONE}
    s_waitcnt lgkmcnt(0)
    v_readfirstlane_b32 s{sT0}, v27
    s_cmp_ge_u32 s{sT0}, 4
    s_cbranch_scc1 L_ld_s1_ok
    s_sub_u32 s{sTMO}, s{sTMO}, 1
    s_cbranch_scc1 L_exit
    s_sleep 1
    s_branch L_ld_s1
    L_ld_s1_ok:
    """)
    stream("v", 64, 4, rV, [vV[0], vV[0], vV[1], vV[1]], V_OFF, 1024, kvflags, lambda: a(f"s_mov_b32 s{sOff}, s{sKV}"))
    stamp(4)
    def pre_o():
        a(f"s_lshl_b32 s{sOff}, s{sH}, 17")
        a(f"s_lshl_b32 s{sT0}, s{sJ}, 7")
        a(f"s_add_u32 s{sOff}, s{sOff}, s{sT0}")
    def pre_d():
        a(f"s_lshl_b32 s{sOff}, s{sU}, 13")
        a(f"s_lshl_b32 s{sT0}, s{sJ}, 7")
        a(f"s_add_u32 s{sOff}, s{sOff}, s{sT0}")
    stream("wo", 16, 4, rWO, [vO[0], vO[1], vO[0], vO[1]], S2_OFF, 8192, wflags, pre_o)
    stream("wd", 6, 2, rWD, [vO[0], vO[1]], S2_OFF + 16*1024, 8192, wflags, pre_d)
    landed = NL + 1 - W
    for m in [x for x in (144, 152, 156, 160, 176, NL) if x > landed]:
        a(f"s_waitcnt vmcnt({NL - m})")
        a(f"v_mov_b32 v27, {m}")
        a("s_mov_b64 exec, 1")
        a(f"ds_write_b32 v26, v27 offset:{PROG}")
        a("s_mov_b64 exec, -1")
        if m == 160: stamp(5)
    stamp(6)
    a("s_waitcnt lgkmcnt(0)")
    dump_stamps(27, 28, [(0, 1), (1, 2), (2, 3), (3, 4), (4, 5), (5, 6)])
    a("s_endpgm")

    a.label("L_compute")
    R = Regs(1, 256)
    vL = R.alloc(); vN = R.alloc(); vKG = R.alloc(); vR4 = R.alloc(); vC = R.alloc()
    vFF = R.alloc(); vMisc = R.alloc(); vOne = R.alloc()
    vt0 = R.alloc(8, 4); vt = [vt0 + i for i in range(8)]
    vx0 = R.alloc(4, 4); vxt = [vx0 + i for i in range(4)]
    vTR = [R.alloc(), R.alloc()]
    vTRG = R.alloc(); vTRS = R.alloc(); vTR16 = R.alloc()
    vKA = [R.alloc() for _ in range(4)]
    vXB = [R.alloc(4, 4), R.alloc(4, 4)]
    vJunk = R.alloc(4, 4)
    vGx = R.alloc(12, 4)
    rWS = 32
    sM1, sM3, sM4 = 36, 37, 38
    def spin_tail(label):
        a(f"""
        s_sub_u32 s{sTMO}, s{sTMO}, 1
        s_cbranch_scc1 L_exit
        s_sleep {sleep}
        s_branch {label}
        """)
    def wait_lds(off, n, label):
        a(f"""
        {label}:
        ds_read_b32 v{vt[7]}, v{vMisc} offset:{off}
        s_waitcnt lgkmcnt(0)
        v_readfirstlane_b32 s{sT0}, v{vt[7]}
        s_cmp_ge_u32 s{sT0}, {n}
        s_cbranch_scc1 {label}_ok
        """)
        spin_tail(label)
        a.label(f"{label}_ok")
    def wait_prog(n, label):
        a(f"""
        s_cmp_ge_u32 s{sPG}, {n}
        s_cbranch_scc1 {label}_ok
        {label}:
        ds_read_b32 v{vt[7]}, v{vMisc} offset:{PROG}
        s_waitcnt lgkmcnt(0)
        v_readfirstlane_b32 s{sPG}, v{vt[7]}
        s_cmp_ge_u32 s{sPG}, {n}
        s_cbranch_scc1 {label}_ok
        """)
        spin_tail(label)
        a.label(f"{label}_ok")
    def signal(off):
        a(f"""
        s_mov_b64 exec, 1
        ds_add_u32 v{vMisc}, v{vOne} offset:{off}
        s_mov_b64 exec, -1
        """)
    def tag(v):
        a(f"v_bfi_b32 v{v}, v{vFF}, s{sTAG}, v{v}")
    def exec_n_lt2():
        a("s_mov_b32 exec_lo, 0x00030003")
        a("s_mov_b32 exec_hi, 0x00030003")
    def xrow(regs, op="v_add_f32"):
        for ins in ("v_permlane16_swap_b32", "v_permlane32_swap_b32"):
            for k0 in range(0, len(regs), 4):
                grp = regs[k0:k0+4]
                for r, t in zip(grp, vxt):
                    a(f"v_mov_b32 v{t}, v{r}")
                if len(grp) < 2:
                    a("s_nop 1")
                elif len(grp) < 3:
                    a("s_nop 0")
                for r, t in zip(grp, vxt):
                    a(f"{ins} v{t}, v{r}")
                for r, t in zip(grp, vxt):
                    a(f"{op} v{r}, v{t}, v{r}")
    vBad = R.alloc()
    def check_tags(regs):
        for r in regs:
            a(f"v_xor_b32 v{r}, s{sTAG}, v{r}")
        a(f"v_or_b32 v{vBad}, v{regs[0]}, v{regs[1]}")
        for k in range(2, len(regs), 2):
            a(f"v_or3_b32 v{vBad}, v{vBad}, v{regs[k]}, v{regs[k+1]}")
        a(f"v_and_b32 v{vBad}, v{vFF}, v{vBad}")
        a(f"v_cmp_ne_u32 vcc, 0, v{vBad}")
    def retry(label_again, label_ok):
        a(f"""
        s_cbranch_vccz {label_ok}
        s_sub_u32 s{sTMO}, s{sTMO}, 1
        s_cbranch_scc1 L_exit
        s_branch {label_again}
        {label_ok}:
        """)

    a(f"""
    v_and_b32 v{vL}, 63, v0
    s_sub_u32 s{sCW}, s{sWAVE}, 1
    s_lshr_b32 s{sB}, s{sJ}, 2
    s_mov_b32 s{sPG}, 0
    v_and_b32 v{vN}, 15, v{vL}
    v_lshrrev_b32 v{vKG}, 4, v{vL}
    v_lshrrev_b32 v{vR4}, 2, v{vN}
    v_and_b32 v{vC}, 3, v{vN}
    v_mov_b32 v{vFF}, 0xff
    v_mov_b32 v{vMisc}, {MISC}
    v_mov_b32 v{vOne}, 1
    v_mov_b32 v{vt[4]}, 0
    v_mov_b32 v{vt[5]}, 0
    v_mov_b32 v{vt[6]}, 0
    v_mov_b32 v{vt[7]}, 0
    s_cmp_lg_u32 s{sCW}, 0
    s_cbranch_scc1 L_noinit
    ds_write_b128 v{vMisc}, v[{vt[4]}:{vt[7]}]
    L_noinit:
    v_and_b32 v{vt[0]}, 1, v{vN}
    v_lshlrev_b32 v{vt[0]}, 10, v{vt[0]}
    v_lshl_add_u32 v{vt[0]}, v{vKG}, 4, v{vt[0]}
    s_lshl_b32 s{sT0}, s{sJ}, 7
    v_add_u32 v{vt[0]}, s{sT0}, v{vt[0]}
    v_lshlrev_b32 v{vt[1]}, 4, v{vL}
    s_waitcnt lgkmcnt(0)
    s_barrier
    s_load_dword s{sE1}, s[{pWS}:{pWS+1}], 0
    global_load_dwordx4 {vr(vXB[0],4)}, v{vt[0]}, s[{pX}:{pX+1}]
    global_load_dwordx4 {vr(vXB[1],4)}, v{vt[0]}, s[{pX}:{pX+1}] offset:64
    s_cmp_lg_u32 s{sCW}, 3
    s_cbranch_scc1 L_nopf
    global_load_dwordx4 {vr(vGx,4)}, v{vt[1]}, s[{pX}:{pX+1}]
    global_load_dwordx4 {vr(vGx+4,4)}, v{vt[1]}, s[{pX}:{pX+1}] offset:1024
    global_load_dwordx4 {vr(vGx+8,4)}, v{vt[1]}, s[{pGW}:{pGW+1}]
    """)
    if prefetch_code:
        a(f"""
        s_getpc_b64 s[{sT2}:{sT3}]
        L_pc:
        s_lshr_b32 s{sT0}, s2, 3
        s_and_b32 s{sT0}, s{sT0}, 15
        s_lshl_b32 s{sT0}, s{sT0}, 10
        s_sub_u32 s{sT2}, s{sT2}, L_pc-{KN}
        s_subb_u32 s{sT3}, s{sT3}, 0
        s_min_u32 s{sT0}, s{sT0}, L_codeend-{KN}-1024
        s_add_u32 s{sT2}, s{sT2}, s{sT0}
        s_addc_u32 s{sT3}, s{sT3}, 0
        global_load_dwordx4 {vr(vJunk,4)}, v{vt[1]}, s[{sT2}:{sT3}]
        """)
    a.label("L_nopf")
    a(f"""
    s_mov_b32 s{rWS}, s{pWS}
    s_mov_b32 s{rWS+1}, s{pWS+1}
    s_mov_b32 s{rWS+2}, {WS_SIZE}
    s_mov_b32 s{rWS+3}, 0x20000
    s_lshl_b32 s{sT0}, s{sH}, 3
    s_add_u32 s{sT0}, s{sT0}, s{sJ}
    s_mul_i32 s{sM1}, s{sT0}, 1792
    s_add_u32 s{sM1}, s{sM1}, {WS_M1}
    s_mul_i32 s{sM3}, s{sT0}, 640
    s_add_u32 s{sM3}, s{sM3}, {WS_M3}
    s_lshl_b32 s{sM4}, s{sJ}, 14
    s_lshl_b32 s{sT0}, s{sH}, 9
    s_add_u32 s{sM4}, s{sM4}, s{sT0}
    s_add_u32 s{sM4}, s{sM4}, {WS_M4}
    v_lshl_add_u32 v{vt[0]}, v{vKG}, 3, v{vR4}          ; 8kg + r4
    v_and_b32 v{vt[1]}, 1, v{vKG}
    v_lshl_or_b32 v{vt[2]}, v{vt[1]}, 2, v{vR4}         ; f = r4 | (kg&1)<<2
    v_lshlrev_b32 v{vt[3]}, 8, v{vt[0]}
    v_lshl_add_u32 v{vt[3]}, v{vC}, 3, v{vt[3]}
    v_add_u32 v{vt[3]}, {V_OFF}, v{vt[3]}
    s_lshl_b32 s{sT0}, s{sCW}, 1
    v_xor_b32 v{vTR[0]}, s{sT0}, v{vt[2]}
    v_lshl_add_u32 v{vTR[0]}, v{vTR[0]}, 5, v{vt[3]}
    s_add_u32 s{sT0}, s{sT0}, 1
    v_xor_b32 v{vTR[1]}, s{sT0}, v{vt[2]}
    v_lshl_add_u32 v{vTR[1]}, v{vTR[1]}, 5, v{vt[3]}
    v_lshrrev_b32 v{vt[2]}, 1, v{vR4}
    v_lshl_or_b32 v{vt[3]}, v{vt[1]}, 1, v{vt[2]}
    v_xor_b32 v{vt[3]}, s{sCW}, v{vt[3]}
    v_lshlrev_b32 v{vt[3]}, 5, v{vt[3]}
    v_lshl_add_u32 v{vt[3]}, v{vt[0]}, 7, v{vt[3]}
    v_lshl_add_u32 v{vt[3]}, v{vC}, 3, v{vt[3]}
    v_add_u32 v{vTRG}, {WG_OFF}, v{vt[3]}
    v_add_u32 v{vTRS}, {S2_OFF}, v{vt[3]}
    v_lshrrev_b32 v{vt[3]}, 1, v{vKG}
    v_lshl_or_b32 v{vt[3]}, v{vt[3]}, 1, v{vt[2]}
    v_xor_b32 v{vt[3]}, s{sCW}, v{vt[3]}
    v_lshlrev_b32 v{vt[3]}, 5, v{vt[3]}
    v_lshl_add_u32 v{vt[0]}, v{vKG}, 2, v{vR4}
    v_lshl_add_u32 v{vt[3]}, v{vt[0]}, 7, v{vt[3]}
    v_lshl_add_u32 v{vt[3]}, v{vC}, 3, v{vt[3]}
    v_add_u32 v{vTR16}, {S2_OFF + 160*128}, v{vt[3]}
    s_lshl_b32 s{sT0}, s{sCW}, 14
    v_lshlrev_b32 v{vt[0]}, 8, v{vN}
    v_add_u32 v{vt[0]}, s{sT0}, v{vt[0]}
    v_xor_b32 v{vt[1]}, v{vKG}, v{vN}
    """)
    for t in range(4):
        a(f"v_xor_b32 v{vt[2]}, {4*t}, v{vt[1]}")
        a(f"v_lshl_add_u32 v{vKA[t]}, v{vt[2]}, 4, v{vt[0]}")
    stamp(1)

    vA = R.alloc(16, 4)
    vAcc = R.alloc(8, 4)
    vM1 = R.alloc()
    a(f"""
    v_mul_u32_u24 v{vM1}, 896, v{vN}
    v_lshl_add_u32 v{vM1}, v{vKG}, 4, v{vM1}
    """)
    wait_prog(16, "L_w16")
    stamp(2)
    for ti in range(2):
        for u in range(2):
            f = vA + (ti*2 + u) * 4
            a(f"ds_read_b64_tr_b16 {vr(f,2)}, v{vTR[ti]} offset:{u*8192}")
            a(f"ds_read_b64_tr_b16 {vr(f+2,2)}, v{vTR[ti]} offset:{u*8192+1024}")
    a(f"""
    s_add_u32 s{sE1}, s{sE1}, 1
    s_and_b32 s{sTAG}, s{sE1}, 0xff
    s_waitcnt vmcnt(0) lgkmcnt(0)
    """)
    for u in range(2):
        for ti in range(2):
            f = vA + (ti*2 + u) * 4
            c = "0" if u == 0 else vr(vAcc + 4*ti, 4)
            a(f"v_mfma_f32_16x16x32_bf16 {vr(vAcc+4*ti,4)}, {vr(f,4)}, {vr(vXB[u],4)}, {c}")
    a(f"""
    s_lshl_b32 s{sT0}, s{sCW}, 7
    s_add_u32 s{sT0}, s{sT0}, s{sM1}
    s_nop 6
    """)
    for i in range(8):
        tag(vAcc + i)
    exec_n_lt2()
    a(f"buffer_store_dwordx4 {vr(vAcc,4)}, v{vM1}, s[{rWS}:{rWS+3}], s{sT0} offen sc1")
    a(f"buffer_store_dwordx4 {vr(vAcc+4,4)}, v{vM1}, s[{rWS}:{rWS+3}], s{sT0} offen offset:64 sc1")
    a("s_mov_b64 exec, -1")
    stamp(3)
    a(f"""
    s_cmp_eq_u32 s{sCW}, 3
    s_cbranch_scc1 L_gate
    """)
    wait_prog(32, "L_w32")
    vAcc2 = R.alloc(8, 4)
    for mi_, off in enumerate((0, 8192)):
        for u in range(2):
            f = vA + (mi_*2 + u) * 4
            a(f"ds_read_b64_tr_b16 {vr(f,2)}, v{vTRG} offset:{off + u*4096}")
            a(f"ds_read_b64_tr_b16 {vr(f+2,2)}, v{vTRG} offset:{off + u*4096 + 512}")
    a("s_waitcnt lgkmcnt(0)")
    for u in range(2):
        for mi_ in range(2):
            f = vA + (mi_*2 + u) * 4
            c = "0" if u == 0 else vr(vAcc2 + 4*mi_, 4)
            a(f"v_mfma_f32_16x16x32_bf16 {vr(vAcc2+4*mi_,4)}, {vr(f,4)}, {vr(vXB[u],4)}, {c}")
    signal(S1DONE)
    a(f"""
    s_lshl_b32 s{sT0}, s{sCW}, 6
    s_add_u32 s{sT0}, s{sT0}, s{sM1}
    s_nop 5
    """)
    for i in range(8):
        tag(vAcc2 + i)
    exec_n_lt2()
    a(f"buffer_store_dwordx4 {vr(vAcc2,4)}, v{vM1}, s[{rWS}:{rWS+3}], s{sT0} offen offset:512 sc1")
    a(f"buffer_store_dwordx4 {vr(vAcc2+4,4)}, v{vM1}, s[{rWS}:{rWS+3}], s{sT0} offen offset:704 sc1")
    a("s_mov_b64 exec, -1")
    a("s_branch L_p3")
    a.label("L_gate")
    signal(S1DONE)
    gx0, gx1, gw = vGx, vGx + 4, vGx + 8
    z = [vt[2], vt[3]]
    a(f"v_mov_b32 v{z[0]}, 0")
    a(f"v_mov_b32 v{z[1]}, 0")
    for i in range(4):
        a(f"v_lshlrev_b32 v{vt[4]}, 16, v{gw+i}")
        a(f"v_and_b32 v{vt[5]}, 0xffff0000, v{gw+i}")
        for bi, gx in enumerate((gx0, gx1)):
            a(f"v_lshlrev_b32 v{vt[6]}, 16, v{gx+i}")
            a(f"v_fmac_f32 v{z[bi]}, v{vt[6]}, v{vt[4]}")
            a(f"v_and_b32 v{vt[6]}, 0xffff0000, v{gx+i}")
            a(f"v_fmac_f32 v{z[bi]}, v{vt[6]}, v{vt[5]}")
    for rot in (8, 4, 2, 1):
        a("s_nop 1")
        for bi in range(2):
            a(f"v_add_f32_dpp v{z[bi]}, v{z[bi]}, v{z[bi]} row_ror:{rot} row_mask:0xf bank_mask:0xf")
    xrow(z)
    a(f"""
    v_mul_f32 v{z[0]}, {hex(f2u(-1.4426950408889634))}, v{z[0]}
    v_mul_f32 v{z[1]}, {hex(f2u(-1.4426950408889634))}, v{z[1]}
    v_exp_f32 v{z[0]}, v{z[0]}
    v_exp_f32 v{z[1]}, v{z[1]}
    s_nop 0
    v_add_f32 v{z[0]}, 1.0, v{z[0]}
    v_add_f32 v{z[1]}, 1.0, v{z[1]}
    v_rcp_f32 v{z[0]}, v{z[0]}
    v_rcp_f32 v{z[1]}, v{z[1]}
    s_nop 0
    s_mov_b64 exec, 1
    ds_write_b64 v{vMisc}, v[{z[0]}:{z[1]}] offset:{GV}
    s_mov_b64 exec, -1
    """)
    a.label("L_p3")
    stamp(4)
    R.release(vGx, 12)
    vG4 = R.alloc(16, 4)
    a(f"""
    s_cmp_lg_u32 s{sCW}, 0
    s_cbranch_scc1 L_waitq
    s_mul_i32 s{sT0}, s{sH}, {8*1792}
    s_mul_i32 s{sT1}, s{sB}, 896
    s_add_u32 s{sT0}, s{sT0}, s{sT1}
    s_add_u32 s{sT0}, s{sT0}, {WS_M1}
    s_add_u32 s40, s{pWS}, s{sT0}
    s_addc_u32 s41, s{pWS+1}, 0
    v_lshrrev_b32 v{vt[1]}, 5, v{vL}
    v_mul_u32_u24 v{vt[1]}, 1792, v{vt[1]}
    v_and_b32 v{vt[2]}, 31, v{vL}
    v_lshl_add_u32 v{vt[1]}, v{vt[2]}, 4, v{vt[1]}
    L_hint1:
    """)
    for jj in range(8):
        a(f"s_load_dwordx2 s[{44+2*jj}:{45+2*jj}], s[40:41], {jj*1792 + 504} glc")
    a("s_waitcnt lgkmcnt(0)")
    a(f"s_xor_b32 s42, s44, s{sTAG}")
    for k in range(45, 60):
        a(f"s_xor_b32 s43, s{k}, s{sTAG}")
        a(f"s_or_b32 s42, s42, s43")
    a(f"""
    s_and_b32 s42, s42, 0xff
    s_cbranch_scc0 L_hint1_ok
    s_sub_u32 s{sTMO}, s{sTMO}, 1
    s_cbranch_scc1 L_exit
    s_branch L_hint1
    L_hint1_ok:
    """)
    stamp(5)
    a(f"""
    L_gq:
    s_mov_b32 s{sT1}, s{sT0}
    """)
    for i in range(4):
        a(f"buffer_load_dwordx4 {vr(vG4+4*i,4)}, v{vt[1]}, s[{rWS}:{rWS+3}], s{sT1} offen sc1")
        if i < 3:
            a(f"s_add_u32 s{sT1}, s{sT1}, 3584")
    a("s_waitcnt vmcnt(0)")
    check_tags([vG4 + i for i in range(16)])
    retry("L_gq", "L_gq_ok")
    for e in range(4):
        a(f"v_add_f32 v{vG4+e}, v{vG4+e}, v{vG4+4+e}")
        a(f"v_add_f32 v{vG4+8+e}, v{vG4+8+e}, v{vG4+12+e}")
    for e in range(4):
        a(f"v_add_f32 v{vG4+e}, v{vG4+e}, v{vG4+8+e}")
    for e in range(4):
        a(f"v_mov_b32 v{vG4+4+e}, v{vG4+e}")
    for e in range(4):
        a(f"v_permlane32_swap_b32 v{vG4+4+e}, v{vG4+e}")
    for e in range(4):
        a(f"v_add_f32 v{vG4+e}, v{vG4+e}, v{vG4+4+e}")
    a(f"""
    v_cvt_pk_bf16_f32 v{vG4+4}, v{vG4}, v{vG4+1}
    v_cvt_pk_bf16_f32 v{vG4+5}, v{vG4+2}, v{vG4+3}
    v_lshl_add_u32 v{vt[2]}, v{vt[2]}, 3, v{vMisc}
    s_mov_b32 exec_hi, 0
    ds_write_b64 v{vt[2]}, {vr(vG4+4,2)} offset:{QB}
    s_mov_b64 exec, 1
    ds_write_b32 v{vMisc}, v{vOne} offset:{QRDY}
    s_mov_b64 exec, -1
    """)
    a.label("L_waitq")
    wait_lds(QRDY, 1, "L_wq")
    stamp(6)
    vFoff = R.alloc()
    vF4 = R.alloc(16, 4)
    a(f"""
    v_mul_u32_u24 v{vFoff}, 1792, v{vKG}
    v_lshl_add_u32 v{vFoff}, v{vN}, 4, v{vFoff}
    s_sub_u32 s{sT0}, s{sCW}, 1
    s_and_b32 s{sT1}, s{sT0}, 1
    s_mul_i32 s{sT1}, s{sT1}, 896
    s_mul_i32 s39, s{sH}, {8*1792}
    s_add_u32 s39, s39, s{sT1}
    s_add_u32 s39, s39, {WS_M1 + 512}
    s_cmp_gt_u32 s{sT0}, 1
    s_cbranch_scc1 L_noffn1
    """)
    def ffn_loads():
        a(f"""
        v_cmp_gt_u32 vcc, 12, v{vN}
        s_and_b64 exec, exec, vcc
        s_add_u32 s{sT1}, s39, {4*1792}
        buffer_load_dwordx4 {vr(vF4,4)}, v{vFoff}, s[{rWS}:{rWS+3}], s39 offen sc1
        buffer_load_dwordx4 {vr(vF4+4,4)}, v{vFoff}, s[{rWS}:{rWS+3}], s{sT1} offen sc1
        buffer_load_dwordx4 {vr(vF4+8,4)}, v{vFoff}, s[{rWS}:{rWS+3}], s39 offen offset:192 sc1
        buffer_load_dwordx4 {vr(vF4+12,4)}, v{vFoff}, s[{rWS}:{rWS+3}], s{sT1} offen offset:192 sc1
        s_mov_b64 exec, -1
        """)
    ffn_loads()
    a.label("L_noffn1")
    vQ = R.alloc(16, 4)
    vKf = R.alloc(64, 4)
    vS = R.alloc(16, 4)
    a(f"""
    v_lshlrev_b32 v{vt[0]}, 4, v{vKG}
    v_add_u32 v{vt[0]}, v{vMisc}, v{vt[0]}
    """)
    for t in range(4):
        a(f"ds_read_b128 {vr(vQ+4*t,4)}, v{vt[0]} offset:{QB + 64*t}")
    a(f"s_lshl_b32 s{sT1}, s{sCW}, 4")
    a(f"s_add_u32 s{sT1}, s{sT1}, 48")
    wait_prog(f"s{sT1}", "L_wk")
    for T in range(4):
        for t in range(4):
            a(f"ds_read_b128 {vr(vKf + 16*T + 4*t, 4)}, v{vKA[t]} offset:{T*4096}")
    for T in range(4):
        a(f"s_waitcnt lgkmcnt({4*(3-T)})")
        for t in range(4):
            c = "0" if t == 0 else vr(vS + 4*T, 4)
            a(f"v_mfma_f32_16x16x32_bf16 {vr(vS+4*T,4)}, {vr(vKf+16*T+4*t,4)}, {vr(vQ+4*t,4)}, {c}")
    vSt = R.alloc(2, 2)
    vMc, vSum = vSt, vSt + 1
    a(f"""
    s_mov_b32 s{sT1}, {hex(f2u(CEXP))}
    s_nop 3
    v_max3_f32 v{vMc}, v{vS}, v{vS+1}, v{vS+2}
    """)
    for k in range(3, 11, 2):
        a(f"v_max3_f32 v{vMc}, v{vMc}, v{vS+k}, v{vS+k+1}")
    a(f"v_max_f32 v{vMc}, v{vMc}, v{vS+11}")
    a("s_nop 1")
    a(f"v_max3_f32 v{vMc}, v{vMc}, v{vS+12}, v{vS+13}")
    a(f"v_max3_f32 v{vMc}, v{vMc}, v{vS+14}, v{vS+15}")
    xrow([vMc], "v_max_f32")
    a(f"""
    v_mul_f32 v{vMc}, s{sT1}, v{vMc}
    v_and_b32 v{vMc}, 0xffffff00, v{vMc}
    """)
    for k in range(16):
        a(f"v_fma_f32 v{vS+k}, v{vS+k}, s{sT1}, -v{vMc}")
    for k in range(16):
        a(f"v_exp_f32 v{vS+k}, v{vS+k}")
    for T in range(4):
        a(f"v_cvt_pk_bf16_f32 v{vKf+2*T}, v{vS+4*T}, v{vS+4*T+1}")
        a(f"v_cvt_pk_bf16_f32 v{vKf+2*T+1}, v{vS+4*T+2}, v{vS+4*T+3}")
    a(f"""
    s_lshl_b32 s{sT0}, s{sCW}, 7
    v_lshl_add_u32 v{vt[1]}, v{vKG}, 3, v{vMisc}
    v_add_u32 v{vt[1]}, s{sT0}, v{vt[1]}
    s_mov_b32 exec_lo, 0x00010001
    s_mov_b32 exec_hi, 0x00010001
    """)
    for T in range(4):
        a(f"ds_write_b64 v{vt[1]}, {vr(vKf+2*T,2)} offset:{PB + 32*T}")
    a("s_mov_b64 exec, -1")
    for k in range(0, 16, 2):
        a(f"v_add_f32 v{vS+k}, v{vS+k}, v{vS+k+1}")
    for k in range(0, 16, 4):
        a(f"v_add_f32 v{vS+k}, v{vS+k}, v{vS+k+2}")
    a(f"v_add_f32 v{vS}, v{vS}, v{vS+4}")
    a(f"v_add_f32 v{vS+8}, v{vS+8}, v{vS+12}")
    a(f"v_add_f32 v{vSum}, v{vS}, v{vS+8}")
    xrow([vSum])
    a(f"""
    s_lshl_b32 s{sT0}, s{sCW}, 3
    v_add_u32 v{vt[0]}, s{sT0}, v{vMisc}
    s_mov_b64 exec, 1
    ds_write_b64 v{vt[0]}, {vr(vSt,2)} offset:{STATW}
    ds_add_u32 v{vMisc}, v{vOne} offset:{BAR}
    s_mov_b64 exec, -1
    """)
    wait_lds(BAR, 4, "L_bar1")
    stamp(7)
    R.release(vKf, 64); R.release(vQ, 16); R.release(vS, 16)
    vP = R.alloc(32, 4)
    vFw = R.alloc(8, 4)
    a(f"""
    v_lshl_add_u32 v{vt[0]}, v{vKG}, 4, v{vMisc}
    ds_read_b128 {vr(vFw,4)}, v{vMisc} offset:{STATW}
    ds_read_b128 {vr(vFw+4,4)}, v{vMisc} offset:{STATW+16}
    """)
    for u in range(8):
        a(f"ds_read_b128 {vr(vP+4*u,4)}, v{vt[0]} offset:{PB + 64*u}")
    a(f"""
    s_waitcnt lgkmcnt(8)
    v_max3_f32 v{vt[4]}, v{vFw}, v{vFw+2}, v{vFw+4}
    v_max_f32 v{vt[4]}, v{vt[4]}, v{vFw+6}
    """)
    for w in range(4):
        a(f"v_sub_f32 v{vFw+2*w}, v{vFw+2*w}, v{vt[4]}")
    for w in range(4):
        a(f"v_exp_f32 v{vFw+2*w}, v{vFw+2*w}")
    a(f"""
    s_cmp_lg_u32 s{sCW}, 0
    s_cbranch_scc1 L_nostat
    v_mul_f32 v{vt[5]}, v{vFw}, v{vFw+1}
    v_fmac_f32 v{vt[5]}, v{vFw+2}, v{vFw+3}
    v_fmac_f32 v{vt[5]}, v{vFw+4}, v{vFw+5}
    v_fmac_f32 v{vt[5]}, v{vFw+6}, v{vFw+7}
    """)
    tag(vt[4])
    tag(vt[5])
    a(f"""
    v_mov_b32 v{vt[6]}, v{vt[4]}
    v_mov_b32 v{vt[7]}, v{vt[5]}
    v_mov_b32 v{vt[0]}, 0
    s_mov_b64 exec, 1
    buffer_store_dwordx4 v[{vt[4]}:{vt[7]}], v{vt[0]}, s[{rWS}:{rWS+3}], s{sM3} offen offset:512 sc1
    s_mov_b64 exec, -1
    L_nostat:
    """)
    stamp(8)
    vO = R.alloc(32, 4)
    vVf = R.alloc(32, 4)
    def pv_batch(us, need, label):
        wait_prog(need, label)
        for k, u in enumerate(us):
            f0 = vVf + 8*k
            for ti in range(2):
                a(f"ds_read_b64_tr_b16 {vr(f0+4*ti,2)}, v{vTR[ti]} offset:{u*8192}")
                a(f"ds_read_b64_tr_b16 {vr(f0+4*ti+2,2)}, v{vTR[ti]} offset:{u*8192+1024}")
        for k, u in enumerate(us):
            a(f"s_waitcnt lgkmcnt({4*(len(us)-1-k)})")
            f0 = vVf + 8*k
            w = u >> 1
            for ti in range(2):
                acc = vO + 8*w + 4*ti
                c = "0" if (u & 1) == 0 else vr(acc, 4)
                a(f"v_mfma_f32_16x16x32_bf16 {vr(acc,4)}, {vr(f0+4*ti,4)}, {vr(vP+4*u,4)}, {c}")
    pv_batch([0, 1, 2, 3], 128, "L_wvA")
    pv_batch([4, 5], 144, "L_wvB")
    vM3 = R.alloc(); vX3 = R.alloc(); vSg = R.alloc(2, 2)
    vWs = R.alloc(4, 4)
    a(f"""
    v_and_b32 v{vt[0]}, 1, v{vN}
    v_lshlrev_b32 v{vt[1]}, 6, v{vt[0]}
    v_lshl_add_u32 v{vM3}, v{vKG}, 4, v{vt[1]}
    s_lshr_b32 s{sT1}, s{sCW}, 1
    s_lshl_b32 s{sT2}, s{sH}, 3
    s_lshl_b32 s{sT3}, s{sT1}, 2
    s_add_u32 s{sT2}, s{sT2}, s{sT3}
    s_mul_i32 s40, s{sT2}, 640
    s_add_u32 s40, s40, {WS_M3}
    s_and_b32 s{sT3}, s{sCW}, 1
    s_lshl_b32 s{sT3}, s{sT3}, 8
    s_add_u32 s41, s40, s{sT3}
    s_add_u32 s42, s41, 640
    s_add_u32 s43, s41, 1280
    s_add_u32 s44, s41, 1920
    v_lshlrev_b32 v{vX3}, 2, v{vL}
    v_and_b32 v{vt[2]}, 3, v{vL}
    v_mul_u32_u24 v{vt[2]}, 640, v{vt[2]}
    buffer_load_dwordx2 {vr(vSg,2)}, v{vt[2]}, s[{rWS}:{rWS+3}], s40 offen offset:512 sc1
    """)
    for i in range(8):
        a(f"v_mul_f32 v{vO+i}, v{vFw}, v{vO+i}")
    for i in range(8):
        a(f"v_fmac_f32 v{vO+i}, v{vFw+2}, v{vO+8+i}")
    pv_batch([6], 152, "L_wvC")
    for i in range(8):
        a(f"v_fmac_f32 v{vO+i}, v{vFw+4}, v{vO+16+i}")
    a(f"""
    v_cmp_eq_u32 vcc, 1, v{vt[0]}
    s_lshl_b32 s45, s{sCW}, 7
    s_add_u32 s45, s45, s{sM3}
    """)
    for e in range(4):
        a(f"v_cndmask_b32 v{vO+e}, v{vO+e}, v{vO+4+e}, vcc")
    pv_batch([7], 160, "L_wvD")
    a("s_nop 7")
    for e in range(4):
        a(f"v_cndmask_b32 v{vO+24+e}, v{vO+24+e}, v{vO+28+e}, vcc")
    for e in range(4):
        a(f"v_fmac_f32 v{vO+e}, v{vFw+6}, v{vO+24+e}")
    for e in range(4):
        tag(vO + e)
    exec_n_lt2()
    a(f"buffer_store_dwordx4 {vr(vO,4)}, v{vM3}, s[{rWS}:{rWS+3}], s45 offen sc1")
    a("s_mov_b64 exec, -1")
    stamp(9)
    R.release(vP, 32); R.release(vVf, 32); R.release(vFw, 8)
    vG3 = vG4
    vG3b = vG4 + 4
    def g3_loads(dst):
        for s_ in range(4):
            a(f"buffer_load_dword v{dst+s_}, v{vX3}, s[{rWS}:{rWS+3}], s{41+s_} offen sc1")
    g3_loads(vG3)
    a(f"""
    s_sub_u32 s{sT0}, s{sCW}, 1
    s_cmp_gt_u32 s{sT0}, 1
    s_cbranch_scc1 L_noffn2
    s_waitcnt vmcnt(6)
    L_ffnchk:
    v_cmp_gt_u32 vcc, 12, v{vN}
    s_and_b64 exec, exec, vcc
    """)
    check_tags([vF4 + i for i in range(16)])
    a(f"""
    s_mov_b64 exec, -1
    s_cbranch_vccz L_ffn_ok
    s_sub_u32 s{sTMO}, s{sTMO}, 1
    s_cbranch_scc1 L_exit
    """)
    ffn_loads()
    a("s_waitcnt vmcnt(0)")
    a("s_branch L_ffnchk")
    a.label("L_ffn_ok")
    gsum = [vF4 + e for e in range(4)]; usum = [vF4 + 8 + e for e in range(4)]
    for e in range(4):
        a(f"v_add_f32 v{vF4+e}, v{vF4+e}, v{vF4+4+e}")
        a(f"v_add_f32 v{vF4+8+e}, v{vF4+8+e}, v{vF4+12+e}")
    xrow(gsum + usum)
    a(f"""
    s_add_u32 s{sT1}, s{sH}, 1
    s_mul_i32 s{sT1}, s{sT1}, 43
    s_lshr_b32 s{sT1}, s{sT1}, 3
    s_sub_u32 s{sT1}, s{sT1}, s{sU}
    s_lshl_b32 s{sT1}, s{sT1}, 1
    v_cmp_gt_u32 vcc, s{sT1}, v{vN}
    """)
    for e in range(4):
        a(f"v_max_f32 v{gsum[e]}, 0, v{gsum[e]}")
        a(f"v_mul_f32 v{gsum[e]}, v{gsum[e]}, v{usum[e]}")
        a(f"v_cndmask_b32 v{gsum[e]}, 0, v{gsum[e]}, vcc")
    a(f"""
    v_cvt_pk_bf16_f32 v{vF4+4}, v{gsum[0]}, v{gsum[1]}
    v_cvt_pk_bf16_f32 v{vF4+5}, v{gsum[2]}, v{gsum[3]}
    s_lshl_b32 s{sT0}, s{sT0}, 7
    v_lshl_add_u32 v{vt[1]}, v{vN}, 3, v{vMisc}
    v_add_u32 v{vt[1]}, s{sT0}, v{vt[1]}
    s_mov_b64 exec, 0xfff
    ds_write_b64 v{vt[1]}, {vr(vF4+4,2)} offset:{HID}
    s_mov_b64 exec, -1
    L_noffn2:
    """)
    stamp(10)
    a(f"""
    L_sg:
    s_waitcnt vmcnt(5)
    """)
    check_tags([vSg, vSg + 1])
    a(f"""
    s_cbranch_vccz L_sg_ok
    s_sub_u32 s{sTMO}, s{sTMO}, 1
    s_cbranch_scc1 L_exit
    v_and_b32 v{vt[2]}, 3, v{vL}
    v_mul_u32_u24 v{vt[2]}, 640, v{vt[2]}
    buffer_load_dwordx2 {vr(vSg,2)}, v{vt[2]}, s[{rWS}:{rWS+3}], s40 offen offset:512 sc1
    s_waitcnt vmcnt(0)
    s_branch L_sg
    L_sg_ok:
    v_mov_b32 v{vt[3]}, v{vSg}
    s_nop 1
    v_max_f32_dpp v{vt[3]}, v{vt[3]}, v{vt[3]} quad_perm:[1,0,3,2] row_mask:0xf bank_mask:0xf
    s_nop 1
    v_max_f32_dpp v{vt[3]}, v{vt[3]}, v{vt[3]} quad_perm:[2,3,0,1] row_mask:0xf bank_mask:0xf
    v_sub_f32 v{vt[3]}, v{vSg}, v{vt[3]}
    v_exp_f32 v{vt[3]}, v{vt[3]}
    s_nop 0
    v_mul_f32 v{vt[4]}, v{vt[3]}, v{vSg+1}
    s_nop 1
    v_add_f32_dpp v{vt[4]}, v{vt[4]}, v{vt[4]} quad_perm:[1,0,3,2] row_mask:0xf bank_mask:0xf
    s_nop 1
    v_add_f32_dpp v{vt[4]}, v{vt[4]}, v{vt[4]} quad_perm:[2,3,0,1] row_mask:0xf bank_mask:0xf
    v_rcp_f32 v{vt[4]}, v{vt[4]}
    s_nop 0
    v_mul_f32 v{vt[3]}, v{vt[3]}, v{vt[4]}
    s_nop 1
    """)
    for s_ in range(4):
        a(f"v_mov_b32_dpp v{vWs+s_}, v{vt[3]} quad_perm:[{s_},{s_},{s_},{s_}] row_mask:0xf bank_mask:0xf")
    g3_loads(vG3b)
    vWf = R.alloc(16, 4); vDf = R.alloc(8, 4); vHf = R.alloc(8, 4)
    vYa = R.alloc(4, 4); vYf = R.alloc(4, 4); vGl = R.alloc()
    vAH = R.alloc(); vAH16 = R.alloc(); vAG = R.alloc(); vAO = R.alloc(); vAW = R.alloc(); vM4 = R.alloc()
    a(f"""
    v_and_b32 v{vt[0]}, 1, v{vN}
    v_lshlrev_b32 v{vt[1]}, 7, v{vt[0]}
    v_add_u32 v{vt[1]}, v{vMisc}, v{vt[1]}
    v_lshl_add_u32 v{vAH}, v{vKG}, 4, v{vt[1]}
    v_lshl_add_u32 v{vAH16}, v{vKG}, 3, v{vt[1]}
    v_lshl_add_u32 v{vAG}, v{vt[0]}, 2, v{vMisc}
    v_lshlrev_b32 v{vt[1]}, 8, v{vt[0]}
    v_lshl_add_u32 v{vM4}, v{vKG}, 4, v{vt[1]}
    v_add_u32 v{vAO}, v{vMisc}, v{vM4}
    s_lshl_b32 s{sT0}, s{sCW}, 7
    v_lshl_add_u32 v{vAW}, v{vL}, 1, v{vMisc}
    v_add_u32 v{vAW}, s{sT0}, v{vAW}
    s_lshl_b32 s46, s{sCW}, 6
    s_add_u32 s46, s46, s{sM4}
    """)
    wait_prog(NL, "L_wall")
    for u in range(4):
        a(f"ds_read_b64_tr_b16 {vr(vWf+4*u,2)}, v{vTRS} offset:{u*4096}")
        a(f"ds_read_b64_tr_b16 {vr(vWf+4*u+2,2)}, v{vTRS} offset:{u*4096+512}")
    a(f"""
    ds_read_b64_tr_b16 {vr(vDf,2)}, v{vTRS} offset:{4*4096}
    ds_read_b64_tr_b16 {vr(vDf+2,2)}, v{vTRS} offset:{4*4096+512}
    ds_read_b64_tr_b16 {vr(vDf+4,2)}, v{vTR16}
    """)
    stamp(11)
    a(f"""
    L_g3:
    s_waitcnt vmcnt(4)
    """)
    check_tags([vG3 + i for i in range(4)])
    a(f"""
    s_cbranch_vccz L_g3_ok
    s_sub_u32 s{sTMO}, s{sTMO}, 1
    s_cbranch_scc1 L_exit
    """)
    g3_loads(vG3)
    a("s_waitcnt vmcnt(4)")
    check_tags([vG3b + i for i in range(4)])
    a("s_cbranch_vccz L_g3_okb")
    g3_loads(vG3b)
    vRes = R.alloc()
    def combine(src):
        a(f"v_mul_f32 v{vRes}, v{vWs}, v{src}")
        for k in range(1, 4):
            a(f"v_fmac_f32 v{vRes}, v{vWs+k}, v{src+k}")
    a("s_branch L_g3")
    a.label("L_g3_okb")
    combine(vG3b)
    a("s_branch L_g3_done")
    a.label("L_g3_ok")
    combine(vG3)
    a.label("L_g3_done")
    stamp(12)
    a(f"""
    v_cvt_pk_bf16_f32 v{vRes}, v{vRes}, v{vRes}
    ds_write_b16 v{vAW}, v{vRes} offset:{OB}
    s_waitcnt lgkmcnt(0)
    s_barrier
    ds_read_b128 {vr(vHf,4)}, v{vAH} offset:{HID}
    ds_read_b64 {vr(vHf+4,2)}, v{vAH16} offset:{HID+64}
    ds_read_b32 v{vGl}, v{vAG} offset:{GV}
    """)
    vOf = R.alloc(16, 4)
    for u in range(4):
        a(f"ds_read_b128 {vr(vOf+4*u,4)}, v{vAO} offset:{OB + 64*u}")
    a("s_waitcnt lgkmcnt(4)")
    a(f"v_mfma_f32_16x16x32_bf16 {vr(vYf,4)}, {vr(vDf,4)}, {vr(vHf,4)}, 0")
    for u in range(4):
        a(f"s_waitcnt lgkmcnt({3-u})")
        c = "0" if u == 0 else vr(vYa, 4)
        a(f"v_mfma_f32_16x16x32_bf16 {vr(vYa,4)}, {vr(vWf+4*u,4)}, {vr(vOf+4*u,4)}, {c}")
    a(f"v_mfma_f32_16x16x16_bf16 {vr(vYf,4)}, {vr(vDf+4,2)}, {vr(vHf+4,2)}, {vr(vYf,4)}")
    a(f"""
    v_sub_f32 v{vt[0]}, 1.0, v{vGl}
    s_nop 6
    """)
    for e in range(4):
        a(f"v_mul_f32 v{vYa+e}, v{vGl}, v{vYa+e}")
    for e in range(4):
        a(f"v_fmac_f32 v{vYa+e}, v{vt[0]}, v{vYf+e}")
    for e in range(4):
        tag(vYa + e)
    exec_n_lt2()
    a(f"buffer_store_dwordx4 {vr(vYa,4)}, v{vM4}, s[{rWS}:{rWS+3}], s46 offen sc1")
    a("s_mov_b64 exec, -1")
    a(f"""
    s_lshl_b32 s{sT0}, s{sJ}, 2
    s_cmp_lg_u32 s{sT0}, s{sH}
    s_cbranch_scc1 L_done
    s_lshl_b32 s{sT0}, s{sJ}, 14
    s_lshl_b32 s{sT1}, s{sCW}, 7
    s_add_u32 s{sT0}, s{sT0}, s{sT1}
    s_add_u32 s40, s{sT0}, {WS_M4}
    s_add_u32 s41, s40, 4096
    s_add_u32 s42, s40, 8192
    s_add_u32 s43, s40, 12288
    v_lshrrev_b32 v{vt[1]}, 3, v{vL}
    v_lshlrev_b32 v{vt[1]}, 9, v{vt[1]}
    v_and_b32 v{vt[2]}, 7, v{vL}
    v_lshl_add_u32 v{vt[1]}, v{vt[2]}, 4, v{vt[1]}
    s_lshr_b32 s{sT0}, s{sCW}, 1
    s_lshl_b32 s{sT0}, s{sT0}, 10
    s_and_b32 s{sT1}, s{sCW}, 1
    s_lshl_b32 s{sT1}, s{sT1}, 6
    s_add_u32 s{sT0}, s{sT0}, s{sT1}
    s_lshl_b32 s{sT1}, s{sJ}, 7
    s_add_u32 s{sT0}, s{sT0}, s{sT1}
    v_lshlrev_b32 v{vt[2]}, 3, v{vt[2]}
    v_lshl_add_u32 v{vt[2]}, v{vKG}, 1, v{vt[2]}
    v_add_u32 v{vt[2]}, s{sT0}, v{vt[2]}
    L_g4:
    """)
    for i in range(4):
        a(f"buffer_load_dwordx4 {vr(vG4+4*i,4)}, v{vt[1]}, s[{rWS}:{rWS+3}], s{40+i} offen sc1")
    a("s_waitcnt vmcnt(0)")
    check_tags([vG4 + i for i in range(16)])
    retry("L_g4", "L_g4_ok")
    for e in range(4):
        a(f"v_add_f32 v{vG4+e}, v{vG4+e}, v{vG4+4+e}")
        a(f"v_add_f32 v{vG4+8+e}, v{vG4+8+e}, v{vG4+12+e}")
    for e in range(4):
        a(f"v_add_f32 v{vG4+e}, v{vG4+e}, v{vG4+8+e}")
    a(f"""
    s_nop 0
    v_permlane32_swap_b32 v{vG4}, v{vG4+2}
    v_permlane32_swap_b32 v{vG4+1}, v{vG4+3}
    v_add_f32 v{vG4}, v{vG4}, v{vG4+2}
    v_add_f32 v{vG4+1}, v{vG4+1}, v{vG4+3}
    s_nop 1
    v_permlane16_swap_b32 v{vG4}, v{vG4+1}
    v_add_f32 v{vG4}, v{vG4}, v{vG4+1}
    s_nop 1
    v_add_f32_dpp v{vG4}, v{vG4}, v{vG4} row_ror:8 row_mask:0xf bank_mask:0xf
    v_cvt_pk_bf16_f32 v{vG4}, v{vG4}, v{vG4}
    s_mov_b32 exec_lo, 0x00ff00ff
    s_mov_b32 exec_hi, 0x00ff00ff
    global_store_short v{vt[2]}, v{vG4}, s[{pOUT}:{pOUT+1}]
    s_or_b32 s{sT0}, s{sJ}, s{sCW}
    s_cmp_lg_u32 s{sT0}, 0
    s_cbranch_scc1 L_done
    s_mov_b64 exec, 1
    v_mov_b32 v{vt[0]}, 0
    v_mov_b32 v{vt[1]}, s{sE1}
    global_store_dword v{vt[0]}, v{vt[1]}, s[{pWS}:{pWS+1}] sc1
    L_done:
    """)
    stamp(13)
    dump_stamps(vt[0], vt[1], [(6, 2), (7, 3), (8, 5), (9, 6), (10, 7), (11, 9), (12, 11), (13, 12), (14, 13)])
    a.label("L_exit")
    a("s_endpgm")
    a.label("L_codeend")
    nv = R.hi
    txt = (f"; @launch grid=(256,1,1) block=(320,1,1) lds={LDS_BYTES}\n" + HEAD + kernel_begin(KN) + a.text()
           + kernel_desc(KN, nv, sgpr=100))
    return txt

if __name__ == "__main__":
    import argparse
    ap = argparse.ArgumentParser()
    ap.add_argument("-o", default="main.s"); ap.add_argument("--stamps", action="store_true")
    ap.add_argument("-W", type=int, default=24)
    ap.add_argument("--nopf", action="store_true")
    ap.add_argument("--dbg", action="store_true")
    ap.add_argument("--nont", action="store_true")
    ap.add_argument("--noxcd", action="store_true")
    x = ap.parse_args()
    fl = "" if x.nont else "nt"
    open(x.o, "w").write(gen(W=x.W, stamps=x.stamps or x.dbg, dbgstamps=x.dbg, prefetch_code=not x.nopf,
                             wflags=fl, gflags=fl, kvflags=fl, xcdmap=not x.noxcd))
```

```python
import sys, math, struct
from asmgen import *

K_OFF = 0
V_OFF = 65536
WQ_OFF = V_OFF
WG_OFF = V_OFF + 16384
WU_OFF = V_OFF + 24576
S2_OFF = 131072
MISC = 153600
PROG, S1DONE, BAR, QRDY = 0, 4, 8, 12
STATW, GV = 16, 48
QB, HID, PB, OB = 64, 320, 576, 1088
LDS_BYTES = 155648
WS_M1 = 0x10000
WS_M3 = 0x100000
WS_M4 = 0x140000
WS_M3L = 0x180000
WS_STAMP = 0x200000
WS_SIZE = 0x400000
CEXP = 1.4426950408889634 / math.sqrt(128.0)

def f2u(x):
    return struct.unpack("<I", struct.pack("<f", x))[0]

class Regs:
    def __init__(self, lo, hi):
        self.free = list(range(lo, hi))
        self.hi = lo
    def alloc(self, n=1, align=1):
        if n > 1 and align == 1:
            align = 2
        for s in self.free:
            if s % align == 0 and all((s + i) in self.free for i in range(n)):
                for i in range(n):
                    self.free.remove(s + i)
                self.hi = max(self.hi, s + n)
                return s
        raise RuntimeError("out of registers")
    def release(self, s, n=1):
        for i in range(n):
            assert (s + i) not in self.free
            self.free.append(s + i)
        self.free.sort()

def vr(b, n=1):
    return f"v{b}" if n == 1 else f"v[{b}:{b+n-1}]"

def gen(W=24, stamps=False, dbgstamps=False, wflags="nt", gflags="nt", kvflags="nt", prefetch_code=True, xcdmap=True,
        sleep=1, W2=None, vsplit=0, cset=None, lset=None):
    W2 = W2 or W
    a = Asm()
    KN = NAME + "_kernel"
    sWAVE, sH, sJ, sTAG, sE1 = 3, 4, 5, 6, 7
    pX, pK, pV, pWQ, pWO, pBX, pWG, pWU = 8, 10, 12, 14, 16, 18, 20, 22
    pWD, pGW, pOUT, pWS = 24, 26, 28, 30
    sU, sTMO, sT0, sT1, sT2, sT3 = 60, 61, 62, 63, 64, 65
    sCW, sB, sPG = 66, 67, 68
    STAMP0 = 72
    role = ["entry"]
    def stamp(idx):
        sel = lset if role[0] == "loader" else cset
        if stamps and (sel is None or idx in sel):
            a(f"s_memrealtime s[{STAMP0+2*idx}:{STAMP0+2*idx+1}]")
            a("s_waitcnt lgkmcnt(0)")
    def dump_stamps(vtmp, vaddr, dbg_slots=None):
        if not stamps:
            return
        if dbgstamps:
            lab = a.newlabel("L_nodbg")
            a(f"""
            s_cmp_lg_u32 s2, 0
            s_cbranch_scc1 {lab}
            s_cmp_gt_u32 s{sWAVE}, 1
            s_cbranch_scc1 {lab}
            s_load_dwordx2 s[{sT2}:{sT3}], s[0:1], 88
            s_waitcnt lgkmcnt(0)
            s_mov_b64 exec, 1
            v_mov_b32 v{vaddr}, 0
            """)
            for slot, idx in dbg_slots:
                a(f"s_sub_u32 s{sT0}, s{STAMP0+2*idx}, s{STAMP0}")
                a(f"v_mov_b32 v{vtmp}, s{sT0}")
                a(f"global_store_dword v{vaddr}, v{vtmp}, s[{sT2}:{sT3}] offset:{4*slot}")
                a("s_nop 1")
            a("s_waitcnt vmcnt(0)")
            a.label(lab)
            return
        a(f"""
        s_mov_b64 exec, 1
        s_lshl_b32 s{sT0}, s2, 3
        s_add_u32 s{sT0}, s{sT0}, s{sWAVE}
        s_lshl_b32 s{sT0}, s{sT0}, 6
        s_add_u32 s{sT0}, s{sT0}, {WS_STAMP}
        s_add_u32 s{sT2}, s{pWS}, s{sT0}
        s_addc_u32 s{sT3}, s{pWS+1}, 0
        v_mov_b32 v{vaddr}, 0
        """)
        for i in range(14):
            a(f"v_mov_b32 v{vtmp}, s{STAMP0+2*i}")
            a(f"global_store_dword v{vaddr}, v{vtmp}, s[{sT2}:{sT3}] offset:{4*i}")
            a("s_nop 1")
        for i, r in ((14, 70), (15, 71)):
            a(f"v_mov_b32 v{vtmp}, s{r}")
            a(f"global_store_dword v{vaddr}, v{vtmp}, s[{sT2}:{sT3}] offset:{4*i}")
            a("s_nop 1")
        a("s_waitcnt vmcnt(0)")

    vRow4, vSl, vCb = 1, 2, 3
    vWQ = [8, 9]; vV = [10, 11]; vK = [12, 13, 14, 15]; vO = [16, 17]; vG = [18, 19]
    rK, rV, rWQ, rWO, rWG, rWU, rWD = 32, 36, 40, 44, 48, 52, 56
    sOff, sKV, sCnt, sN, sLast = 66, 67, 68, 69, 59 + 41
    a(f"""
    s_cmp_ge_u32 s2, 256
    s_cbranch_scc1 L_exit
    s_load_dwordx16 s[8:23], s[0:1], 0
    s_load_dwordx4 s[24:27], s[0:1], 64
    s_load_dwordx2 s[28:29], s[0:1], 80
    s_load_dwordx2 s[30:31], s[0:1], 96
    """)
    if stamps:
        for i in range(14):
            a(f"s_mov_b32 s{STAMP0+2*i}, 0")
        a("s_mov_b32 s70, 0")
        a("s_mov_b32 s71, 0")
        a(f"s_memrealtime s[{STAMP0}:{STAMP0+1}]")
    a(f"""
    v_lshrrev_b32 v1, 6, v0
    v_and_b32 v0, 63, v0
    s_and_b32 s{sT0}, s2, 7
    s_lshr_b32 s{sT1}, s2, 3
    v_readfirstlane_b32 s{sWAVE}, v1
    s_lshr_b32 s{sH}, s{sT1}, 3
    s_lshl_b32 s{sT0}, s{sT0}, 2
    s_add_u32 s{sH}, s{sH}, s{sT0}
    s_and_b32 s{sJ}, s{sT1}, 7
    {"" if xcdmap else f"s_lshr_b32 s{sH}, s2, 3"}
    {"" if xcdmap else f"s_and_b32 s{sJ}, s2, 7"}
    v_mov_b32 v4, 0
    v_mov_b32 v5, 0
    v_mov_b32 v6, 0
    v_mov_b32 v7, 0
    v_mov_b32 v26, {MISC}
    s_mov_b64 exec, 1
    ds_write_b128 v26, v[4:7]
    s_mov_b64 exec, -1
    v_lshrrev_b32 v{vRow4}, 4, v0
    v_and_b32 v{vSl}, 15, v0
    v_lshrrev_b32 v{vCb}, 1, v{vSl}
    v_xor_b32 v{vCb}, v{vCb}, v{vRow4}
    v_and_b32 v5, 1, v0
    v_lshlrev_b32 v5, 4, v5
    v_lshl_or_b32 v6, v{vCb}, 5, v5
    v_xor_b32 v7, 0x80, v6
    v_lshl_add_u32 v{vWQ[0]}, v{vRow4}, 13, v6
    v_lshl_add_u32 v{vWQ[1]}, v{vRow4}, 13, v7
    s_lshl_b32 s{sOff}, s{sJ}, 19
    s_lshl_b32 s{sT0}, s{sH}, 8
    s_add_u32 s{sOff}, s{sOff}, s{sT0}
    s_mov_b32 s{sN}, {1 - W}
    s_mov_b32 s{sLast}, 0
    s_mov_b32 s{sTMO}, 1000000
    s_mov_b32 s{rWQ+2}, {512*4096*2}
    s_mov_b32 s{rWQ+3}, 0x20000
    s_cmp_lg_u32 s{sWAVE}, 0
    s_waitcnt lgkmcnt(0)
    s_barrier
    s_cbranch_scc1 L_compute
    s_mov_b32 s{rWQ}, s{pWQ}
    s_mov_b32 s{rWQ+1}, s{pWQ+1}
    s_setprio 3
    """)
    role[0] = "loader"
    stamp(1)
    NL = 182
    def srd(r, p, size):
        a(f"""
        s_mov_b32 s{r}, s{p}
        s_mov_b32 s{r+1}, s{p+1}
        s_mov_b32 s{r+2}, {size}
        s_mov_b32 s{r+3}, 0x20000
        """)
    def stream(name, cnt, unr, srdr, voffs, lds0, step, fl, pre=None, wait=None):
        Wc = wait or W
        a(f"s_mov_b32 m0, {lds0}")
        if pre:
            pre()
        a(f"s_mov_b32 s{sCnt}, {cnt // unr}")
        a.label(f"L_ld_{name}")
        for i in range(unr):
            a(f"buffer_load_dwordx4 v{voffs[i]}, s[{srdr}:{srdr+3}], s{sOff} offen {fl} lds")
            a(f"s_add_u32 m0, m0, 1024")
            a(f"s_add_u32 s{sOff}, s{sOff}, {step}")
            a(f"s_waitcnt vmcnt({Wc-1})")
        a(f"""
        s_add_i32 s{sN}, s{sN}, {unr}
        s_max_i32 s{sLast}, s{sN}, s{sLast}
        v_mov_b32 v27, s{sLast}
        s_mov_b64 exec, 1
        ds_write_b32 v26, v27 offset:{PROG}
        s_mov_b64 exec, -1
        s_sub_u32 s{sCnt}, s{sCnt}, 1
        s_cmp_lg_u32 s{sCnt}, 0
        s_cbranch_scc1 L_ld_{name}
        """)
    stream("wq", 16, 4, rWQ, [vWQ[0], vWQ[0], vWQ[1], vWQ[1]], WQ_OFF, 4*8192, wflags)
    stamp(2)
    a(f"""
    v_lshl_add_u32 v{vV[0]}, v{vRow4}, 8, v6
    v_lshl_add_u32 v{vV[1]}, v{vRow4}, 8, v7
    v_lshrrev_b32 v20, 3, v0
    v_and_b32 v21, 7, v0
    v_lshrrev_b32 v21, 1, v21
    v_and_b32 v22, 1, v{vRow4}
    v_xor_b32 v21, v21, v22
    v_mul_u32_u24 v23, 2752, v20
    v_mov_b32 v24, 0x7fff0000
    s_mul_i32 s{sU}, s{sH}, 43
    s_lshr_b32 s{sU}, s{sU}, 3
    """)
    for var in range(2):
        a(f"""
        v_xor_b32 v22, {2*var}, v21
        v_lshl_or_b32 v25, v22, 5, v5
        v_cmp_eq_u32 vcc, 3, v22
        v_lshl_add_u32 v{vO[var]}, v20, 10, v25
        v_add_u32 v{vG[var]}, v23, v25
        v_cndmask_b32 v{vG[var]}, v{vG[var]}, v24, vcc
        """)
    srd(rWG, pWG, 512*1376*2); srd(rWU, pWU, 512*1376*2)
    def pre_g():
        a(f"s_mul_i32 s{sOff}, s{sJ}, {64*2752}")
        a(f"s_lshl_b32 s{sT0}, s{sU}, 4")
        a(f"s_add_u32 s{sOff}, s{sOff}, s{sT0}")
    stream("wg", 8, 4, rWG, [vG[0], vG[1], vG[0], vG[1]], WG_OFF, 8*2752, gflags, pre_g)
    stream("wu", 8, 4, rWU, [vG[0], vG[1], vG[0], vG[1]], WU_OFF, 8*2752, gflags, pre_g)
    a(f"v_xor_b32 v6, v{vSl}, v{vRow4}")
    for v in range(4):
        a(f"v_xor_b32 v7, {4*v}, v6")
        a(f"v_lshlrev_b32 v7, 4, v7")
        a(f"v_lshl_add_u32 v{vK[v]}, v{vRow4}, 8, v7")
    a(f"""
    s_lshr_b32 s{sT0}, s{sJ}, 2
    s_lshl_b32 s{sT0}, s{sT0}, 5
    s_add_u32 s{sT0}, s{sT0}, s{sH}
    s_lshl_b32 s{sKV}, s{sT0}, 20
    s_and_b32 s{sT0}, s{sJ}, 3
    s_lshl_b32 s{sT0}, s{sT0}, 16
    s_add_u32 s{sKV}, s{sKV}, s{sT0}
    s_add_u32 s{sKV}, s{sKV}, 0xC0000
    """)
    srd(rK, pK, 1 << 26); srd(rV, pV, 1 << 26)
    stream("k", 64, 4, rK, vK, K_OFF, 1024, kvflags, lambda: a(f"s_mov_b32 s{sOff}, s{sKV}"))
    stamp(3)
    srd(rWO, pWO, 4096*512*2); srd(rWD, pWD, 1376*512*2)
    a(f"""
    L_ld_s1:
    ds_read_b32 v27, v26 offset:{S1DONE}
    s_waitcnt lgkmcnt(0)
    v_readfirstlane_b32 s{sT0}, v27
    s_cmp_ge_u32 s{sT0}, 4
    s_cbranch_scc1 L_ld_s1_ok
    s_sub_u32 s{sTMO}, s{sTMO}, 1
    s_cbranch_scc1 L_exit
    s_sleep 1
    s_branch L_ld_s1
    L_ld_s1_ok:
    """)
    if vsplit:
        stream("v0", vsplit, 4, rV, [vV[0], vV[0], vV[1], vV[1]], V_OFF, 1024, kvflags, lambda: a(f"s_mov_b32 s{sOff}, s{sKV}"))
    a(f"s_add_i32 s{sN}, s{sN}, {W - W2}")
    if vsplit < 64:
        stream("v", 64 - vsplit, 4, rV, [vV[0], vV[0], vV[1], vV[1]], V_OFF + vsplit*1024, 1024, kvflags,
               (lambda: a(f"s_mov_b32 s{sOff}, s{sKV}")) if vsplit == 0 else (lambda: a("s_nop 0")), wait=W2)
    stamp(4)
    def pre_o():
        a(f"s_lshl_b32 s{sOff}, s{sH}, 17")
        a(f"s_lshl_b32 s{sT0}, s{sJ}, 7")
        a(f"s_add_u32 s{sOff}, s{sOff}, s{sT0}")
    def pre_d():
        a(f"s_lshl_b32 s{sOff}, s{sU}, 13")
        a(f"s_lshl_b32 s{sT0}, s{sJ}, 7")
        a(f"s_add_u32 s{sOff}, s{sOff}, s{sT0}")
    stream("wo", 16, 4, rWO, [vO[0], vO[1], vO[0], vO[1]], S2_OFF, 8192, wflags, pre_o, wait=W2)
    stream("wd", 6, 2, rWD, [vO[0], vO[1]], S2_OFF + 16*1024, 8192, wflags, pre_d, wait=W2)
    landed = NL + 1 - W2
    for m in [x for x in (128, 136, 144, 152, 160, 168, 176, NL) if x > landed]:
        a(f"s_waitcnt vmcnt({NL - m})")
        a(f"v_mov_b32 v27, {m}")
        a("s_mov_b64 exec, 1")
        a(f"ds_write_b32 v26, v27 offset:{PROG}")
        a("s_mov_b64 exec, -1")
        if m == 160: stamp(5)
    stamp(6)
    a("s_waitcnt lgkmcnt(0)")
    dump_stamps(27, 28, [(0, 1), (1, 2), (2, 3), (3, 4), (4, 5), (5, 6)])
    a("s_endpgm")

    role[0] = "compute"
    a.label("L_compute")
    R = Regs(1, 256)
    vL = R.alloc(); vN = R.alloc(); vKG = R.alloc(); vR4 = R.alloc(); vC = R.alloc()
    vFF = R.alloc(); vMisc = R.alloc(); vOne = R.alloc()
    vt0 = R.alloc(8, 4); vt = [vt0 + i for i in range(8)]
    vx0 = R.alloc(4, 4); vxt = [vx0 + i for i in range(4)]
    vTR = [R.alloc(), R.alloc()]
    vTRG = R.alloc(); vTRS = R.alloc(); vTR16 = R.alloc()
    vKA = [R.alloc() for _ in range(4)]
    vXB = [R.alloc(4, 4), R.alloc(4, 4)]
    vJunk = R.alloc(4, 4)
    vGx = R.alloc(12, 4)
    rWS = 32
    sM1, sM3, sM4 = 36, 37, 38
    def spin_tail(label, tight=False):
        a(f"""
        s_sub_u32 s{sTMO}, s{sTMO}, 1
        s_cbranch_scc1 L_exit
        {"" if tight else f"s_sleep {sleep}"}
        s_branch {label}
        """)
    def wait_lds(off, n, label):
        a(f"""
        {label}:
        ds_read_b32 v{vt[7]}, v{vMisc} offset:{off}
        s_waitcnt lgkmcnt(0)
        v_readfirstlane_b32 s{sT0}, v{vt[7]}
        s_cmp_ge_u32 s{sT0}, {n}
        s_cbranch_scc1 {label}_ok
        """)
        spin_tail(label)
        a.label(f"{label}_ok")
    def wait_prog(n, label, tight=False):
        a(f"""
        s_cmp_ge_u32 s{sPG}, {n}
        s_cbranch_scc1 {label}_ok
        {label}:
        ds_read_b32 v{vt[7]}, v{vMisc} offset:{PROG}
        s_waitcnt lgkmcnt(0)
        v_readfirstlane_b32 s{sPG}, v{vt[7]}
        s_cmp_ge_u32 s{sPG}, {n}
        s_cbranch_scc1 {label}_ok
        """)
        spin_tail(label, tight)
        a.label(f"{label}_ok")
    def signal(off):
        a(f"""
        s_mov_b64 exec, 1
        ds_add_u32 v{vMisc}, v{vOne} offset:{off}
        s_mov_b64 exec, -1
        """)
    def tag(v):
        a(f"v_bfi_b32 v{v}, v{vFF}, s{sTAG}, v{v}")
    def exec_n_lt2():
        a("s_mov_b32 exec_lo, 0x00030003")
        a("s_mov_b32 exec_hi, 0x00030003")
    def xrow(regs, op="v_add_f32"):
        for ins in ("v_permlane16_swap_b32", "v_permlane32_swap_b32"):
            for k0 in range(0, len(regs), 4):
                grp = regs[k0:k0+4]
                for r, t in zip(grp, vxt):
                    a(f"v_mov_b32 v{t}, v{r}")
                if len(grp) < 2:
                    a("s_nop 1")
                elif len(grp) < 3:
                    a("s_nop 0")
                for r, t in zip(grp, vxt):
                    a(f"{ins} v{t}, v{r}")
                for r, t in zip(grp, vxt):
                    a(f"{op} v{r}, v{t}, v{r}")
    vBad = R.alloc()
    def check_tags(regs):
        for r in regs:
            a(f"v_xor_b32 v{r}, s{sTAG}, v{r}")
        a(f"v_or_b32 v{vBad}, v{regs[0]}, v{regs[1]}")
        for k in range(2, len(regs), 2):
            a(f"v_or3_b32 v{vBad}, v{vBad}, v{regs[k]}, v{regs[k+1]}")
        a(f"v_and_b32 v{vBad}, v{vFF}, v{vBad}")
        a(f"v_cmp_ne_u32 vcc, 0, v{vBad}")
    def retry(label_again, label_ok):
        a(f"""
        s_cbranch_vccz {label_ok}
        s_sub_u32 s{sTMO}, s{sTMO}, 1
        s_cbranch_scc1 L_exit
        s_branch {label_again}
        {label_ok}:
        """)

    a(f"""
    v_mov_b32 v{vL}, v0
    s_sub_u32 s{sCW}, s{sWAVE}, 1
    s_lshr_b32 s{sB}, s{sJ}, 2
    s_load_dword s{sE1}, s[{pWS}:{pWS+1}], 0
    v_and_b32 v{vN}, 15, v{vL}
    v_lshrrev_b32 v{vKG}, 4, v{vL}
    v_and_b32 v{vt[0]}, 1, v{vN}
    v_lshlrev_b32 v{vt[0]}, 10, v{vt[0]}
    v_lshl_add_u32 v{vt[0]}, v{vKG}, 4, v{vt[0]}
    s_lshl_b32 s{sT0}, s{sJ}, 7
    v_add_u32 v{vt[0]}, s{sT0}, v{vt[0]}
    v_lshlrev_b32 v{vt[1]}, 4, v{vL}
    global_load_dwordx4 {vr(vXB[0],4)}, v{vt[0]}, s[{pX}:{pX+1}]
    global_load_dwordx4 {vr(vXB[1],4)}, v{vt[0]}, s[{pX}:{pX+1}] offset:64
    s_mov_b32 s{sPG}, 0
    s_mul_i32 s{sU}, s{sH}, 43
    s_lshr_b32 s{sU}, s{sU}, 3
    v_lshrrev_b32 v{vR4}, 2, v{vN}
    v_and_b32 v{vC}, 3, v{vN}
    v_mov_b32 v{vFF}, 0xff
    v_mov_b32 v{vMisc}, {MISC}
    v_mov_b32 v{vOne}, 1
    s_cmp_lg_u32 s{sCW}, 3
    s_cbranch_scc1 L_nopf
    global_load_dwordx4 {vr(vGx,4)}, v{vt[1]}, s[{pX}:{pX+1}]
    global_load_dwordx4 {vr(vGx+4,4)}, v{vt[1]}, s[{pX}:{pX+1}] offset:1024
    global_load_dwordx4 {vr(vGx+8,4)}, v{vt[1]}, s[{pGW}:{pGW+1}]
    """)
    if prefetch_code:
        a(f"""
        s_getpc_b64 s[{sT2}:{sT3}]
        L_pc:
        s_lshr_b32 s{sT0}, s2, 3
        s_and_b32 s{sT0}, s{sT0}, 15
        s_lshl_b32 s{sT0}, s{sT0}, 10
        s_sub_u32 s{sT2}, s{sT2}, L_pc-{KN}
        s_subb_u32 s{sT3}, s{sT3}, 0
        s_min_u32 s{sT0}, s{sT0}, L_codeend-{KN}-1024
        s_add_u32 s{sT2}, s{sT2}, s{sT0}
        s_addc_u32 s{sT3}, s{sT3}, 0
        global_load_dwordx4 {vr(vJunk,4)}, v{vt[1]}, s[{sT2}:{sT3}]
        """)
    a.label("L_nopf")
    a(f"""
    s_mov_b32 s{rWS}, s{pWS}
    s_mov_b32 s{rWS+1}, s{pWS+1}
    s_mov_b32 s{rWS+2}, {WS_SIZE}
    s_mov_b32 s{rWS+3}, 0x20000
    s_lshl_b32 s{sT0}, s{sH}, 3
    s_add_u32 s{sT0}, s{sT0}, s{sJ}
    s_mul_i32 s{sM1}, s{sT0}, 1792
    s_add_u32 s{sM1}, s{sM1}, {WS_M1}
    s_mul_i32 s{sM3}, s{sT0}, 640
    s_add_u32 s{sM3}, s{sM3}, {WS_M3}
    s_lshl_b32 s{sM4}, s{sJ}, 14
    s_lshl_b32 s{sT0}, s{sH}, 9
    s_add_u32 s{sM4}, s{sM4}, s{sT0}
    s_add_u32 s{sM4}, s{sM4}, {WS_M4}
    v_lshl_add_u32 v{vt[0]}, v{vKG}, 3, v{vR4}          ; 8kg + r4
    v_and_b32 v{vt[1]}, 1, v{vKG}
    v_lshl_or_b32 v{vt[2]}, v{vt[1]}, 2, v{vR4}         ; f = r4 | (kg&1)<<2
    v_lshlrev_b32 v{vt[3]}, 8, v{vt[0]}
    v_lshl_add_u32 v{vt[3]}, v{vC}, 3, v{vt[3]}
    v_add_u32 v{vt[3]}, {V_OFF}, v{vt[3]}
    s_lshl_b32 s{sT0}, s{sCW}, 1
    v_xor_b32 v{vTR[0]}, s{sT0}, v{vt[2]}
    v_lshl_add_u32 v{vTR[0]}, v{vTR[0]}, 5, v{vt[3]}
    s_add_u32 s{sT0}, s{sT0}, 1
    v_xor_b32 v{vTR[1]}, s{sT0}, v{vt[2]}
    v_lshl_add_u32 v{vTR[1]}, v{vTR[1]}, 5, v{vt[3]}
    v_lshrrev_b32 v{vt[2]}, 1, v{vR4}
    v_lshl_or_b32 v{vt[3]}, v{vt[1]}, 1, v{vt[2]}
    v_xor_b32 v{vt[3]}, s{sCW}, v{vt[3]}
    v_lshlrev_b32 v{vt[3]}, 5, v{vt[3]}
    v_lshl_add_u32 v{vt[3]}, v{vt[0]}, 7, v{vt[3]}
    v_lshl_add_u32 v{vt[3]}, v{vC}, 3, v{vt[3]}
    v_add_u32 v{vTRG}, {WG_OFF}, v{vt[3]}
    v_add_u32 v{vTRS}, {S2_OFF}, v{vt[3]}
    v_lshrrev_b32 v{vt[3]}, 1, v{vKG}
    v_lshl_or_b32 v{vt[3]}, v{vt[3]}, 1, v{vt[2]}
    v_xor_b32 v{vt[3]}, s{sCW}, v{vt[3]}
    v_lshlrev_b32 v{vt[3]}, 5, v{vt[3]}
    v_lshl_add_u32 v{vt[0]}, v{vKG}, 2, v{vR4}
    v_lshl_add_u32 v{vt[3]}, v{vt[0]}, 7, v{vt[3]}
    v_lshl_add_u32 v{vt[3]}, v{vC}, 3, v{vt[3]}
    v_add_u32 v{vTR16}, {S2_OFF + 160*128}, v{vt[3]}
    s_lshl_b32 s{sT0}, s{sCW}, 14
    v_lshlrev_b32 v{vt[0]}, 8, v{vN}
    v_add_u32 v{vt[0]}, s{sT0}, v{vt[0]}
    v_xor_b32 v{vt[1]}, v{vKG}, v{vN}
    """)
    for t in range(4):
        a(f"v_xor_b32 v{vt[2]}, {4*t}, v{vt[1]}")
        a(f"v_lshl_add_u32 v{vKA[t]}, v{vt[2]}, 4, v{vt[0]}")
    stamp(1)

    vA = R.alloc(16, 4)
    vAcc = R.alloc(8, 4)
    vM1 = R.alloc()
    a(f"""
    v_mul_u32_u24 v{vM1}, 896, v{vN}
    v_lshl_add_u32 v{vM1}, v{vKG}, 4, v{vM1}
    """)
    wait_prog(16, "L_w16")
    stamp(2)
    for ti in range(2):
        for u in range(2):
            f = vA + (ti*2 + u) * 4
            a(f"ds_read_b64_tr_b16 {vr(f,2)}, v{vTR[ti]} offset:{u*8192}")
            a(f"ds_read_b64_tr_b16 {vr(f+2,2)}, v{vTR[ti]} offset:{u*8192+1024}")
    a(f"""
    s_add_u32 s{sE1}, s{sE1}, 1
    s_and_b32 s{sTAG}, s{sE1}, 0xff
    s_waitcnt vmcnt(0) lgkmcnt(0)
    """)
    for u in range(2):
        for ti in range(2):
            f = vA + (ti*2 + u) * 4
            c = "0" if u == 0 else vr(vAcc + 4*ti, 4)
            a(f"v_mfma_f32_16x16x32_bf16 {vr(vAcc+4*ti,4)}, {vr(f,4)}, {vr(vXB[u],4)}, {c}")
    a(f"""
    s_lshl_b32 s{sT0}, s{sCW}, 7
    s_add_u32 s{sT0}, s{sT0}, s{sM1}
    s_nop 6
    """)
    for i in range(8):
        tag(vAcc + i)
    exec_n_lt2()
    a(f"buffer_store_dwordx4 {vr(vAcc,4)}, v{vM1}, s[{rWS}:{rWS+3}], s{sT0} offen sc1")
    a(f"buffer_store_dwordx4 {vr(vAcc+4,4)}, v{vM1}, s[{rWS}:{rWS+3}], s{sT0} offen offset:64 sc1")
    a("s_mov_b64 exec, -1")
    stamp(3)
    a(f"""
    s_cmp_eq_u32 s{sCW}, 3
    s_cbranch_scc1 L_gate
    """)
    wait_prog(32, "L_w32")
    vAcc2 = R.alloc(8, 4)
    for mi_, off in enumerate((0, 8192)):
        for u in range(2):
            f = vA + (mi_*2 + u) * 4
            a(f"ds_read_b64_tr_b16 {vr(f,2)}, v{vTRG} offset:{off + u*4096}")
            a(f"ds_read_b64_tr_b16 {vr(f+2,2)}, v{vTRG} offset:{off + u*4096 + 512}")
    a("s_waitcnt lgkmcnt(0)")
    for u in range(2):
        for mi_ in range(2):
            f = vA + (mi_*2 + u) * 4
            c = "0" if u == 0 else vr(vAcc2 + 4*mi_, 4)
            a(f"v_mfma_f32_16x16x32_bf16 {vr(vAcc2+4*mi_,4)}, {vr(f,4)}, {vr(vXB[u],4)}, {c}")
    signal(S1DONE)
    a(f"""
    s_lshl_b32 s{sT0}, s{sCW}, 6
    s_add_u32 s{sT0}, s{sT0}, s{sM1}
    s_nop 5
    """)
    for i in range(8):
        tag(vAcc2 + i)
    exec_n_lt2()
    a(f"buffer_store_dwordx4 {vr(vAcc2,4)}, v{vM1}, s[{rWS}:{rWS+3}], s{sT0} offen offset:512 sc1")
    a(f"buffer_store_dwordx4 {vr(vAcc2+4,4)}, v{vM1}, s[{rWS}:{rWS+3}], s{sT0} offen offset:704 sc1")
    a("s_mov_b64 exec, -1")
    a("s_branch L_p3")
    a.label("L_gate")
    signal(S1DONE)
    gx0, gx1, gw = vGx, vGx + 4, vGx + 8
    z = [vt[2], vt[3]]
    a(f"v_mov_b32 v{z[0]}, 0")
    a(f"v_mov_b32 v{z[1]}, 0")
    for i in range(4):
        a(f"v_lshlrev_b32 v{vt[4]}, 16, v{gw+i}")
        a(f"v_and_b32 v{vt[5]}, 0xffff0000, v{gw+i}")
        for bi, gx in enumerate((gx0, gx1)):
            a(f"v_lshlrev_b32 v{vt[6]}, 16, v{gx+i}")
            a(f"v_fmac_f32 v{z[bi]}, v{vt[6]}, v{vt[4]}")
            a(f"v_and_b32 v{vt[6]}, 0xffff0000, v{gx+i}")
            a(f"v_fmac_f32 v{z[bi]}, v{vt[6]}, v{vt[5]}")
    for rot in (8, 4, 2, 1):
        a("s_nop 1")
        for bi in range(2):
            a(f"v_add_f32_dpp v{z[bi]}, v{z[bi]}, v{z[bi]} row_ror:{rot} row_mask:0xf bank_mask:0xf")
    xrow(z)
    a(f"""
    v_mul_f32 v{z[0]}, {hex(f2u(-1.4426950408889634))}, v{z[0]}
    v_mul_f32 v{z[1]}, {hex(f2u(-1.4426950408889634))}, v{z[1]}
    v_exp_f32 v{z[0]}, v{z[0]}
    v_exp_f32 v{z[1]}, v{z[1]}
    s_nop 0
    v_add_f32 v{z[0]}, 1.0, v{z[0]}
    v_add_f32 v{z[1]}, 1.0, v{z[1]}
    v_rcp_f32 v{z[0]}, v{z[0]}
    v_rcp_f32 v{z[1]}, v{z[1]}
    s_nop 0
    s_mov_b64 exec, 1
    ds_write_b64 v{vMisc}, v[{z[0]}:{z[1]}] offset:{GV}
    s_mov_b64 exec, -1
    """)
    a.label("L_p3")
    stamp(4)
    R.release(vGx, 12)
    vG4 = R.alloc(16, 4)
    a(f"""
    s_cmp_lg_u32 s{sCW}, 0
    s_cbranch_scc1 L_waitq
    s_mul_i32 s{sT0}, s{sH}, {8*1792}
    s_mul_i32 s{sT1}, s{sB}, 896
    s_add_u32 s{sT0}, s{sT0}, s{sT1}
    s_add_u32 s{sT0}, s{sT0}, {WS_M1}
    s_add_u32 s40, s{pWS}, s{sT0}
    s_addc_u32 s41, s{pWS+1}, 0
    v_lshrrev_b32 v{vt[1]}, 5, v{vL}
    v_mul_u32_u24 v{vt[1]}, 1792, v{vt[1]}
    v_and_b32 v{vt[2]}, 31, v{vL}
    v_lshl_add_u32 v{vt[1]}, v{vt[2]}, 4, v{vt[1]}
    L_hint1:
    """)
    for jj in range(8):
        a(f"s_load_dwordx2 s[{44+2*jj}:{45+2*jj}], s[40:41], {jj*1792 + 504} glc")
    a("s_waitcnt lgkmcnt(0)")
    a(f"s_xor_b32 s42, s44, s{sTAG}")
    for k in range(45, 60):
        a(f"s_xor_b32 s43, s{k}, s{sTAG}")
        a(f"s_or_b32 s42, s42, s43")
    a(f"""
    s_and_b32 s42, s42, 0xff
    s_cbranch_scc0 L_hint1_ok
    s_sub_u32 s{sTMO}, s{sTMO}, 1
    s_cbranch_scc1 L_exit
    s_branch L_hint1
    L_hint1_ok:
    """)
    stamp(5)
    a(f"""
    L_gq:
    s_mov_b32 s{sT1}, s{sT0}
    """)
    for i in range(4):
        a(f"buffer_load_dwordx4 {vr(vG4+4*i,4)}, v{vt[1]}, s[{rWS}:{rWS+3}], s{sT1} offen sc1")
        if i < 3:
            a(f"s_add_u32 s{sT1}, s{sT1}, 3584")
    a("s_waitcnt vmcnt(0)")
    check_tags([vG4 + i for i in range(16)])
    retry("L_gq", "L_gq_ok")
    for e in range(4):
        a(f"v_add_f32 v{vG4+e}, v{vG4+e}, v{vG4+4+e}")
        a(f"v_add_f32 v{vG4+8+e}, v{vG4+8+e}, v{vG4+12+e}")
    for e in range(4):
        a(f"v_add_f32 v{vG4+e}, v{vG4+e}, v{vG4+8+e}")
    for e in range(4):
        a(f"v_mov_b32 v{vG4+4+e}, v{vG4+e}")
    for e in range(4):
        a(f"v_permlane32_swap_b32 v{vG4+4+e}, v{vG4+e}")
    for e in range(4):
        a(f"v_add_f32 v{vG4+e}, v{vG4+e}, v{vG4+4+e}")
    a(f"""
    v_cvt_pk_bf16_f32 v{vG4+4}, v{vG4}, v{vG4+1}
    v_cvt_pk_bf16_f32 v{vG4+5}, v{vG4+2}, v{vG4+3}
    v_lshl_add_u32 v{vt[2]}, v{vt[2]}, 3, v{vMisc}
    s_mov_b32 exec_hi, 0
    ds_write_b64 v{vt[2]}, {vr(vG4+4,2)} offset:{QB}
    s_mov_b64 exec, 1
    ds_write_b32 v{vMisc}, v{vOne} offset:{QRDY}
    s_mov_b64 exec, -1
    """)
    a.label("L_waitq")
    wait_lds(QRDY, 1, "L_wq")
    stamp(6)
    vFoff = R.alloc()
    vF4 = R.alloc(16, 4)
    a(f"""
    v_mul_u32_u24 v{vFoff}, 1792, v{vKG}
    v_lshl_add_u32 v{vFoff}, v{vN}, 4, v{vFoff}
    s_sub_u32 s{sT0}, s{sCW}, 1
    s_and_b32 s{sT1}, s{sT0}, 1
    s_mul_i32 s{sT1}, s{sT1}, 896
    s_mul_i32 s39, s{sH}, {8*1792}
    s_add_u32 s39, s39, s{sT1}
    s_add_u32 s39, s39, {WS_M1 + 512}
    s_cmp_gt_u32 s{sT0}, 1
    s_cbranch_scc1 L_noffn1
    """)
    def ffn_loads():
        a(f"""
        v_cmp_gt_u32 vcc, 12, v{vN}
        s_and_b64 exec, exec, vcc
        s_add_u32 s{sT1}, s39, {4*1792}
        buffer_load_dwordx4 {vr(vF4,4)}, v{vFoff}, s[{rWS}:{rWS+3}], s39 offen sc1
        buffer_load_dwordx4 {vr(vF4+4,4)}, v{vFoff}, s[{rWS}:{rWS+3}], s{sT1} offen sc1
        buffer_load_dwordx4 {vr(vF4+8,4)}, v{vFoff}, s[{rWS}:{rWS+3}], s39 offen offset:192 sc1
        buffer_load_dwordx4 {vr(vF4+12,4)}, v{vFoff}, s[{rWS}:{rWS+3}], s{sT1} offen offset:192 sc1
        s_mov_b64 exec, -1
        """)
    ffn_loads()
    a.label("L_noffn1")
    vQ = R.alloc(16, 4)
    vKf = R.alloc(64, 4)
    vS = R.alloc(16, 4)
    a(f"""
    v_lshlrev_b32 v{vt[0]}, 4, v{vKG}
    v_add_u32 v{vt[0]}, v{vMisc}, v{vt[0]}
    """)
    for t in range(4):
        a(f"ds_read_b128 {vr(vQ+4*t,4)}, v{vt[0]} offset:{QB + 64*t}")
    a(f"s_lshl_b32 s{sT1}, s{sCW}, 4")
    a(f"s_add_u32 s{sT1}, s{sT1}, 48")
    wait_prog(f"s{sT1}", "L_wk")
    for T in range(4):
        for t in range(4):
            a(f"ds_read_b128 {vr(vKf + 16*T + 4*t, 4)}, v{vKA[t]} offset:{T*4096}")
    for T in range(4):
        a(f"s_waitcnt lgkmcnt({4*(3-T)})")
        for t in range(4):
            c = "0" if t == 0 else vr(vS + 4*T, 4)
            a(f"v_mfma_f32_16x16x32_bf16 {vr(vS+4*T,4)}, {vr(vKf+16*T+4*t,4)}, {vr(vQ+4*t,4)}, {c}")
    vSt = R.alloc(2, 2)
    vMc, vSum = vSt, vSt + 1
    a(f"""
    s_mov_b32 s{sT1}, {hex(f2u(CEXP))}
    s_nop 3
    v_max3_f32 v{vMc}, v{vS}, v{vS+1}, v{vS+2}
    """)
    for k in range(3, 11, 2):
        a(f"v_max3_f32 v{vMc}, v{vMc}, v{vS+k}, v{vS+k+1}")
    a(f"v_max_f32 v{vMc}, v{vMc}, v{vS+11}")
    a("s_nop 1")
    a(f"v_max3_f32 v{vMc}, v{vMc}, v{vS+12}, v{vS+13}")
    a(f"v_max3_f32 v{vMc}, v{vMc}, v{vS+14}, v{vS+15}")
    xrow([vMc], "v_max_f32")
    a(f"""
    v_mul_f32 v{vMc}, s{sT1}, v{vMc}
    v_and_b32 v{vMc}, 0xffffff00, v{vMc}
    """)
    for k in range(16):
        a(f"v_fma_f32 v{vS+k}, v{vS+k}, s{sT1}, -v{vMc}")
    for k in range(16):
        a(f"v_exp_f32 v{vS+k}, v{vS+k}")
    for T in range(4):
        a(f"v_cvt_pk_bf16_f32 v{vKf+2*T}, v{vS+4*T}, v{vS+4*T+1}")
        a(f"v_cvt_pk_bf16_f32 v{vKf+2*T+1}, v{vS+4*T+2}, v{vS+4*T+3}")
    a(f"""
    s_lshl_b32 s{sT0}, s{sCW}, 7
    v_lshl_add_u32 v{vt[1]}, v{vKG}, 3, v{vMisc}
    v_add_u32 v{vt[1]}, s{sT0}, v{vt[1]}
    s_mov_b32 exec_lo, 0x00010001
    s_mov_b32 exec_hi, 0x00010001
    """)
    for T in range(4):
        a(f"ds_write_b64 v{vt[1]}, {vr(vKf+2*T,2)} offset:{PB + 32*T}")
    a("s_mov_b64 exec, -1")
    for k in range(0, 16, 2):
        a(f"v_add_f32 v{vS+k}, v{vS+k}, v{vS+k+1}")
    for k in range(0, 16, 4):
        a(f"v_add_f32 v{vS+k}, v{vS+k}, v{vS+k+2}")
    a(f"v_add_f32 v{vS}, v{vS}, v{vS+4}")
    a(f"v_add_f32 v{vS+8}, v{vS+8}, v{vS+12}")
    a(f"v_add_f32 v{vSum}, v{vS}, v{vS+8}")
    xrow([vSum])
    a(f"""
    s_lshl_b32 s{sT0}, s{sCW}, 3
    v_add_u32 v{vt[0]}, s{sT0}, v{vMisc}
    s_mov_b64 exec, 1
    ds_write_b64 v{vt[0]}, {vr(vSt,2)} offset:{STATW}
    ds_add_u32 v{vMisc}, v{vOne} offset:{BAR}
    s_mov_b64 exec, -1
    """)
    wait_lds(BAR, 4, "L_bar1")
    stamp(7)
    R.release(vKf, 64); R.release(vQ, 16); R.release(vS, 16)
    vP = R.alloc(32, 4)
    vFw = R.alloc(8, 4)
    a(f"""
    v_lshl_add_u32 v{vt[0]}, v{vKG}, 4, v{vMisc}
    ds_read_b128 {vr(vFw,4)}, v{vMisc} offset:{STATW}
    ds_read_b128 {vr(vFw+4,4)}, v{vMisc} offset:{STATW+16}
    """)
    for u in range(8):
        a(f"ds_read_b128 {vr(vP+4*u,4)}, v{vt[0]} offset:{PB + 64*u}")
    a(f"""
    s_waitcnt lgkmcnt(8)
    v_max3_f32 v{vt[4]}, v{vFw}, v{vFw+2}, v{vFw+4}
    v_max_f32 v{vt[4]}, v{vt[4]}, v{vFw+6}
    """)
    for w in range(4):
        a(f"v_sub_f32 v{vFw+2*w}, v{vFw+2*w}, v{vt[4]}")
    for w in range(4):
        a(f"v_exp_f32 v{vFw+2*w}, v{vFw+2*w}")
    a(f"""
    s_cmp_lg_u32 s{sCW}, 0
    s_cbranch_scc1 L_nostat
    v_mul_f32 v{vt[5]}, v{vFw}, v{vFw+1}
    v_fmac_f32 v{vt[5]}, v{vFw+2}, v{vFw+3}
    v_fmac_f32 v{vt[5]}, v{vFw+4}, v{vFw+5}
    v_fmac_f32 v{vt[5]}, v{vFw+6}, v{vFw+7}
    """)
    tag(vt[4])
    tag(vt[5])
    a(f"""
    v_mov_b32 v{vt[6]}, v{vt[4]}
    v_mov_b32 v{vt[7]}, v{vt[5]}
    v_mov_b32 v{vt[0]}, 0
    s_mov_b64 exec, 1
    s_add_u32 s{sT0}, s{sM3}, {WS_M3L - WS_M3}
    buffer_store_dwordx4 v[{vt[4]}:{vt[7]}], v{vt[0]}, s[{rWS}:{rWS+3}], s{sT0} offen offset:512
    buffer_store_dwordx4 v[{vt[4]}:{vt[7]}], v{vt[0]}, s[{rWS}:{rWS+3}], s{sM3} offen offset:512 sc1
    s_mov_b64 exec, -1
    L_nostat:
    """)
    stamp(8)
    vO = R.alloc(32, 4)
    vVf = R.alloc(32, 4)
    def pv_batch(us, need, label):
        wait_prog(need, label, tight=(need >= 152))
        for k, u in enumerate(us):
            f0 = vVf + 8*k
            for ti in range(2):
                a(f"ds_read_b64_tr_b16 {vr(f0+4*ti,2)}, v{vTR[ti]} offset:{u*8192}")
                a(f"ds_read_b64_tr_b16 {vr(f0+4*ti+2,2)}, v{vTR[ti]} offset:{u*8192+1024}")
        for k, u in enumerate(us):
            a(f"s_waitcnt lgkmcnt({4*(len(us)-1-k)})")
            f0 = vVf + 8*k
            w = u >> 1
            for ti in range(2):
                acc = vO + 8*w + 4*ti
                c = "0" if (u & 1) == 0 else vr(acc, 4)
                a(f"v_mfma_f32_16x16x32_bf16 {vr(acc,4)}, {vr(f0+4*ti,4)}, {vr(vP+4*u,4)}, {c}")
    pv_batch([0, 1, 2, 3], 128, "L_wvA")
    vM3 = R.alloc(); vX3 = R.alloc(); vSa = R.alloc(); vSg = R.alloc(2, 2); vSgG = R.alloc(2, 2)
    vWs = R.alloc(4, 4)
    sFB = 47
    def g3_base(delta):
        a(f"""
        s_and_b32 s{sT3}, s{sCW}, 1
        s_lshl_b32 s{sT3}, s{sT3}, 8
        s_add_u32 s41, s40, s{sT3}
        s_add_u32 s41, s41, {delta}
        s_add_u32 s42, s41, 640
        s_add_u32 s43, s41, 1280
        s_add_u32 s44, s41, 1920
        """)
    a(f"""
    v_and_b32 v{vt[0]}, 1, v{vN}
    v_lshlrev_b32 v{vt[1]}, 6, v{vt[0]}
    v_lshl_add_u32 v{vM3}, v{vKG}, 4, v{vt[1]}
    s_lshr_b32 s{sT1}, s{sCW}, 1
    s_lshl_b32 s{sT2}, s{sH}, 3
    s_lshl_b32 s{sT3}, s{sT1}, 2
    s_add_u32 s{sT2}, s{sT2}, s{sT3}
    s_mul_i32 s40, s{sT2}, 640
    s_add_u32 s40, s40, {WS_M3}
    v_lshlrev_b32 v{vX3}, 2, v{vL}
    v_and_b32 v{vSa}, 3, v{vL}
    v_mul_u32_u24 v{vSa}, 640, v{vSa}
    """)
    g3_base(WS_M3L - WS_M3)
    pv_batch([4, 5], 144, "L_wvB")
    for i in range(8):
        a(f"v_mul_f32 v{vO+i}, v{vFw}, v{vO+i}")
    for i in range(8):
        a(f"v_fmac_f32 v{vO+i}, v{vFw+2}, v{vO+8+i}")
    pv_batch([6], 152, "L_wvC")
    for i in range(8):
        a(f"v_fmac_f32 v{vO+i}, v{vFw+4}, v{vO+16+i}")
    a(f"""
    v_cmp_eq_u32 vcc, 1, v{vt[0]}
    s_lshl_b32 s45, s{sCW}, 7
    s_add_u32 s45, s45, s{sM3}
    s_add_u32 s46, s45, {WS_M3L - WS_M3}
    """)
    for e in range(4):
        a(f"v_cndmask_b32 v{vO+e}, v{vO+e}, v{vO+4+e}, vcc")
    pv_batch([7], 160, "L_wvD")
    a("s_nop 7")
    for e in range(4):
        a(f"v_cndmask_b32 v{vO+24+e}, v{vO+24+e}, v{vO+28+e}, vcc")
    for e in range(4):
        a(f"v_fmac_f32 v{vO+e}, v{vFw+6}, v{vO+24+e}")
    for e in range(4):
        tag(vO + e)
    exec_n_lt2()
    a(f"buffer_store_dwordx4 {vr(vO,4)}, v{vM3}, s[{rWS}:{rWS+3}], s46 offen")
    a(f"buffer_store_dwordx4 {vr(vO,4)}, v{vM3}, s[{rWS}:{rWS+3}], s45 offen sc1")
    a("s_mov_b64 exec, -1")
    stamp(9)
    R.release(vP, 32); R.release(vVf, 32); R.release(vFw, 8)
    vG3 = vG4
    vG3b = vG4 + 4
    def g3_loads(dst):
        for s_ in range(4):
            a(f"buffer_load_dword v{dst+s_}, v{vX3}, s[{rWS}:{rWS+3}], s{41+s_} offen sc1")
    a(f"""
    s_sub_u32 s{sT0}, s{sCW}, 1
    s_cmp_gt_u32 s{sT0}, 1
    s_cbranch_scc1 L_noffn2
    s_waitcnt vmcnt(2)
    L_ffnchk:
    v_cmp_gt_u32 vcc, 12, v{vN}
    s_and_b64 exec, exec, vcc
    """)
    check_tags([vF4 + i for i in range(16)])
    a(f"""
    s_mov_b64 exec, -1
    s_cbranch_vccz L_ffn_ok
    s_sub_u32 s{sTMO}, s{sTMO}, 1
    s_cbranch_scc1 L_exit
    """)
    ffn_loads()
    a("s_waitcnt vmcnt(0)")
    a("s_branch L_ffnchk")
    a.label("L_ffn_ok")
    gsum = [vF4 + e for e in range(4)]; usum = [vF4 + 8 + e for e in range(4)]
    for e in range(4):
        a(f"v_add_f32 v{vF4+e}, v{vF4+e}, v{vF4+4+e}")
        a(f"v_add_f32 v{vF4+8+e}, v{vF4+8+e}, v{vF4+12+e}")
    xrow(gsum + usum)
    a(f"""
    s_add_u32 s{sT1}, s{sH}, 1
    s_mul_i32 s{sT1}, s{sT1}, 43
    s_lshr_b32 s{sT1}, s{sT1}, 3
    s_sub_u32 s{sT1}, s{sT1}, s{sU}
    s_lshl_b32 s{sT1}, s{sT1}, 1
    v_cmp_gt_u32 vcc, s{sT1}, v{vN}
    """)
    for e in range(4):
        a(f"v_max_f32 v{gsum[e]}, 0, v{gsum[e]}")
        a(f"v_mul_f32 v{gsum[e]}, v{gsum[e]}, v{usum[e]}")
        a(f"v_cndmask_b32 v{gsum[e]}, 0, v{gsum[e]}, vcc")
    a(f"""
    v_cvt_pk_bf16_f32 v{vF4+4}, v{gsum[0]}, v{gsum[1]}
    v_cvt_pk_bf16_f32 v{vF4+5}, v{gsum[2]}, v{gsum[3]}
    s_lshl_b32 s{sT0}, s{sT0}, 7
    v_lshl_add_u32 v{vt[1]}, v{vN}, 3, v{vMisc}
    v_add_u32 v{vt[1]}, s{sT0}, v{vt[1]}
    s_mov_b64 exec, 0xfff
    ds_write_b64 v{vt[1]}, {vr(vF4+4,2)} offset:{HID}
    s_mov_b64 exec, -1
    L_noffn2:
    """)
    vWf = R.alloc(16, 4); vDf = R.alloc(8, 4); vHf = R.alloc(8, 4)
    vYa = R.alloc(4, 4); vYf = R.alloc(4, 4); vGl = R.alloc()
    vAH = R.alloc(); vAH16 = R.alloc(); vAG = R.alloc(); vAO = R.alloc(); vAW = R.alloc(); vM4 = R.alloc()
    a(f"""
    v_and_b32 v{vt[0]}, 1, v{vN}
    v_lshlrev_b32 v{vt[1]}, 7, v{vt[0]}
    v_add_u32 v{vt[1]}, v{vMisc}, v{vt[1]}
    v_lshl_add_u32 v{vAH}, v{vKG}, 4, v{vt[1]}
    v_lshl_add_u32 v{vAH16}, v{vKG}, 3, v{vt[1]}
    v_lshl_add_u32 v{vAG}, v{vt[0]}, 2, v{vMisc}
    v_lshlrev_b32 v{vt[1]}, 8, v{vt[0]}
    v_lshl_add_u32 v{vM4}, v{vKG}, 4, v{vt[1]}
    v_add_u32 v{vAO}, v{vMisc}, v{vM4}
    s_lshl_b32 s{sT0}, s{sCW}, 7
    v_lshl_add_u32 v{vAW}, v{vL}, 1, v{vMisc}
    v_add_u32 v{vAW}, s{sT0}, v{vAW}
    s_lshl_b32 s48, s{sCW}, 6
    s_add_u32 s48, s48, s{sM4}
    """)
    wait_prog(176, "L_w176", tight=True)
    a(f"s_add_u32 s{sT1}, s40, {WS_M3L - WS_M3}")
    a(f"buffer_load_dwordx2 {vr(vSg,2)}, v{vSa}, s[{rWS}:{rWS+3}], s{sT1} offen offset:512 sc1")
    g3_loads(vG3)
    wait_prog(NL, "L_wall", tight=True)
    for u in range(4):
        a(f"ds_read_b64_tr_b16 {vr(vWf+4*u,2)}, v{vTRS} offset:{u*4096}")
        a(f"ds_read_b64_tr_b16 {vr(vWf+4*u+2,2)}, v{vTRS} offset:{u*4096+512}")
    a(f"""
    ds_read_b64_tr_b16 {vr(vDf,2)}, v{vTRS} offset:{4*4096}
    ds_read_b64_tr_b16 {vr(vDf+2,2)}, v{vTRS} offset:{4*4096+512}
    ds_read_b64_tr_b16 {vr(vDf+4,2)}, v{vTR16}
    """)
    g3_loads(vG3b)
    stamp(11)
    a("s_waitcnt vmcnt(8)")
    check_tags([vSg, vSg + 1])
    a(f"""
    s_mov_b32 s{sFB}, 64
    s_cbranch_vccz L_sg_ok
    L_sg:
    s_add_u32 s{sT1}, s40, {WS_M3L - WS_M3}
    buffer_load_dwordx2 {vr(vSg,2)}, v{vSa}, s[{rWS}:{rWS+3}], s{sT1} offen offset:512 sc1
    buffer_load_dwordx2 {vr(vSgG,2)}, v{vSa}, s[{rWS}:{rWS+3}], s40 offen offset:512 sc1
    {"s_add_u32 s70, s70, 1" if stamps else ""}
    s_waitcnt vmcnt(0)
    """)
    check_tags([vSg, vSg + 1])
    a("s_cbranch_vccz L_sg_ok")
    check_tags([vSgG, vSgG + 1])
    a(f"""
    s_cbranch_vccz L_sg_global
    s_sub_u32 s{sTMO}, s{sTMO}, 1
    s_cbranch_scc1 L_exit
    s_branch L_sg
    L_sg_global:
    v_mov_b32 v{vSg}, v{vSgG}
    v_mov_b32 v{vSg+1}, v{vSgG+1}
    s_mov_b32 s{sFB}, 1
    L_sg_ok:
    v_mov_b32 v{vt[3]}, v{vSg}
    s_nop 1
    v_max_f32_dpp v{vt[3]}, v{vt[3]}, v{vt[3]} quad_perm:[1,0,3,2] row_mask:0xf bank_mask:0xf
    s_nop 1
    v_max_f32_dpp v{vt[3]}, v{vt[3]}, v{vt[3]} quad_perm:[2,3,0,1] row_mask:0xf bank_mask:0xf
    v_sub_f32 v{vt[3]}, v{vSg}, v{vt[3]}
    v_exp_f32 v{vt[3]}, v{vt[3]}
    s_nop 0
    v_mul_f32 v{vt[4]}, v{vt[3]}, v{vSg+1}
    s_nop 1
    v_add_f32_dpp v{vt[4]}, v{vt[4]}, v{vt[4]} quad_perm:[1,0,3,2] row_mask:0xf bank_mask:0xf
    s_nop 1
    v_add_f32_dpp v{vt[4]}, v{vt[4]}, v{vt[4]} quad_perm:[2,3,0,1] row_mask:0xf bank_mask:0xf
    v_rcp_f32 v{vt[4]}, v{vt[4]}
    s_nop 0
    v_mul_f32 v{vt[3]}, v{vt[3]}, v{vt[4]}
    s_nop 1
    """)
    for s_ in range(4):
        a(f"v_mov_b32_dpp v{vWs+s_}, v{vt[3]} quad_perm:[{s_},{s_},{s_},{s_}] row_mask:0xf bank_mask:0xf")
    a(f"""
    L_g3:
    s_waitcnt vmcnt(4)
    """)
    check_tags([vG3 + i for i in range(4)])
    a(f"""
    s_cbranch_vccz L_g3_ok
    s_sub_u32 s{sTMO}, s{sTMO}, 1
    s_cbranch_scc1 L_exit
    s_sub_u32 s{sFB}, s{sFB}, 1
    s_cmp_lg_u32 s{sFB}, 0
    s_cbranch_scc1 L_g3_keep
    """)
    g3_base(0)
    a.label("L_g3_keep")
    if stamps: a("s_add_u32 s71, s71, 1")
    g3_loads(vG3)
    a("s_waitcnt vmcnt(4)")
    check_tags([vG3b + i for i in range(4)])
    a("s_cbranch_vccz L_g3_okb")
    g3_loads(vG3b)
    vRes = R.alloc()
    def combine(src):
        a(f"v_mul_f32 v{vRes}, v{vWs}, v{src}")
        for k in range(1, 4):
            a(f"v_fmac_f32 v{vRes}, v{vWs+k}, v{src+k}")
    a("s_branch L_g3")
    a.label("L_g3_okb")
    combine(vG3b)
    a("s_branch L_g3_done")
    a.label("L_g3_ok")
    combine(vG3)
    a.label("L_g3_done")
    stamp(12)
    a(f"""
    v_cvt_pk_bf16_f32 v{vRes}, v{vRes}, v{vRes}
    ds_write_b16 v{vAW}, v{vRes} offset:{OB}
    s_waitcnt lgkmcnt(0)
    s_barrier
    ds_read_b128 {vr(vHf,4)}, v{vAH} offset:{HID}
    ds_read_b64 {vr(vHf+4,2)}, v{vAH16} offset:{HID+64}
    ds_read_b32 v{vGl}, v{vAG} offset:{GV}
    """)
    vOf = R.alloc(16, 4)
    for u in range(4):
        a(f"ds_read_b128 {vr(vOf+4*u,4)}, v{vAO} offset:{OB + 64*u}")
    a("s_waitcnt lgkmcnt(4)")
    a(f"v_mfma_f32_16x16x32_bf16 {vr(vYf,4)}, {vr(vDf,4)}, {vr(vHf,4)}, 0")
    for u in range(4):
        a(f"s_waitcnt lgkmcnt({3-u})")
        c = "0" if u == 0 else vr(vYa, 4)
        a(f"v_mfma_f32_16x16x32_bf16 {vr(vYa,4)}, {vr(vWf+4*u,4)}, {vr(vOf+4*u,4)}, {c}")
    a(f"v_mfma_f32_16x16x16_bf16 {vr(vYf,4)}, {vr(vDf+4,2)}, {vr(vHf+4,2)}, {vr(vYf,4)}")
    a(f"""
    v_sub_f32 v{vt[0]}, 1.0, v{vGl}
    s_nop 6
    """)
    for e in range(4):
        a(f"v_mul_f32 v{vYa+e}, v{vGl}, v{vYa+e}")
    for e in range(4):
        a(f"v_fmac_f32 v{vYa+e}, v{vt[0]}, v{vYf+e}")
    for e in range(4):
        tag(vYa + e)
    exec_n_lt2()
    a(f"buffer_store_dwordx4 {vr(vYa,4)}, v{vM4}, s[{rWS}:{rWS+3}], s48 offen sc1")
    a("s_mov_b64 exec, -1")
    a(f"""
    s_lshl_b32 s{sT0}, s{sJ}, 2
    s_cmp_lg_u32 s{sT0}, s{sH}
    s_cbranch_scc1 L_done
    s_lshl_b32 s{sT0}, s{sJ}, 14
    s_lshl_b32 s{sT1}, s{sCW}, 7
    s_add_u32 s{sT0}, s{sT0}, s{sT1}
    s_add_u32 s40, s{sT0}, {WS_M4}
    s_add_u32 s41, s40, 4096
    s_add_u32 s42, s40, 8192
    s_add_u32 s43, s40, 12288
    v_lshrrev_b32 v{vt[1]}, 3, v{vL}
    v_lshlrev_b32 v{vt[1]}, 9, v{vt[1]}
    v_and_b32 v{vt[2]}, 7, v{vL}
    v_lshl_add_u32 v{vt[1]}, v{vt[2]}, 4, v{vt[1]}
    s_lshr_b32 s{sT0}, s{sCW}, 1
    s_lshl_b32 s{sT0}, s{sT0}, 10
    s_and_b32 s{sT1}, s{sCW}, 1
    s_lshl_b32 s{sT1}, s{sT1}, 6
    s_add_u32 s{sT0}, s{sT0}, s{sT1}
    s_lshl_b32 s{sT1}, s{sJ}, 7
    s_add_u32 s{sT0}, s{sT0}, s{sT1}
    v_lshlrev_b32 v{vt[2]}, 3, v{vt[2]}
    v_lshl_add_u32 v{vt[2]}, v{vKG}, 1, v{vt[2]}
    v_add_u32 v{vt[2]}, s{sT0}, v{vt[2]}
    L_g4:
    """)
    for i in range(4):
        a(f"buffer_load_dwordx4 {vr(vG4+4*i,4)}, v{vt[1]}, s[{rWS}:{rWS+3}], s{40+i} offen sc1")
    a("s_waitcnt vmcnt(0)")
    check_tags([vG4 + i for i in range(16)])
    retry("L_g4", "L_g4_ok")
    for e in range(4):
        a(f"v_add_f32 v{vG4+e}, v{vG4+e}, v{vG4+4+e}")
        a(f"v_add_f32 v{vG4+8+e}, v{vG4+8+e}, v{vG4+12+e}")
    for e in range(4):
        a(f"v_add_f32 v{vG4+e}, v{vG4+e}, v{vG4+8+e}")
    a(f"""
    s_nop 0
    v_permlane32_swap_b32 v{vG4}, v{vG4+2}
    v_permlane32_swap_b32 v{vG4+1}, v{vG4+3}
    v_add_f32 v{vG4}, v{vG4}, v{vG4+2}
    v_add_f32 v{vG4+1}, v{vG4+1}, v{vG4+3}
    s_nop 1
    v_permlane16_swap_b32 v{vG4}, v{vG4+1}
    v_add_f32 v{vG4}, v{vG4}, v{vG4+1}
    s_nop 1
    v_add_f32_dpp v{vG4}, v{vG4}, v{vG4} row_ror:8 row_mask:0xf bank_mask:0xf
    v_cvt_pk_bf16_f32 v{vG4}, v{vG4}, v{vG4}
    s_mov_b32 exec_lo, 0x00ff00ff
    s_mov_b32 exec_hi, 0x00ff00ff
    global_store_short v{vt[2]}, v{vG4}, s[{pOUT}:{pOUT+1}]
    s_or_b32 s{sT0}, s{sJ}, s{sCW}
    s_cmp_lg_u32 s{sT0}, 0
    s_cbranch_scc1 L_done
    s_mov_b64 exec, 1
    v_mov_b32 v{vt[0]}, 0
    v_mov_b32 v{vt[1]}, s{sE1}
    global_store_dword v{vt[0]}, v{vt[1]}, s[{pWS}:{pWS+1}] sc1
    L_done:
    """)
    stamp(13)
    dump_stamps(vt[0], vt[1], [(6, 2), (7, 3), (8, 5), (9, 6), (10, 7), (11, 9), (12, 11), (13, 12), (14, 13)])
    a.label("L_exit")
    a("s_endpgm")
    a.label("L_codeend")
    nv = R.hi
    txt = (f"; @launch grid=(256,1,1) block=(320,1,1) lds={LDS_BYTES}\n" + HEAD + kernel_begin(KN) + a.text()
           + kernel_desc(KN, nv, sgpr=102))
    return txt

if __name__ == "__main__":
    import argparse
    ap = argparse.ArgumentParser()
    ap.add_argument("-o", default="main.s"); ap.add_argument("--stamps", action="store_true")
    ap.add_argument("-W", type=int, default=24)
    ap.add_argument("--nopf", action="store_true")
    ap.add_argument("--vsplit", type=int, default=0)
    ap.add_argument("--cset", default=None); ap.add_argument("--lset", default=None)
    ap.add_argument("--W2", type=int, default=None)
    ap.add_argument("--dbg", action="store_true")
    ap.add_argument("--nont", action="store_true")
    ap.add_argument("--noxcd", action="store_true")
    x = ap.parse_args()
    fl = "" if x.nont else "nt"
    open(x.o, "w").write(gen(W=x.W, W2=x.W2, vsplit=x.vsplit, cset=None if x.cset is None else [int(i) for i in x.cset.split(',')], lset=None if x.lset is None else [int(i) for i in x.lset.split(',')], stamps=x.stamps or x.dbg, dbgstamps=x.dbg, prefetch_code=not x.nopf,
                             wflags=fl, gflags=fl, kvflags=fl, xcdmap=not x.noxcd))
```

```python
import sys, math, struct
from asmgen import *

K_OFF = 0
V_OFF = 65536
WQ_OFF = V_OFF
WG_OFF = V_OFF + 16384
WU_OFF = V_OFF + 24576
S2_OFF = 131072
MISC = 153600
PROG, S1DONE, BAR, QRDY = 0, 4, 8, 12
STATW, GV = 16, 48
QB, HID, PB, OB = 64, 320, 576, 1088
LDS_BYTES = 155648
WS_M1 = 0x10000
WS_M3 = 0x100000
WS_M4 = 0x140000
WS_M3L = 0x180000
WS_STAMP = 0x200000
WS_SIZE = 0x400000
CEXP = 1.4426950408889634 / math.sqrt(128.0)

def f2u(x):
    return struct.unpack("<I", struct.pack("<f", x))[0]

class Regs:
    def __init__(self, lo, hi):
        self.free = list(range(lo, hi))
        self.hi = lo
    def alloc(self, n=1, align=1):
        if n > 1 and align == 1:
            align = 2
        for s in self.free:
            if s % align == 0 and all((s + i) in self.free for i in range(n)):
                for i in range(n):
                    self.free.remove(s + i)
                self.hi = max(self.hi, s + n)
                return s
        raise RuntimeError("out of registers")
    def release(self, s, n=1):
        for i in range(n):
            assert (s + i) not in self.free
            self.free.append(s + i)
        self.free.sort()

def vr(b, n=1):
    return f"v{b}" if n == 1 else f"v[{b}:{b+n-1}]"

def gen(W=24, stamps=False, dbgstamps=False, wflags="nt", gflags="nt", kvflags="nt", prefetch_code=True, xcdmap=True,
        sleep=1, W2=None, vsplit=0, cset=None, lset=None, rot=17, loaderonly=False, exit_after=None):
    W2 = W2 or W
    a = Asm()
    KN = NAME + "_kernel"
    sWAVE, sH, sJ, sTAG, sE1 = 3, 4, 5, 6, 7
    pX, pK, pV, pWQ, pWO, pBX, pWG, pWU = 8, 10, 12, 14, 16, 18, 20, 22
    pWD, pGW, pOUT, pWS = 24, 26, 28, 30
    sU, sTMO, sT0, sT1, sT2, sT3 = 60, 61, 62, 63, 64, 65
    sCW, sB, sPG = 66, 67, 68
    STAMP0 = 72
    role = ["entry"]
    def stamp(idx):
        sel = lset if role[0] == "loader" else cset
        if stamps and (sel is None or idx in sel):
            a(f"s_memrealtime s[{STAMP0+2*idx}:{STAMP0+2*idx+1}]")
            a("s_waitcnt lgkmcnt(0)")
    def dump_stamps(vtmp, vaddr, dbg_slots=None):
        if not stamps:
            return
        if dbgstamps:
            lab = a.newlabel("L_nodbg")
            a(f"""
            s_cmp_lg_u32 s2, 0
            s_cbranch_scc1 {lab}
            s_cmp_gt_u32 s{sWAVE}, 1
            s_cbranch_scc1 {lab}
            s_load_dwordx2 s[{sT2}:{sT3}], s[0:1], 88
            s_waitcnt lgkmcnt(0)
            s_mov_b64 exec, 1
            v_mov_b32 v{vaddr}, 0
            """)
            for slot, idx in dbg_slots:
                a(f"s_sub_u32 s{sT0}, s{STAMP0+2*idx}, s{STAMP0}")
                a(f"v_mov_b32 v{vtmp}, s{sT0}")
                a(f"global_store_dword v{vaddr}, v{vtmp}, s[{sT2}:{sT3}] offset:{4*slot}")
                a("s_nop 1")
            a("s_waitcnt vmcnt(0)")
            a.label(lab)
            return
        a(f"""
        s_mov_b64 exec, 1
        s_lshl_b32 s{sT0}, s2, 3
        s_add_u32 s{sT0}, s{sT0}, s{sWAVE}
        s_lshl_b32 s{sT0}, s{sT0}, 6
        s_add_u32 s{sT0}, s{sT0}, {WS_STAMP}
        s_add_u32 s{sT2}, s{pWS}, s{sT0}
        s_addc_u32 s{sT3}, s{pWS+1}, 0
        v_mov_b32 v{vaddr}, 0
        """)
        for i in range(14):
            a(f"v_mov_b32 v{vtmp}, s{STAMP0+2*i}")
            a(f"global_store_dword v{vaddr}, v{vtmp}, s[{sT2}:{sT3}] offset:{4*i}")
            a("s_nop 1")
        for i, r in ((14, 70), (15, 71)):
            a(f"v_mov_b32 v{vtmp}, s{r}")
            a(f"global_store_dword v{vaddr}, v{vtmp}, s[{sT2}:{sT3}] offset:{4*i}")
            a("s_nop 1")
        a("s_waitcnt vmcnt(0)")

    vRow4, vSl, vCb = 1, 2, 3
    vWQ = [8, 9]; vV = [10, 11]; vK = [12, 13, 14, 15]; vO = [16, 17]; vG = [18, 19]
    rK, rV, rWQ, rWO, rWG, rWU, rWD = 32, 36, 40, 44, 48, 52, 56
    sOff, sKV, sCnt, sN, sLast = 66, 67, 68, 69, 59 + 41
    a(f"""
    s_cmp_ge_u32 s2, 256
    s_cbranch_scc1 L_exit
    s_load_dwordx16 s[8:23], s[0:1], 0
    s_load_dwordx4 s[24:27], s[0:1], 64
    s_load_dwordx2 s[28:29], s[0:1], 80
    s_load_dwordx2 s[30:31], s[0:1], 96
    """)
    if stamps:
        for i in range(14):
            a(f"s_mov_b32 s{STAMP0+2*i}, 0")
        a("s_mov_b32 s70, 0")
        a("s_mov_b32 s71, 0")
        a(f"s_memrealtime s[{STAMP0}:{STAMP0+1}]")
    a(f"""
    v_lshrrev_b32 v1, 6, v0
    v_and_b32 v0, 63, v0
    s_and_b32 s{sT0}, s2, 7
    s_lshr_b32 s{sT1}, s2, 3
    v_readfirstlane_b32 s{sWAVE}, v1
    s_lshr_b32 s{sH}, s{sT1}, 3
    s_lshl_b32 s{sT0}, s{sT0}, 2
    s_add_u32 s{sH}, s{sH}, s{sT0}
    s_and_b32 s{sJ}, s{sT1}, 7
    {"" if xcdmap else f"s_lshr_b32 s{sH}, s2, 3"}
    {"" if xcdmap else f"s_and_b32 s{sJ}, s2, 7"}
    v_mov_b32 v4, 0
    v_mov_b32 v5, 0
    v_mov_b32 v6, 0
    v_mov_b32 v7, 0
    v_mov_b32 v26, {MISC}
    s_mov_b64 exec, 1
    ds_write_b128 v26, v[4:7]
    s_mov_b64 exec, -1
    v_lshrrev_b32 v{vRow4}, 4, v0
    v_and_b32 v{vSl}, 15, v0
    v_lshrrev_b32 v{vCb}, 1, v{vSl}
    v_xor_b32 v{vCb}, v{vCb}, v{vRow4}
    v_and_b32 v5, 1, v0
    v_lshlrev_b32 v5, 4, v5
    v_lshl_or_b32 v6, v{vCb}, 5, v5
    v_xor_b32 v7, 0x80, v6
    v_lshl_add_u32 v{vWQ[0]}, v{vRow4}, 13, v6
    v_lshl_add_u32 v{vWQ[1]}, v{vRow4}, 13, v7
    s_lshl_b32 s{sOff}, s{sJ}, 19
    s_lshl_b32 s{sT0}, s{sH}, 8
    s_add_u32 s{sOff}, s{sOff}, s{sT0}
    s_mov_b32 s{sN}, {1 - W}
    s_mov_b32 s{sLast}, 0
    s_mov_b32 s{sTMO}, 1000000
    s_mov_b32 s{rWQ+2}, {512*4096*2}
    s_mov_b32 s{rWQ+3}, 0x20000
    s_cmp_lg_u32 s{sWAVE}, 0
    s_waitcnt lgkmcnt(0)
    s_barrier
    s_cbranch_scc1 L_compute
    s_mov_b32 s{rWQ}, s{pWQ}
    s_mov_b32 s{rWQ+1}, s{pWQ+1}
    s_setprio 3
    """)
    role[0] = "loader"
    stamp(1)
    NL = 182
    def srd(r, p, size):
        a(f"""
        s_mov_b32 s{r}, s{p}
        s_mov_b32 s{r+1}, s{p+1}
        s_mov_b32 s{r+2}, {size}
        s_mov_b32 s{r+3}, 0x20000
        """)
    sRel = 101
    def stream(name, cnt, unr, srdr, voffs, lds0, step, fl, pre=None, wait=None, rotate=False):
        Wc = wait or W
        a(f"s_mov_b32 m0, {lds0}")
        if pre:
            pre()
        a(f"s_mov_b32 s{sCnt}, {cnt // unr}")
        a.label(f"L_ld_{name}")
        for i in range(unr):
            a(f"buffer_load_dwordx4 v{voffs[i]}, s[{srdr}:{srdr+3}], s{sOff} offen {fl} lds")
            a(f"s_add_u32 m0, m0, 1024")
            if rotate:
                a(f"s_add_u32 s{sRel}, s{sRel}, 1024")
                a(f"s_and_b32 s{sRel}, s{sRel}, 0xffff")
                a(f"s_add_u32 s{sOff}, s{sKV}, s{sRel}")
            else:
                a(f"s_add_u32 s{sOff}, s{sOff}, {step}")
            a(f"s_waitcnt vmcnt({Wc-1})")
        a(f"""
        s_add_i32 s{sN}, s{sN}, {unr}
        s_max_i32 s{sLast}, s{sN}, s{sLast}
        v_mov_b32 v27, s{sLast}
        s_mov_b64 exec, 1
        ds_write_b32 v26, v27 offset:{PROG}
        s_mov_b64 exec, -1
        s_sub_u32 s{sCnt}, s{sCnt}, 1
        s_cmp_lg_u32 s{sCnt}, 0
        s_cbranch_scc1 L_ld_{name}
        """)
    stream("wq", 16, 4, rWQ, [vWQ[0], vWQ[0], vWQ[1], vWQ[1]], WQ_OFF, 4*8192, wflags)
    stamp(2)
    a(f"""
    v_lshl_add_u32 v{vV[0]}, v{vRow4}, 8, v6
    v_lshl_add_u32 v{vV[1]}, v{vRow4}, 8, v7
    v_lshrrev_b32 v20, 3, v0
    v_and_b32 v21, 7, v0
    v_lshrrev_b32 v21, 1, v21
    v_and_b32 v22, 1, v{vRow4}
    v_xor_b32 v21, v21, v22
    v_mul_u32_u24 v23, 2752, v20
    v_mov_b32 v24, 0x7fff0000
    s_mul_i32 s{sU}, s{sH}, 43
    s_lshr_b32 s{sU}, s{sU}, 3
    """)
    for var in range(2):
        a(f"""
        v_xor_b32 v22, {2*var}, v21
        v_lshl_or_b32 v25, v22, 5, v5
        v_cmp_eq_u32 vcc, 3, v22
        v_lshl_add_u32 v{vO[var]}, v20, 10, v25
        v_add_u32 v{vG[var]}, v23, v25
        v_cndmask_b32 v{vG[var]}, v{vG[var]}, v24, vcc
        """)
    srd(rWG, pWG, 512*1376*2); srd(rWU, pWU, 512*1376*2)
    def pre_g():
        a(f"s_mul_i32 s{sOff}, s{sJ}, {64*2752}")
        a(f"s_lshl_b32 s{sT0}, s{sU}, 4")
        a(f"s_add_u32 s{sOff}, s{sOff}, s{sT0}")
    stream("wg", 8, 4, rWG, [vG[0], vG[1], vG[0], vG[1]], WG_OFF, 8*2752, gflags, pre_g)
    stream("wu", 8, 4, rWU, [vG[0], vG[1], vG[0], vG[1]], WU_OFF, 8*2752, gflags, pre_g)
    stamp(7)
    a(f"v_xor_b32 v6, v{vSl}, v{vRow4}")
    for v in range(4):
        a(f"v_xor_b32 v7, {4*v}, v6")
        a(f"v_lshlrev_b32 v7, 4, v7")
        a(f"v_lshl_add_u32 v{vK[v]}, v{vRow4}, 8, v7")
    a(f"""
    s_lshr_b32 s{sT0}, s{sJ}, 2
    s_lshl_b32 s{sT0}, s{sT0}, 5
    s_add_u32 s{sT0}, s{sT0}, s{sH}
    s_lshl_b32 s{sKV}, s{sT0}, 20
    s_and_b32 s{sT0}, s{sJ}, 3
    s_lshl_b32 s{sT0}, s{sT0}, 16
    s_add_u32 s{sKV}, s{sKV}, s{sT0}
    s_add_u32 s{sKV}, s{sKV}, 0xC0000
    """)
    srd(rK, pK, 1 << 26); srd(rV, pV, 1 << 26)
    def pre_kv():
        a(f"s_mul_i32 s{sRel}, s2, {rot}")
        a(f"s_and_b32 s{sRel}, s{sRel}, 63")
        a(f"s_lshl_b32 s{sRel}, s{sRel}, 10")
        a(f"s_add_u32 s{sOff}, s{sKV}, s{sRel}")
    stream("k", 64, 4, rK, vK, K_OFF, 1024, kvflags, pre_kv, rotate=True)
    stamp(3)
    srd(rWO, pWO, 4096*512*2); srd(rWD, pWD, 1376*512*2)
    a(f"""
    L_ld_s1:
    ds_read_b32 v27, v26 offset:{S1DONE}
    s_waitcnt lgkmcnt(0)
    v_readfirstlane_b32 s{sT0}, v27
    s_cmp_ge_u32 s{sT0}, {0 if loaderonly else 4}
    s_cbranch_scc1 L_ld_s1_ok
    s_sub_u32 s{sTMO}, s{sTMO}, 1
    s_cbranch_scc1 L_exit
    s_sleep 1
    s_branch L_ld_s1
    L_ld_s1_ok:
    """)
    if vsplit:
        stream("v0", vsplit, 4, rV, [vV[0], vV[0], vV[1], vV[1]], V_OFF, 1024, kvflags, pre_kv, rotate=True)
    a(f"s_add_i32 s{sN}, s{sN}, {W - W2}")
    if vsplit < 64:
        stream("v", 64 - vsplit, 4, rV, [vV[0], vV[0], vV[1], vV[1]], V_OFF + vsplit*1024, 1024, kvflags,
               pre_kv if vsplit == 0 else (lambda: a("s_nop 0")), wait=W2, rotate=True)
    stamp(4)
    def pre_o():
        a(f"s_lshl_b32 s{sOff}, s{sH}, 17")
        a(f"s_lshl_b32 s{sT0}, s{sJ}, 7")
        a(f"s_add_u32 s{sOff}, s{sOff}, s{sT0}")
    def pre_d():
        a(f"s_lshl_b32 s{sOff}, s{sU}, 13")
        a(f"s_lshl_b32 s{sT0}, s{sJ}, 7")
        a(f"s_add_u32 s{sOff}, s{sOff}, s{sT0}")
    stream("wo", 16, 4, rWO, [vO[0], vO[1], vO[0], vO[1]], S2_OFF, 8192, wflags, pre_o, wait=W2)
    stream("wd", 6, 2, rWD, [vO[0], vO[1]], S2_OFF + 16*1024, 8192, wflags, pre_d, wait=W2)
    landed = NL + 1 - W2
    for m in [x for x in (128, 136, 144, 152, 160, 168, 176, NL) if x > landed]:
        a(f"s_waitcnt vmcnt({NL - m})")
        a(f"v_mov_b32 v27, {m}")
        a("s_mov_b64 exec, 1")
        a(f"ds_write_b32 v26, v27 offset:{PROG}")
        a("s_mov_b64 exec, -1")
        if m == 160: stamp(5)
    stamp(6)
    a("s_waitcnt lgkmcnt(0)")
    dump_stamps(27, 28, [(0, 1), (1, 2), (2, 3), (3, 4), (4, 5), (5, 6)])
    a("s_endpgm")

    role[0] = "compute"
    a.label("L_compute")
    if loaderonly:
        a("s_endpgm")
    R = Regs(1, 256)
    vL = R.alloc(); vN = R.alloc(); vKG = R.alloc(); vR4 = R.alloc(); vC = R.alloc()
    vFF = R.alloc(); vMisc = R.alloc(); vOne = R.alloc()
    vt0 = R.alloc(8, 4); vt = [vt0 + i for i in range(8)]
    vx0 = R.alloc(4, 4); vxt = [vx0 + i for i in range(4)]
    vTR = [R.alloc(), R.alloc()]
    vTRG = R.alloc(); vTRS = R.alloc(); vTR16 = R.alloc()
    vKA = [R.alloc() for _ in range(4)]
    vXB = [R.alloc(4, 4), R.alloc(4, 4)]
    vJunk = R.alloc(4, 4)
    vGx = R.alloc(12, 4)
    rWS = 32
    sM1, sM3, sM4 = 36, 37, 38
    def spin_tail(label, tight=False):
        a(f"""
        s_sub_u32 s{sTMO}, s{sTMO}, 1
        s_cbranch_scc1 L_exit
        {"" if tight else f"s_sleep {sleep}"}
        s_branch {label}
        """)
    def wait_lds(off, n, label):
        a(f"""
        {label}:
        ds_read_b32 v{vt[7]}, v{vMisc} offset:{off}
        s_waitcnt lgkmcnt(0)
        v_readfirstlane_b32 s{sT0}, v{vt[7]}
        s_cmp_ge_u32 s{sT0}, {n}
        s_cbranch_scc1 {label}_ok
        """)
        spin_tail(label)
        a.label(f"{label}_ok")
    def wait_prog(n, label, tight=False):
        a(f"""
        s_cmp_ge_u32 s{sPG}, {n}
        s_cbranch_scc1 {label}_ok
        {label}:
        ds_read_b32 v{vt[7]}, v{vMisc} offset:{PROG}
        s_waitcnt lgkmcnt(0)
        v_readfirstlane_b32 s{sPG}, v{vt[7]}
        s_cmp_ge_u32 s{sPG}, {n}
        s_cbranch_scc1 {label}_ok
        """)
        spin_tail(label, tight)
        a.label(f"{label}_ok")
    def signal(off):
        a(f"""
        s_mov_b64 exec, 1
        ds_add_u32 v{vMisc}, v{vOne} offset:{off}
        s_mov_b64 exec, -1
        """)
    def tag(v):
        a(f"v_bfi_b32 v{v}, v{vFF}, s{sTAG}, v{v}")
    def exec_n_lt2():
        a("s_mov_b32 exec_lo, 0x00030003")
        a("s_mov_b32 exec_hi, 0x00030003")
    def xrow(regs, op="v_add_f32"):
        for ins in ("v_permlane16_swap_b32", "v_permlane32_swap_b32"):
            for k0 in range(0, len(regs), 4):
                grp = regs[k0:k0+4]
                for r, t in zip(grp, vxt):
                    a(f"v_mov_b32 v{t}, v{r}")
                if len(grp) < 2:
                    a("s_nop 1")
                elif len(grp) < 3:
                    a("s_nop 0")
                for r, t in zip(grp, vxt):
                    a(f"{ins} v{t}, v{r}")
                for r, t in zip(grp, vxt):
                    a(f"{op} v{r}, v{t}, v{r}")
    vBad = R.alloc()
    def check_tags(regs):
        for r in regs:
            a(f"v_xor_b32 v{r}, s{sTAG}, v{r}")
        a(f"v_or_b32 v{vBad}, v{regs[0]}, v{regs[1]}")
        for k in range(2, len(regs), 2):
            a(f"v_or3_b32 v{vBad}, v{vBad}, v{regs[k]}, v{regs[k+1]}")
        a(f"v_and_b32 v{vBad}, v{vFF}, v{vBad}")
        a(f"v_cmp_ne_u32 vcc, 0, v{vBad}")
    def retry(label_again, label_ok):
        a(f"""
        s_cbranch_vccz {label_ok}
        s_sub_u32 s{sTMO}, s{sTMO}, 1
        s_cbranch_scc1 L_exit
        s_branch {label_again}
        {label_ok}:
        """)

    a(f"""
    v_mov_b32 v{vL}, v0
    s_sub_u32 s{sCW}, s{sWAVE}, 1
    s_lshr_b32 s{sB}, s{sJ}, 2
    s_load_dword s{sE1}, s[{pWS}:{pWS+1}], 0
    v_and_b32 v{vN}, 15, v{vL}
    v_lshrrev_b32 v{vKG}, 4, v{vL}
    v_and_b32 v{vt[0]}, 1, v{vN}
    v_lshlrev_b32 v{vt[0]}, 10, v{vt[0]}
    v_lshl_add_u32 v{vt[0]}, v{vKG}, 4, v{vt[0]}
    s_lshl_b32 s{sT0}, s{sJ}, 7
    v_add_u32 v{vt[0]}, s{sT0}, v{vt[0]}
    v_lshlrev_b32 v{vt[1]}, 4, v{vL}
    global_load_dwordx4 {vr(vXB[0],4)}, v{vt[0]}, s[{pX}:{pX+1}]
    global_load_dwordx4 {vr(vXB[1],4)}, v{vt[0]}, s[{pX}:{pX+1}] offset:64
    s_mov_b32 s{sPG}, 0
    s_mul_i32 s{sU}, s{sH}, 43
    s_lshr_b32 s{sU}, s{sU}, 3
    v_lshrrev_b32 v{vR4}, 2, v{vN}
    v_and_b32 v{vC}, 3, v{vN}
    v_mov_b32 v{vFF}, 0xff
    v_mov_b32 v{vMisc}, {MISC}
    v_mov_b32 v{vOne}, 1
    s_cmp_lg_u32 s{sCW}, 3
    s_cbranch_scc1 L_nopf
    global_load_dwordx4 {vr(vGx,4)}, v{vt[1]}, s[{pX}:{pX+1}]
    global_load_dwordx4 {vr(vGx+4,4)}, v{vt[1]}, s[{pX}:{pX+1}] offset:1024
    global_load_dwordx4 {vr(vGx+8,4)}, v{vt[1]}, s[{pGW}:{pGW+1}]
    """)
    if prefetch_code:
        a(f"""
        s_getpc_b64 s[{sT2}:{sT3}]
        L_pc:
        s_lshr_b32 s{sT0}, s2, 3
        s_and_b32 s{sT0}, s{sT0}, 15
        s_lshl_b32 s{sT0}, s{sT0}, 10
        s_sub_u32 s{sT2}, s{sT2}, L_pc-{KN}
        s_subb_u32 s{sT3}, s{sT3}, 0
        s_min_u32 s{sT0}, s{sT0}, L_codeend-{KN}-1024
        s_add_u32 s{sT2}, s{sT2}, s{sT0}
        s_addc_u32 s{sT3}, s{sT3}, 0
        global_load_dwordx4 {vr(vJunk,4)}, v{vt[1]}, s[{sT2}:{sT3}]
        """)
    a.label("L_nopf")
    a(f"""
    s_mov_b32 s{rWS}, s{pWS}
    s_mov_b32 s{rWS+1}, s{pWS+1}
    s_mov_b32 s{rWS+2}, {WS_SIZE}
    s_mov_b32 s{rWS+3}, 0x20000
    s_lshl_b32 s{sT0}, s{sH}, 3
    s_add_u32 s{sT0}, s{sT0}, s{sJ}
    s_mul_i32 s{sM1}, s{sT0}, 1792
    s_add_u32 s{sM1}, s{sM1}, {WS_M1}
    s_mul_i32 s{sM3}, s{sT0}, 640
    s_add_u32 s{sM3}, s{sM3}, {WS_M3}
    s_lshl_b32 s{sM4}, s{sJ}, 14
    s_lshl_b32 s{sT0}, s{sH}, 9
    s_add_u32 s{sM4}, s{sM4}, s{sT0}
    s_add_u32 s{sM4}, s{sM4}, {WS_M4}
    v_lshl_add_u32 v{vt[0]}, v{vKG}, 3, v{vR4}          ; 8kg + r4
    v_and_b32 v{vt[1]}, 1, v{vKG}
    v_lshl_or_b32 v{vt[2]}, v{vt[1]}, 2, v{vR4}         ; f = r4 | (kg&1)<<2
    v_lshlrev_b32 v{vt[3]}, 8, v{vt[0]}
    v_lshl_add_u32 v{vt[3]}, v{vC}, 3, v{vt[3]}
    v_add_u32 v{vt[3]}, {V_OFF}, v{vt[3]}
    s_lshl_b32 s{sT0}, s{sCW}, 1
    v_xor_b32 v{vTR[0]}, s{sT0}, v{vt[2]}
    v_lshl_add_u32 v{vTR[0]}, v{vTR[0]}, 5, v{vt[3]}
    s_add_u32 s{sT0}, s{sT0}, 1
    v_xor_b32 v{vTR[1]}, s{sT0}, v{vt[2]}
    v_lshl_add_u32 v{vTR[1]}, v{vTR[1]}, 5, v{vt[3]}
    v_lshrrev_b32 v{vt[2]}, 1, v{vR4}
    v_lshl_or_b32 v{vt[3]}, v{vt[1]}, 1, v{vt[2]}
    v_xor_b32 v{vt[3]}, s{sCW}, v{vt[3]}
    v_lshlrev_b32 v{vt[3]}, 5, v{vt[3]}
    v_lshl_add_u32 v{vt[3]}, v{vt[0]}, 7, v{vt[3]}
    v_lshl_add_u32 v{vt[3]}, v{vC}, 3, v{vt[3]}
    v_add_u32 v{vTRG}, {WG_OFF}, v{vt[3]}
    v_add_u32 v{vTRS}, {S2_OFF}, v{vt[3]}
    v_lshrrev_b32 v{vt[3]}, 1, v{vKG}
    v_lshl_or_b32 v{vt[3]}, v{vt[3]}, 1, v{vt[2]}
    v_xor_b32 v{vt[3]}, s{sCW}, v{vt[3]}
    v_lshlrev_b32 v{vt[3]}, 5, v{vt[3]}
    v_lshl_add_u32 v{vt[0]}, v{vKG}, 2, v{vR4}
    v_lshl_add_u32 v{vt[3]}, v{vt[0]}, 7, v{vt[3]}
    v_lshl_add_u32 v{vt[3]}, v{vC}, 3, v{vt[3]}
    v_add_u32 v{vTR16}, {S2_OFF + 160*128}, v{vt[3]}
    s_lshl_b32 s{sT0}, s{sCW}, 14
    v_lshlrev_b32 v{vt[0]}, 8, v{vN}
    v_add_u32 v{vt[0]}, s{sT0}, v{vt[0]}
    v_xor_b32 v{vt[1]}, v{vKG}, v{vN}
    """)
    for t in range(4):
        a(f"v_xor_b32 v{vt[2]}, {4*t}, v{vt[1]}")
        a(f"v_lshl_add_u32 v{vKA[t]}, v{vt[2]}, 4, v{vt[0]}")
    stamp(1)

    vA = R.alloc(16, 4)
    vAcc = R.alloc(8, 4)
    vM1 = R.alloc()
    a(f"""
    v_mul_u32_u24 v{vM1}, 896, v{vN}
    v_lshl_add_u32 v{vM1}, v{vKG}, 4, v{vM1}
    """)
    wait_prog(16, "L_w16")
    stamp(2)
    for ti in range(2):
        for u in range(2):
            f = vA + (ti*2 + u) * 4
            a(f"ds_read_b64_tr_b16 {vr(f,2)}, v{vTR[ti]} offset:{u*8192}")
            a(f"ds_read_b64_tr_b16 {vr(f+2,2)}, v{vTR[ti]} offset:{u*8192+1024}")
    a(f"""
    s_add_u32 s{sE1}, s{sE1}, 1
    s_and_b32 s{sTAG}, s{sE1}, 0xff
    s_waitcnt vmcnt(0) lgkmcnt(0)
    """)
    for u in range(2):
        for ti in range(2):
            f = vA + (ti*2 + u) * 4
            c = "0" if u == 0 else vr(vAcc + 4*ti, 4)
            a(f"v_mfma_f32_16x16x32_bf16 {vr(vAcc+4*ti,4)}, {vr(f,4)}, {vr(vXB[u],4)}, {c}")
    a(f"""
    s_lshl_b32 s{sT0}, s{sCW}, 7
    s_add_u32 s{sT0}, s{sT0}, s{sM1}
    s_nop 6
    """)
    for i in range(8):
        tag(vAcc + i)
    exec_n_lt2()
    a(f"buffer_store_dwordx4 {vr(vAcc,4)}, v{vM1}, s[{rWS}:{rWS+3}], s{sT0} offen sc1")
    a(f"buffer_store_dwordx4 {vr(vAcc+4,4)}, v{vM1}, s[{rWS}:{rWS+3}], s{sT0} offen offset:64 sc1")
    a("s_mov_b64 exec, -1")
    stamp(3)
    a(f"""
    s_cmp_eq_u32 s{sCW}, 3
    s_cbranch_scc1 L_gate
    """)
    wait_prog(32, "L_w32")
    vAcc2 = R.alloc(8, 4)
    for mi_, off in enumerate((0, 8192)):
        for u in range(2):
            f = vA + (mi_*2 + u) * 4
            a(f"ds_read_b64_tr_b16 {vr(f,2)}, v{vTRG} offset:{off + u*4096}")
            a(f"ds_read_b64_tr_b16 {vr(f+2,2)}, v{vTRG} offset:{off + u*4096 + 512}")
    a("s_waitcnt lgkmcnt(0)")
    for u in range(2):
        for mi_ in range(2):
            f = vA + (mi_*2 + u) * 4
            c = "0" if u == 0 else vr(vAcc2 + 4*mi_, 4)
            a(f"v_mfma_f32_16x16x32_bf16 {vr(vAcc2+4*mi_,4)}, {vr(f,4)}, {vr(vXB[u],4)}, {c}")
    signal(S1DONE)
    a(f"""
    s_lshl_b32 s{sT0}, s{sCW}, 6
    s_add_u32 s{sT0}, s{sT0}, s{sM1}
    s_nop 5
    """)
    for i in range(8):
        tag(vAcc2 + i)
    exec_n_lt2()
    a(f"buffer_store_dwordx4 {vr(vAcc2,4)}, v{vM1}, s[{rWS}:{rWS+3}], s{sT0} offen offset:512 sc1")
    a(f"buffer_store_dwordx4 {vr(vAcc2+4,4)}, v{vM1}, s[{rWS}:{rWS+3}], s{sT0} offen offset:704 sc1")
    a("s_mov_b64 exec, -1")
    a("s_branch L_p3")
    a.label("L_gate")
    signal(S1DONE)
    gx0, gx1, gw = vGx, vGx + 4, vGx + 8
    z = [vt[2], vt[3]]
    a(f"v_mov_b32 v{z[0]}, 0")
    a(f"v_mov_b32 v{z[1]}, 0")
    for i in range(4):
        a(f"v_lshlrev_b32 v{vt[4]}, 16, v{gw+i}")
        a(f"v_and_b32 v{vt[5]}, 0xffff0000, v{gw+i}")
        for bi, gx in enumerate((gx0, gx1)):
            a(f"v_lshlrev_b32 v{vt[6]}, 16, v{gx+i}")
            a(f"v_fmac_f32 v{z[bi]}, v{vt[6]}, v{vt[4]}")
            a(f"v_and_b32 v{vt[6]}, 0xffff0000, v{gx+i}")
            a(f"v_fmac_f32 v{z[bi]}, v{vt[6]}, v{vt[5]}")
    for rot in (8, 4, 2, 1):
        a("s_nop 1")
        for bi in range(2):
            a(f"v_add_f32_dpp v{z[bi]}, v{z[bi]}, v{z[bi]} row_ror:{rot} row_mask:0xf bank_mask:0xf")
    xrow(z)
    a(f"""
    v_mul_f32 v{z[0]}, {hex(f2u(-1.4426950408889634))}, v{z[0]}
    v_mul_f32 v{z[1]}, {hex(f2u(-1.4426950408889634))}, v{z[1]}
    v_exp_f32 v{z[0]}, v{z[0]}
    v_exp_f32 v{z[1]}, v{z[1]}
    s_nop 0
    v_add_f32 v{z[0]}, 1.0, v{z[0]}
    v_add_f32 v{z[1]}, 1.0, v{z[1]}
    v_rcp_f32 v{z[0]}, v{z[0]}
    v_rcp_f32 v{z[1]}, v{z[1]}
    s_nop 0
    s_mov_b64 exec, 1
    ds_write_b64 v{vMisc}, v[{z[0]}:{z[1]}] offset:{GV}
    s_mov_b64 exec, -1
    """)
    a.label("L_p3")
    stamp(4)
    if exit_after == "p2":
        a("s_endpgm")
    R.release(vGx, 12)
    vG4 = R.alloc(16, 4)
    a(f"""
    s_cmp_lg_u32 s{sCW}, 0
    s_cbranch_scc1 L_waitq
    s_mul_i32 s{sT0}, s{sH}, {8*1792}
    s_mul_i32 s{sT1}, s{sB}, 896
    s_add_u32 s{sT0}, s{sT0}, s{sT1}
    s_add_u32 s{sT0}, s{sT0}, {WS_M1}
    s_add_u32 s40, s{pWS}, s{sT0}
    s_addc_u32 s41, s{pWS+1}, 0
    v_lshrrev_b32 v{vt[1]}, 5, v{vL}
    v_mul_u32_u24 v{vt[1]}, 1792, v{vt[1]}
    v_and_b32 v{vt[2]}, 31, v{vL}
    v_lshl_add_u32 v{vt[1]}, v{vt[2]}, 4, v{vt[1]}
    L_hint1:
    """)
    for jj in range(8):
        a(f"s_load_dwordx2 s[{44+2*jj}:{45+2*jj}], s[40:41], {jj*1792 + 504} glc")
    a("s_waitcnt lgkmcnt(0)")
    a(f"s_xor_b32 s42, s44, s{sTAG}")
    for k in range(45, 60):
        a(f"s_xor_b32 s43, s{k}, s{sTAG}")
        a(f"s_or_b32 s42, s42, s43")
    a(f"""
    s_and_b32 s42, s42, 0xff
    s_cbranch_scc0 L_hint1_ok
    s_sub_u32 s{sTMO}, s{sTMO}, 1
    s_cbranch_scc1 L_exit
    s_branch L_hint1
    L_hint1_ok:
    """)
    stamp(5)
    a(f"""
    L_gq:
    s_mov_b32 s{sT1}, s{sT0}
    """)
    for i in range(4):
        a(f"buffer_load_dwordx4 {vr(vG4+4*i,4)}, v{vt[1]}, s[{rWS}:{rWS+3}], s{sT1} offen sc1")
        if i < 3:
            a(f"s_add_u32 s{sT1}, s{sT1}, 3584")
    a("s_waitcnt vmcnt(0)")
    check_tags([vG4 + i for i in range(16)])
    retry("L_gq", "L_gq_ok")
    for e in range(4):
        a(f"v_add_f32 v{vG4+e}, v{vG4+e}, v{vG4+4+e}")
        a(f"v_add_f32 v{vG4+8+e}, v{vG4+8+e}, v{vG4+12+e}")
    for e in range(4):
        a(f"v_add_f32 v{vG4+e}, v{vG4+e}, v{vG4+8+e}")
    for e in range(4):
        a(f"v_mov_b32 v{vG4+4+e}, v{vG4+e}")
    for e in range(4):
        a(f"v_permlane32_swap_b32 v{vG4+4+e}, v{vG4+e}")
    for e in range(4):
        a(f"v_add_f32 v{vG4+e}, v{vG4+e}, v{vG4+4+e}")
    a(f"""
    v_cvt_pk_bf16_f32 v{vG4+4}, v{vG4}, v{vG4+1}
    v_cvt_pk_bf16_f32 v{vG4+5}, v{vG4+2}, v{vG4+3}
    v_lshl_add_u32 v{vt[2]}, v{vt[2]}, 3, v{vMisc}
    s_mov_b32 exec_hi, 0
    ds_write_b64 v{vt[2]}, {vr(vG4+4,2)} offset:{QB}
    s_mov_b64 exec, 1
    ds_write_b32 v{vMisc}, v{vOne} offset:{QRDY}
    s_mov_b64 exec, -1
    """)
    a.label("L_waitq")
    wait_lds(QRDY, 1, "L_wq")
    stamp(6)
    if exit_after == "q":
        a("s_endpgm")
    vFoff = R.alloc()
    vF4 = R.alloc(16, 4)
    a(f"""
    v_mul_u32_u24 v{vFoff}, 1792, v{vKG}
    v_lshl_add_u32 v{vFoff}, v{vN}, 4, v{vFoff}
    s_sub_u32 s{sT0}, s{sCW}, 1
    s_and_b32 s{sT1}, s{sT0}, 1
    s_mul_i32 s{sT1}, s{sT1}, 896
    s_mul_i32 s39, s{sH}, {8*1792}
    s_add_u32 s39, s39, s{sT1}
    s_add_u32 s39, s39, {WS_M1 + 512}
    s_cmp_gt_u32 s{sT0}, 1
    s_cbranch_scc1 L_noffn1
    """)
    def ffn_loads():
        a(f"""
        v_cmp_gt_u32 vcc, 12, v{vN}
        s_and_b64 exec, exec, vcc
        s_add_u32 s{sT1}, s39, {4*1792}
        buffer_load_dwordx4 {vr(vF4,4)}, v{vFoff}, s[{rWS}:{rWS+3}], s39 offen sc1
        buffer_load_dwordx4 {vr(vF4+4,4)}, v{vFoff}, s[{rWS}:{rWS+3}], s{sT1} offen sc1
        buffer_load_dwordx4 {vr(vF4+8,4)}, v{vFoff}, s[{rWS}:{rWS+3}], s39 offen offset:192 sc1
        buffer_load_dwordx4 {vr(vF4+12,4)}, v{vFoff}, s[{rWS}:{rWS+3}], s{sT1} offen offset:192 sc1
        s_mov_b64 exec, -1
        """)
    ffn_loads()
    a.label("L_noffn1")
    if exit_after == "ffn":
        a("s_waitcnt vmcnt(0)")
        a("s_endpgm")
    vQ = R.alloc(16, 4)
    vKf = R.alloc(64, 4)
    vS = R.alloc(16, 4)
    a(f"""
    v_lshlrev_b32 v{vt[0]}, 4, v{vKG}
    v_add_u32 v{vt[0]}, v{vMisc}, v{vt[0]}
    """)
    for t in range(4):
        a(f"ds_read_b128 {vr(vQ+4*t,4)}, v{vt[0]} offset:{QB + 64*t}")
    a(f"s_lshl_b32 s{sT1}, s{sCW}, 4")
    a(f"s_add_u32 s{sT1}, s{sT1}, 48")
    wait_prog(f"s{sT1}", "L_wk")
    for T in range(4):
        for t in range(4):
            a(f"ds_read_b128 {vr(vKf + 16*T + 4*t, 4)}, v{vKA[t]} offset:{T*4096}")
    for T in range(4):
        a(f"s_waitcnt lgkmcnt({4*(3-T)})")
        for t in range(4):
            c = "0" if t == 0 else vr(vS + 4*T, 4)
            a(f"v_mfma_f32_16x16x32_bf16 {vr(vS+4*T,4)}, {vr(vKf+16*T+4*t,4)}, {vr(vQ+4*t,4)}, {c}")
    vSt = R.alloc(2, 2)
    vMc, vSum = vSt, vSt + 1
    a(f"""
    s_mov_b32 s{sT1}, {hex(f2u(CEXP))}
    s_nop 3
    v_max3_f32 v{vMc}, v{vS}, v{vS+1}, v{vS+2}
    """)
    for k in range(3, 11, 2):
        a(f"v_max3_f32 v{vMc}, v{vMc}, v{vS+k}, v{vS+k+1}")
    a(f"v_max_f32 v{vMc}, v{vMc}, v{vS+11}")
    a("s_nop 1")
    a(f"v_max3_f32 v{vMc}, v{vMc}, v{vS+12}, v{vS+13}")
    a(f"v_max3_f32 v{vMc}, v{vMc}, v{vS+14}, v{vS+15}")
    xrow([vMc], "v_max_f32")
    a(f"""
    v_mul_f32 v{vMc}, s{sT1}, v{vMc}
    v_and_b32 v{vMc}, 0xffffff00, v{vMc}
    """)
    for k in range(16):
        a(f"v_fma_f32 v{vS+k}, v{vS+k}, s{sT1}, -v{vMc}")
    for k in range(16):
        a(f"v_exp_f32 v{vS+k}, v{vS+k}")
    for T in range(4):
        a(f"v_cvt_pk_bf16_f32 v{vKf+2*T}, v{vS+4*T}, v{vS+4*T+1}")
        a(f"v_cvt_pk_bf16_f32 v{vKf+2*T+1}, v{vS+4*T+2}, v{vS+4*T+3}")
    a(f"""
    s_lshl_b32 s{sT0}, s{sCW}, 7
    v_lshl_add_u32 v{vt[1]}, v{vKG}, 3, v{vMisc}
    v_add_u32 v{vt[1]}, s{sT0}, v{vt[1]}
    s_mov_b32 exec_lo, 0x00010001
    s_mov_b32 exec_hi, 0x00010001
    """)
    for T in range(4):
        a(f"ds_write_b64 v{vt[1]}, {vr(vKf+2*T,2)} offset:{PB + 32*T}")
    a("s_mov_b64 exec, -1")
    for k in range(0, 16, 2):
        a(f"v_add_f32 v{vS+k}, v{vS+k}, v{vS+k+1}")
    for k in range(0, 16, 4):
        a(f"v_add_f32 v{vS+k}, v{vS+k}, v{vS+k+2}")
    a(f"v_add_f32 v{vS}, v{vS}, v{vS+4}")
    a(f"v_add_f32 v{vS+8}, v{vS+8}, v{vS+12}")
    a(f"v_add_f32 v{vSum}, v{vS}, v{vS+8}")
    xrow([vSum])
    a(f"""
    s_lshl_b32 s{sT0}, s{sCW}, 3
    v_add_u32 v{vt[0]}, s{sT0}, v{vMisc}
    s_mov_b64 exec, 1
    ds_write_b64 v{vt[0]}, {vr(vSt,2)} offset:{STATW}
    ds_add_u32 v{vMisc}, v{vOne} offset:{BAR}
    s_mov_b64 exec, -1
    """)
    wait_lds(BAR, 4, "L_bar1")
    stamp(7)
    if exit_after == "bar":
        a("s_waitcnt vmcnt(0)")
        a("s_endpgm")
    R.release(vKf, 64); R.release(vQ, 16); R.release(vS, 16)
    vP = R.alloc(32, 4)
    vFw = R.alloc(8, 4)
    a(f"""
    v_lshl_add_u32 v{vt[0]}, v{vKG}, 4, v{vMisc}
    ds_read_b128 {vr(vFw,4)}, v{vMisc} offset:{STATW}
    ds_read_b128 {vr(vFw+4,4)}, v{vMisc} offset:{STATW+16}
    """)
    for u in range(8):
        a(f"ds_read_b128 {vr(vP+4*u,4)}, v{vt[0]} offset:{PB + 64*u}")
    a(f"""
    s_waitcnt lgkmcnt(8)
    v_max3_f32 v{vt[4]}, v{vFw}, v{vFw+2}, v{vFw+4}
    v_max_f32 v{vt[4]}, v{vt[4]}, v{vFw+6}
    """)
    for w in range(4):
        a(f"v_sub_f32 v{vFw+2*w}, v{vFw+2*w}, v{vt[4]}")
    for w in range(4):
        a(f"v_exp_f32 v{vFw+2*w}, v{vFw+2*w}")
    a(f"""
    s_cmp_lg_u32 s{sCW}, 0
    s_cbranch_scc1 L_nostat
    v_mul_f32 v{vt[5]}, v{vFw}, v{vFw+1}
    v_fmac_f32 v{vt[5]}, v{vFw+2}, v{vFw+3}
    v_fmac_f32 v{vt[5]}, v{vFw+4}, v{vFw+5}
    v_fmac_f32 v{vt[5]}, v{vFw+6}, v{vFw+7}
    """)
    tag(vt[4])
    tag(vt[5])
    a(f"""
    v_mov_b32 v{vt[6]}, v{vt[4]}
    v_mov_b32 v{vt[7]}, v{vt[5]}
    v_mov_b32 v{vt[0]}, 0
    s_mov_b64 exec, 1
    s_add_u32 s{sT0}, s{sM3}, {WS_M3L - WS_M3}
    buffer_store_dwordx4 v[{vt[4]}:{vt[7]}], v{vt[0]}, s[{rWS}:{rWS+3}], s{sT0} offen offset:512
    buffer_store_dwordx4 v[{vt[4]}:{vt[7]}], v{vt[0]}, s[{rWS}:{rWS+3}], s{sM3} offen offset:512 sc1
    s_mov_b64 exec, -1
    L_nostat:
    """)
    stamp(8)
    vO = R.alloc(32, 4)
    vVf = R.alloc(32, 4)
    def pv_batch(us, need, label):
        wait_prog(need, label, tight=(need >= 152))
        for k, u in enumerate(us):
            f0 = vVf + 8*k
            for ti in range(2):
                a(f"ds_read_b64_tr_b16 {vr(f0+4*ti,2)}, v{vTR[ti]} offset:{u*8192}")
                a(f"ds_read_b64_tr_b16 {vr(f0+4*ti+2,2)}, v{vTR[ti]} offset:{u*8192+1024}")
        for k, u in enumerate(us):
            a(f"s_waitcnt lgkmcnt({4*(len(us)-1-k)})")
            f0 = vVf + 8*k
            w = u >> 1
            for ti in range(2):
                acc = vO + 8*w + 4*ti
                c = "0" if (u & 1) == 0 else vr(acc, 4)
                a(f"v_mfma_f32_16x16x32_bf16 {vr(acc,4)}, {vr(f0+4*ti,4)}, {vr(vP+4*u,4)}, {c}")
    pv_batch([0, 1, 2, 3], 128, "L_wvA")
    vM3 = R.alloc(); vX3 = R.alloc(); vSa = R.alloc(); vSg = R.alloc(2, 2); vSgG = R.alloc(2, 2)
    vWs = R.alloc(4, 4)
    sFB = 47
    def g3_base(delta):
        a(f"""
        s_and_b32 s{sT3}, s{sCW}, 1
        s_lshl_b32 s{sT3}, s{sT3}, 8
        s_add_u32 s41, s40, s{sT3}
        s_add_u32 s41, s41, {delta}
        s_add_u32 s42, s41, 640
        s_add_u32 s43, s41, 1280
        s_add_u32 s44, s41, 1920
        """)
    a(f"""
    v_and_b32 v{vt[0]}, 1, v{vN}
    v_lshlrev_b32 v{vt[1]}, 6, v{vt[0]}
    v_lshl_add_u32 v{vM3}, v{vKG}, 4, v{vt[1]}
    s_lshr_b32 s{sT1}, s{sCW}, 1
    s_lshl_b32 s{sT2}, s{sH}, 3
    s_lshl_b32 s{sT3}, s{sT1}, 2
    s_add_u32 s{sT2}, s{sT2}, s{sT3}
    s_mul_i32 s40, s{sT2}, 640
    s_add_u32 s40, s40, {WS_M3}
    v_lshlrev_b32 v{vX3}, 2, v{vL}
    v_and_b32 v{vSa}, 3, v{vL}
    v_mul_u32_u24 v{vSa}, 640, v{vSa}
    """)
    g3_base(WS_M3L - WS_M3)
    pv_batch([4, 5], 144, "L_wvB")
    for i in range(8):
        a(f"v_mul_f32 v{vO+i}, v{vFw}, v{vO+i}")
    for i in range(8):
        a(f"v_fmac_f32 v{vO+i}, v{vFw+2}, v{vO+8+i}")
    pv_batch([6], 152, "L_wvC")
    for i in range(8):
        a(f"v_fmac_f32 v{vO+i}, v{vFw+4}, v{vO+16+i}")
    a(f"""
    v_cmp_eq_u32 vcc, 1, v{vt[0]}
    s_lshl_b32 s45, s{sCW}, 7
    s_add_u32 s45, s45, s{sM3}
    s_add_u32 s46, s45, {WS_M3L - WS_M3}
    """)
    for e in range(4):
        a(f"v_cndmask_b32 v{vO+e}, v{vO+e}, v{vO+4+e}, vcc")
    pv_batch([7], 160, "L_wvD")
    a("s_nop 7")
    for e in range(4):
        a(f"v_cndmask_b32 v{vO+24+e}, v{vO+24+e}, v{vO+28+e}, vcc")
    for e in range(4):
        a(f"v_fmac_f32 v{vO+e}, v{vFw+6}, v{vO+24+e}")
    for e in range(4):
        tag(vO + e)
    exec_n_lt2()
    a(f"buffer_store_dwordx4 {vr(vO,4)}, v{vM3}, s[{rWS}:{rWS+3}], s46 offen")
    a(f"buffer_store_dwordx4 {vr(vO,4)}, v{vM3}, s[{rWS}:{rWS+3}], s45 offen sc1")
    a("s_mov_b64 exec, -1")
    stamp(9)
    R.release(vP, 32); R.release(vVf, 32); R.release(vFw, 8)
    vG3 = vG4
    vG3b = vG4 + 4
    def g3_loads(dst):
        for s_ in range(4):
            a(f"buffer_load_dword v{dst+s_}, v{vX3}, s[{rWS}:{rWS+3}], s{41+s_} offen sc1")
    a(f"""
    s_sub_u32 s{sT0}, s{sCW}, 1
    s_cmp_gt_u32 s{sT0}, 1
    s_cbranch_scc1 L_noffn2
    s_waitcnt vmcnt(2)
    L_ffnchk:
    v_cmp_gt_u32 vcc, 12, v{vN}
    s_and_b64 exec, exec, vcc
    """)
    check_tags([vF4 + i for i in range(16)])
    a(f"""
    s_mov_b64 exec, -1
    s_cbranch_vccz L_ffn_ok
    s_sub_u32 s{sTMO}, s{sTMO}, 1
    s_cbranch_scc1 L_exit
    """)
    ffn_loads()
    a("s_waitcnt vmcnt(0)")
    a("s_branch L_ffnchk")
    a.label("L_ffn_ok")
    gsum = [vF4 + e for e in range(4)]; usum = [vF4 + 8 + e for e in range(4)]
    for e in range(4):
        a(f"v_add_f32 v{vF4+e}, v{vF4+e}, v{vF4+4+e}")
        a(f"v_add_f32 v{vF4+8+e}, v{vF4+8+e}, v{vF4+12+e}")
    xrow(gsum + usum)
    a(f"""
    s_add_u32 s{sT1}, s{sH}, 1
    s_mul_i32 s{sT1}, s{sT1}, 43
    s_lshr_b32 s{sT1}, s{sT1}, 3
    s_sub_u32 s{sT1}, s{sT1}, s{sU}
    s_lshl_b32 s{sT1}, s{sT1}, 1
    v_cmp_gt_u32 vcc, s{sT1}, v{vN}
    """)
    for e in range(4):
        a(f"v_max_f32 v{gsum[e]}, 0, v{gsum[e]}")
        a(f"v_mul_f32 v{gsum[e]}, v{gsum[e]}, v{usum[e]}")
        a(f"v_cndmask_b32 v{gsum[e]}, 0, v{gsum[e]}, vcc")
    a(f"""
    v_cvt_pk_bf16_f32 v{vF4+4}, v{gsum[0]}, v{gsum[1]}
    v_cvt_pk_bf16_f32 v{vF4+5}, v{gsum[2]}, v{gsum[3]}
    s_lshl_b32 s{sT0}, s{sT0}, 7
    v_lshl_add_u32 v{vt[1]}, v{vN}, 3, v{vMisc}
    v_add_u32 v{vt[1]}, s{sT0}, v{vt[1]}
    s_mov_b64 exec, 0xfff
    ds_write_b64 v{vt[1]}, {vr(vF4+4,2)} offset:{HID}
    s_mov_b64 exec, -1
    L_noffn2:
    """)
    vWf = R.alloc(16, 4); vDf = R.alloc(8, 4); vHf = R.alloc(8, 4)
    vYa = R.alloc(4, 4); vYf = R.alloc(4, 4); vGl = R.alloc()
    vAH = R.alloc(); vAH16 = R.alloc(); vAG = R.alloc(); vAO = R.alloc(); vAW = R.alloc(); vM4 = R.alloc()
    a(f"""
    v_and_b32 v{vt[0]}, 1, v{vN}
    v_lshlrev_b32 v{vt[1]}, 7, v{vt[0]}
    v_add_u32 v{vt[1]}, v{vMisc}, v{vt[1]}
    v_lshl_add_u32 v{vAH}, v{vKG}, 4, v{vt[1]}
    v_lshl_add_u32 v{vAH16}, v{vKG}, 3, v{vt[1]}
    v_lshl_add_u32 v{vAG}, v{vt[0]}, 2, v{vMisc}
    v_lshlrev_b32 v{vt[1]}, 8, v{vt[0]}
    v_lshl_add_u32 v{vM4}, v{vKG}, 4, v{vt[1]}
    v_add_u32 v{vAO}, v{vMisc}, v{vM4}
    s_lshl_b32 s{sT0}, s{sCW}, 7
    v_lshl_add_u32 v{vAW}, v{vL}, 1, v{vMisc}
    v_add_u32 v{vAW}, s{sT0}, v{vAW}
    s_lshl_b32 s48, s{sCW}, 6
    s_add_u32 s48, s48, s{sM4}
    """)
    wait_prog(176, "L_w176", tight=True)
    a(f"s_add_u32 s{sT1}, s40, {WS_M3L - WS_M3}")
    a(f"buffer_load_dwordx2 {vr(vSg,2)}, v{vSa}, s[{rWS}:{rWS+3}], s{sT1} offen offset:512 sc1")
    g3_loads(vG3)
    wait_prog(NL, "L_wall", tight=True)
    for u in range(4):
        a(f"ds_read_b64_tr_b16 {vr(vWf+4*u,2)}, v{vTRS} offset:{u*4096}")
        a(f"ds_read_b64_tr_b16 {vr(vWf+4*u+2,2)}, v{vTRS} offset:{u*4096+512}")
    a(f"""
    ds_read_b64_tr_b16 {vr(vDf,2)}, v{vTRS} offset:{4*4096}
    ds_read_b64_tr_b16 {vr(vDf+2,2)}, v{vTRS} offset:{4*4096+512}
    ds_read_b64_tr_b16 {vr(vDf+4,2)}, v{vTR16}
    """)
    g3_loads(vG3b)
    stamp(11)
    a("s_waitcnt vmcnt(8)")
    check_tags([vSg, vSg + 1])
    a(f"""
    s_mov_b32 s{sFB}, 64
    s_cbranch_vccz L_sg_ok
    L_sg:
    s_add_u32 s{sT1}, s40, {WS_M3L - WS_M3}
    buffer_load_dwordx2 {vr(vSg,2)}, v{vSa}, s[{rWS}:{rWS+3}], s{sT1} offen offset:512 sc1
    buffer_load_dwordx2 {vr(vSgG,2)}, v{vSa}, s[{rWS}:{rWS+3}], s40 offen offset:512 sc1
    {"s_add_u32 s70, s70, 1" if stamps else ""}
    s_waitcnt vmcnt(0)
    """)
    check_tags([vSg, vSg + 1])
    a("s_cbranch_vccz L_sg_ok")
    check_tags([vSgG, vSgG + 1])
    a(f"""
    s_cbranch_vccz L_sg_global
    s_sub_u32 s{sTMO}, s{sTMO}, 1
    s_cbranch_scc1 L_exit
    s_branch L_sg
    L_sg_global:
    v_mov_b32 v{vSg}, v{vSgG}
    v_mov_b32 v{vSg+1}, v{vSgG+1}
    s_mov_b32 s{sFB}, 1
    L_sg_ok:
    v_mov_b32 v{vt[3]}, v{vSg}
    s_nop 1
    v_max_f32_dpp v{vt[3]}, v{vt[3]}, v{vt[3]} quad_perm:[1,0,3,2] row_mask:0xf bank_mask:0xf
    s_nop 1
    v_max_f32_dpp v{vt[3]}, v{vt[3]}, v{vt[3]} quad_perm:[2,3,0,1] row_mask:0xf bank_mask:0xf
    v_sub_f32 v{vt[3]}, v{vSg}, v{vt[3]}
    v_exp_f32 v{vt[3]}, v{vt[3]}
    s_nop 0
    v_mul_f32 v{vt[4]}, v{vt[3]}, v{vSg+1}
    s_nop 1
    v_add_f32_dpp v{vt[4]}, v{vt[4]}, v{vt[4]} quad_perm:[1,0,3,2] row_mask:0xf bank_mask:0xf
    s_nop 1
    v_add_f32_dpp v{vt[4]}, v{vt[4]}, v{vt[4]} quad_perm:[2,3,0,1] row_mask:0xf bank_mask:0xf
    v_rcp_f32 v{vt[4]}, v{vt[4]}
    s_nop 0
    v_mul_f32 v{vt[3]}, v{vt[3]}, v{vt[4]}
    s_nop 1
    """)
    for s_ in range(4):
        a(f"v_mov_b32_dpp v{vWs+s_}, v{vt[3]} quad_perm:[{s_},{s_},{s_},{s_}] row_mask:0xf bank_mask:0xf")
    a(f"""
    L_g3:
    s_waitcnt vmcnt(4)
    """)
    check_tags([vG3 + i for i in range(4)])
    a(f"""
    s_cbranch_vccz L_g3_ok
    s_sub_u32 s{sTMO}, s{sTMO}, 1
    s_cbranch_scc1 L_exit
    s_sub_u32 s{sFB}, s{sFB}, 1
    s_cmp_lg_u32 s{sFB}, 0
    s_cbranch_scc1 L_g3_keep
    """)
    g3_base(0)
    a.label("L_g3_keep")
    if stamps: a("s_add_u32 s71, s71, 1")
    g3_loads(vG3)
    a("s_waitcnt vmcnt(4)")
    check_tags([vG3b + i for i in range(4)])
    a("s_cbranch_vccz L_g3_okb")
    g3_loads(vG3b)
    vRes = R.alloc()
    def combine(src):
        a(f"v_mul_f32 v{vRes}, v{vWs}, v{src}")
        for k in range(1, 4):
            a(f"v_fmac_f32 v{vRes}, v{vWs+k}, v{src+k}")
    a("s_branch L_g3")
    a.label("L_g3_okb")
    combine(vG3b)
    a("s_branch L_g3_done")
    a.label("L_g3_ok")
    combine(vG3)
    a.label("L_g3_done")
    stamp(12)
    a(f"""
    v_cvt_pk_bf16_f32 v{vRes}, v{vRes}, v{vRes}
    ds_write_b16 v{vAW}, v{vRes} offset:{OB}
    s_waitcnt lgkmcnt(0)
    s_barrier
    ds_read_b128 {vr(vHf,4)}, v{vAH} offset:{HID}
    ds_read_b64 {vr(vHf+4,2)}, v{vAH16} offset:{HID+64}
    ds_read_b32 v{vGl}, v{vAG} offset:{GV}
    """)
    vOf = R.alloc(16, 4)
    for u in range(4):
        a(f"ds_read_b128 {vr(vOf+4*u,4)}, v{vAO} offset:{OB + 64*u}")
    a("s_waitcnt lgkmcnt(4)")
    a(f"v_mfma_f32_16x16x32_bf16 {vr(vYf,4)}, {vr(vDf,4)}, {vr(vHf,4)}, 0")
    for u in range(4):
        a(f"s_waitcnt lgkmcnt({3-u})")
        c = "0" if u == 0 else vr(vYa, 4)
        a(f"v_mfma_f32_16x16x32_bf16 {vr(vYa,4)}, {vr(vWf+4*u,4)}, {vr(vOf+4*u,4)}, {c}")
    a(f"v_mfma_f32_16x16x16_bf16 {vr(vYf,4)}, {vr(vDf+4,2)}, {vr(vHf+4,2)}, {vr(vYf,4)}")
    a(f"""
    v_sub_f32 v{vt[0]}, 1.0, v{vGl}
    s_nop 6
    """)
    for e in range(4):
        a(f"v_mul_f32 v{vYa+e}, v{vGl}, v{vYa+e}")
    for e in range(4):
        a(f"v_fmac_f32 v{vYa+e}, v{vt[0]}, v{vYf+e}")
    for e in range(4):
        tag(vYa + e)
    exec_n_lt2()
    a(f"buffer_store_dwordx4 {vr(vYa,4)}, v{vM4}, s[{rWS}:{rWS+3}], s48 offen sc1")
    a("s_mov_b64 exec, -1")
    a(f"""
    s_lshl_b32 s{sT0}, s{sJ}, 2
    s_cmp_lg_u32 s{sT0}, s{sH}
    s_cbranch_scc1 L_done
    s_lshl_b32 s{sT0}, s{sJ}, 14
    s_lshl_b32 s{sT1}, s{sCW}, 7
    s_add_u32 s{sT0}, s{sT0}, s{sT1}
    s_add_u32 s40, s{sT0}, {WS_M4}
    s_add_u32 s41, s40, 4096
    s_add_u32 s42, s40, 8192
    s_add_u32 s43, s40, 12288
    v_lshrrev_b32 v{vt[1]}, 3, v{vL}
    v_lshlrev_b32 v{vt[1]}, 9, v{vt[1]}
    v_and_b32 v{vt[2]}, 7, v{vL}
    v_lshl_add_u32 v{vt[1]}, v{vt[2]}, 4, v{vt[1]}
    s_lshr_b32 s{sT0}, s{sCW}, 1
    s_lshl_b32 s{sT0}, s{sT0}, 10
    s_and_b32 s{sT1}, s{sCW}, 1
    s_lshl_b32 s{sT1}, s{sT1}, 6
    s_add_u32 s{sT0}, s{sT0}, s{sT1}
    s_lshl_b32 s{sT1}, s{sJ}, 7
    s_add_u32 s{sT0}, s{sT0}, s{sT1}
    v_lshlrev_b32 v{vt[2]}, 3, v{vt[2]}
    v_lshl_add_u32 v{vt[2]}, v{vKG}, 1, v{vt[2]}
    v_add_u32 v{vt[2]}, s{sT0}, v{vt[2]}
    L_g4:
    """)
    for i in range(4):
        a(f"buffer_load_dwordx4 {vr(vG4+4*i,4)}, v{vt[1]}, s[{rWS}:{rWS+3}], s{40+i} offen sc1")
    a("s_waitcnt vmcnt(0)")
    check_tags([vG4 + i for i in range(16)])
    retry("L_g4", "L_g4_ok")
    for e in range(4):
        a(f"v_add_f32 v{vG4+e}, v{vG4+e}, v{vG4+4+e}")
        a(f"v_add_f32 v{vG4+8+e}, v{vG4+8+e}, v{vG4+12+e}")
    for e in range(4):
        a(f"v_add_f32 v{vG4+e}, v{vG4+e}, v{vG4+8+e}")
    a(f"""
    s_nop 0
    v_permlane32_swap_b32 v{vG4}, v{vG4+2}
    v_permlane32_swap_b32 v{vG4+1}, v{vG4+3}
    v_add_f32 v{vG4}, v{vG4}, v{vG4+2}
    v_add_f32 v{vG4+1}, v{vG4+1}, v{vG4+3}
    s_nop 1
    v_permlane16_swap_b32 v{vG4}, v{vG4+1}
    v_add_f32 v{vG4}, v{vG4}, v{vG4+1}
    s_nop 1
    v_add_f32_dpp v{vG4}, v{vG4}, v{vG4} row_ror:8 row_mask:0xf bank_mask:0xf
    v_cvt_pk_bf16_f32 v{vG4}, v{vG4}, v{vG4}
    s_mov_b32 exec_lo, 0x00ff00ff
    s_mov_b32 exec_hi, 0x00ff00ff
    global_store_short v{vt[2]}, v{vG4}, s[{pOUT}:{pOUT+1}]
    s_or_b32 s{sT0}, s{sJ}, s{sCW}
    s_cmp_lg_u32 s{sT0}, 0
    s_cbranch_scc1 L_done
    s_mov_b64 exec, 1
    v_mov_b32 v{vt[0]}, 0
    v_mov_b32 v{vt[1]}, s{sE1}
    global_store_dword v{vt[0]}, v{vt[1]}, s[{pWS}:{pWS+1}] sc1
    L_done:
    """)
    stamp(13)
    dump_stamps(vt[0], vt[1], [(6, 2), (7, 3), (8, 5), (9, 6), (10, 7), (11, 9), (12, 11), (13, 12), (14, 13)])
    a.label("L_exit")
    a("s_endpgm")
    a.label("L_codeend")
    nv = R.hi
    txt = (f"; @launch grid=(256,1,1) block=(320,1,1) lds={LDS_BYTES}\n" + HEAD + kernel_begin(KN) + a.text()
           + kernel_desc(KN, nv, sgpr=102))
    return txt

if __name__ == "__main__":
    import argparse
    ap = argparse.ArgumentParser()
    ap.add_argument("-o", default="main.s"); ap.add_argument("--stamps", action="store_true")
    ap.add_argument("-W", type=int, default=24)
    ap.add_argument("--nopf", action="store_true")
    ap.add_argument("--exit", default=None)
    ap.add_argument("--loaderonly", action="store_true")
    ap.add_argument("--rot", type=int, default=17)
    ap.add_argument("--vsplit", type=int, default=0)
    ap.add_argument("--cset", default=None); ap.add_argument("--lset", default=None)
    ap.add_argument("--W2", type=int, default=None)
    ap.add_argument("--dbg", action="store_true")
    ap.add_argument("--nont", action="store_true")
    ap.add_argument("--noxcd", action="store_true")
    x = ap.parse_args()
    fl = "" if x.nont else "nt"
    open(x.o, "w").write(gen(W=x.W, W2=x.W2, exit_after=x.exit, loaderonly=x.loaderonly, rot=x.rot, vsplit=x.vsplit, cset=None if x.cset is None else [int(i) for i in x.cset.split(',')], lset=None if x.lset is None else [int(i) for i in x.lset.split(',')], stamps=x.stamps or x.dbg, dbgstamps=x.dbg, prefetch_code=not x.nopf,
                             wflags=fl, gflags=fl, kvflags=fl, xcdmap=not x.noxcd))
```

```python
import sys, math, struct
from asmgen import *

K_OFF = 0
V_OFF = 65536
WQ_OFF = V_OFF + 32768
WG_OFF = V_OFF + 49152
WU_OFF = V_OFF + 57344
S2_OFF = 131072
MISC = 155648
PROG, S1DONE, BAR, QRDY = 0, 4, 8, 12
MODE = 56
STATW, GV = 16, 48
QB, HID, PB, OB = 64, 320, 576, 1088
LDS_BYTES = 157696
WS_ID = 0x8000
WS_M1 = 0x10000
WS_M3 = 0x100000
WS_M4 = 0x140000
WS_M3L = 0x180000
WS_M1L = 0x280000
WS_STAMP = 0x200000
WS_SIZE = 0x400000
CEXP = 1.4426950408889634 / math.sqrt(128.0)

def f2u(x):
    return struct.unpack("<I", struct.pack("<f", x))[0]

class Regs:
    def __init__(self, lo, hi):
        self.free = list(range(lo, hi))
        self.hi = lo
    def alloc(self, n=1, align=1):
        if n > 1 and align == 1:
            align = 2
        for s in self.free:
            if s % align == 0 and all((s + i) in self.free for i in range(n)):
                for i in range(n):
                    self.free.remove(s + i)
                self.hi = max(self.hi, s + n)
                return s
        raise RuntimeError("out of registers")
    def release(self, s, n=1):
        for i in range(n):
            assert (s + i) not in self.free
            self.free.append(s + i)
        self.free.sort()

def vr(b, n=1):
    return f"v{b}" if n == 1 else f"v[{b}:{b+n-1}]"

def gen(W=28, stamps=False, dbgstamps=False, wflags="nt", gflags="nt", kvflags="nt", prefetch_code=True, xcdmap=True,
        sleep=1, W2=None, vsplit=0, cset=None, lset=None, rot=17, loaderonly=False, exit_after=None, forceglobal=False, ntry=3, m1st='sc1', m1ld='sc1', table=(8, 8, 8, 8, 5, 1, 4, 1)):
    assert sum(table) == 43 and max(table) <= 6
    tabC = sum(c << (4*x) for x, c in enumerate(table))
    pre = [sum(table[:x]) for x in range(8)]
    tabP = sum(p << (8*x) for x, p in enumerate(pre))
    W2 = W2 or W
    a = Asm()
    KN = NAME + "_kernel"
    sWAVE, sH, sJ, sTAG, sE1 = 3, 4, 5, 6, 7
    pX, pK, pV, pWQ, pWO, pBX, pWG, pWU = 8, 10, 12, 14, 16, 18, 20, 22
    pWD, pGW, pOUT, pWS = 24, 26, 28, 30
    sU, sTMO, sT0, sT1, sT2, sT3 = 60, 61, 62, 63, 64, 65
    sCW, sB, sPG = 66, 67, 68
    sC = 58 + 12
    STAMP0 = 72
    role = ["entry"]
    def stamp(idx):
        sel = lset if role[0] == "loader" else cset
        if stamps and (sel is None or idx in sel):
            a(f"s_memrealtime s[{STAMP0+2*idx}:{STAMP0+2*idx+1}]")
            a("s_waitcnt lgkmcnt(0)")
    def dump_stamps(vtmp, vaddr, dbg_slots=None):
        if not stamps:
            return
        if dbgstamps:
            lab = a.newlabel("L_nodbg")
            a(f"""
            s_cmp_lg_u32 s2, 0
            s_cbranch_scc1 {lab}
            s_cmp_gt_u32 s{sWAVE}, 1
            s_cbranch_scc1 {lab}
            s_load_dwordx2 s[{sT2}:{sT3}], s[0:1], 88
            s_waitcnt lgkmcnt(0)
            s_mov_b64 exec, 1
            v_mov_b32 v{vaddr}, 0
            """)
            for slot, idx in dbg_slots:
                a(f"s_sub_u32 s{sT0}, s{STAMP0+2*idx}, s{STAMP0}")
                a(f"v_mov_b32 v{vtmp}, s{sT0}")
                a(f"global_store_dword v{vaddr}, v{vtmp}, s[{sT2}:{sT3}] offset:{4*slot}")
                a("s_nop 1")
            a("s_waitcnt vmcnt(0)")
            a.label(lab)
            return
        a(f"""
        s_mov_b64 exec, 1
        s_lshl_b32 s{sT0}, s2, 3
        s_add_u32 s{sT0}, s{sT0}, s{sWAVE}
        s_lshl_b32 s{sT0}, s{sT0}, 6
        s_add_u32 s{sT0}, s{sT0}, {WS_STAMP}
        s_add_u32 s{sT2}, s{pWS}, s{sT0}
        s_addc_u32 s{sT3}, s{pWS+1}, 0
        v_mov_b32 v{vaddr}, 0
        """)
        for i in range(14):
            a(f"v_mov_b32 v{vtmp}, s{STAMP0+2*i}")
            a(f"global_store_dword v{vaddr}, v{vtmp}, s[{sT2}:{sT3}] offset:{4*i}")
            a("s_nop 1")
        for i, r in ((14, 71), (15, 71)):
            a(f"v_mov_b32 v{vtmp}, s{r}")
            a(f"global_store_dword v{vaddr}, v{vtmp}, s[{sT2}:{sT3}] offset:{4*i}")
            a("s_nop 1")
        a("s_waitcnt vmcnt(0)")

    def ffn_range():
        a(f"""
        s_lshr_b32 s{sT0}, s{sH}, 2
        s_lshl_b32 s{sT1}, s{sT0}, 2
        s_lshr_b32 s{sC}, {hex(tabC)}, s{sT1}
        s_and_b32 s{sC}, s{sC}, 15
        s_lshl_b32 s{sT1}, s{sT0}, 3
        s_mov_b32 s{sT2}, {hex(tabP & 0xffffffff)}
        s_mov_b32 s{sT3}, {hex(tabP >> 32)}
        s_lshr_b64 s[{sT2}:{sT3}], s[{sT2}:{sT3}], s{sT1}
        s_and_b32 s{sU}, s{sT2}, 0xff
        s_lshl_b32 s{sU}, s{sU}, 2
        s_and_b32 s{sT0}, s{sH}, 3
        s_mul_i32 s{sT0}, s{sT0}, s{sC}
        s_add_u32 s{sU}, s{sU}, s{sT0}
        """)

    vRow4, vSl, vCb = 1, 2, 3
    vWQ = [8, 9]; vV = [10, 11]; vK = [12, 13, 14, 15]; vO = [16, 17]; vG = [18, 19]
    rK, rV, rWQ, rWO, rWG, rWU, rWD = 32, 36, 40, 44, 48, 52, 56
    sOff, sKV, sCnt, sN, sLast = 66, 67, 68, 69, 59 + 41
    a(f"""
    s_cmp_ge_u32 s2, 256
    s_cbranch_scc1 L_exit
    s_load_dwordx16 s[8:23], s[0:1], 0
    s_load_dwordx4 s[24:27], s[0:1], 64
    s_load_dwordx2 s[28:29], s[0:1], 80
    s_load_dwordx2 s[30:31], s[0:1], 96
    """)
    if stamps:
        for i in range(14):
            a(f"s_mov_b32 s{STAMP0+2*i}, 0")
        a("s_mov_b32 s71, 0")
        a(f"s_memrealtime s[{STAMP0}:{STAMP0+1}]")
    a(f"""
    v_lshrrev_b32 v1, 6, v0
    v_and_b32 v0, 63, v0
    s_and_b32 s{sT0}, s2, 7
    s_lshr_b32 s{sT1}, s2, 3
    v_readfirstlane_b32 s{sWAVE}, v1
    s_lshr_b32 s{sH}, s{sT1}, 3
    s_lshl_b32 s{sT0}, s{sT0}, 2
    s_add_u32 s{sH}, s{sH}, s{sT0}
    s_and_b32 s{sJ}, s{sT1}, 7
    {"" if xcdmap else f"s_lshr_b32 s{sH}, s2, 3"}
    {"" if xcdmap else f"s_and_b32 s{sJ}, s2, 7"}
    v_mov_b32 v4, 0
    v_mov_b32 v5, 0
    v_mov_b32 v6, 0
    v_mov_b32 v7, 0
    v_mov_b32 v26, {MISC}
    s_mov_b64 exec, 1
    ds_write_b128 v26, v[4:7]
    ds_write_b32 v26, v4 offset:{MODE}
    s_mov_b64 exec, -1
    v_lshrrev_b32 v{vRow4}, 4, v0
    v_and_b32 v{vSl}, 15, v0
    v_lshrrev_b32 v{vCb}, 1, v{vSl}
    v_xor_b32 v{vCb}, v{vCb}, v{vRow4}
    v_and_b32 v5, 1, v0
    v_lshlrev_b32 v5, 4, v5
    v_lshl_or_b32 v6, v{vCb}, 5, v5
    v_xor_b32 v7, 0x80, v6
    v_lshl_add_u32 v{vWQ[0]}, v{vRow4}, 13, v6
    v_lshl_add_u32 v{vWQ[1]}, v{vRow4}, 13, v7
    s_lshl_b32 s{sOff}, s{sJ}, 19
    s_lshl_b32 s{sT0}, s{sH}, 8
    s_add_u32 s{sOff}, s{sOff}, s{sT0}
    s_mov_b32 s{sN}, {1 - W}
    s_mov_b32 s{sLast}, 0
    s_mov_b32 s{sTMO}, 1000000
    s_mov_b32 s{rWQ+2}, {512*4096*2}
    s_mov_b32 s{rWQ+3}, 0x20000
    s_cmp_lg_u32 s{sWAVE}, 0
    s_waitcnt lgkmcnt(0)
    s_barrier
    s_cbranch_scc1 L_compute
    s_mov_b32 s{rWQ}, s{pWQ}
    s_mov_b32 s{rWQ+1}, s{pWQ+1}
    s_setprio 3
    """)
    role[0] = "loader"
    stamp(1)
    NL = 184
    def srd(r, p, size):
        a(f"""
        s_mov_b32 s{r}, s{p}
        s_mov_b32 s{r+1}, s{p+1}
        s_mov_b32 s{r+2}, {size}
        s_mov_b32 s{r+3}, 0x20000
        """)
    sRel = 101
    def stream(name, cnt, unr, srdr, voffs, lds0, step, fl, pre=None, wait=None, rotate=False):
        Wc = wait or W
        a(f"s_mov_b32 m0, {lds0}")
        if pre:
            pre()
        a(f"s_mov_b32 s{sCnt}, {cnt // unr}")
        a.label(f"L_ld_{name}")
        for i in range(unr):
            a(f"buffer_load_dwordx4 v{voffs[i]}, s[{srdr}:{srdr+3}], s{sOff} offen {fl} lds")
            a(f"s_add_u32 m0, m0, 1024")
            if rotate:
                a(f"s_add_u32 s{sRel}, s{sRel}, 1024")
                a(f"s_and_b32 s{sRel}, s{sRel}, 0xffff")
                a(f"s_add_u32 s{sOff}, s{sKV}, s{sRel}")
            else:
                a(f"s_add_u32 s{sOff}, s{sOff}, {step}")
            a(f"s_waitcnt vmcnt({Wc-1})")
        a(f"""
        s_add_i32 s{sN}, s{sN}, {unr}
        s_max_i32 s{sLast}, s{sN}, s{sLast}
        v_mov_b32 v27, s{sLast}
        s_mov_b64 exec, 1
        ds_write_b32 v26, v27 offset:{PROG}
        s_mov_b64 exec, -1
        s_sub_u32 s{sCnt}, s{sCnt}, 1
        s_cmp_lg_u32 s{sCnt}, 0
        s_cbranch_scc1 L_ld_{name}
        """)
    stream("wq", 16, 4, rWQ, [vWQ[0], vWQ[0], vWQ[1], vWQ[1]], WQ_OFF, 4*8192, wflags)
    stamp(2)
    a(f"""
    v_lshl_add_u32 v{vV[0]}, v{vRow4}, 8, v6
    v_lshl_add_u32 v{vV[1]}, v{vRow4}, 8, v7
    v_lshrrev_b32 v20, 3, v0
    v_and_b32 v21, 7, v0
    v_lshrrev_b32 v21, 1, v21
    v_and_b32 v22, 1, v{vRow4}
    v_xor_b32 v21, v21, v22
    v_mul_u32_u24 v23, 2752, v20
    v_mov_b32 v24, 0x7fff0000
    """)
    ffn_range()
    for var in range(2):
        a(f"""
        v_xor_b32 v22, {2*var}, v21
        v_lshl_or_b32 v25, v22, 5, v5
        v_lshrrev_b32 v22, 4, v25
        v_cmp_le_u32 vcc, s{sC}, v22
        v_lshl_add_u32 v{vO[var]}, v20, 10, v25
        v_add_u32 v{vG[var]}, v23, v25
        v_cndmask_b32 v{vG[var]}, v{vG[var]}, v24, vcc
        """)
    srd(rWG, pWG, 512*1376*2); srd(rWU, pWU, 512*1376*2)
    def pre_g():
        a(f"s_mul_i32 s{sOff}, s{sJ}, {64*2752}")
        a(f"s_lshl_b32 s{sT0}, s{sU}, 4")
        a(f"s_add_u32 s{sOff}, s{sOff}, s{sT0}")
    stream("wg", 8, 4, rWG, [vG[0], vG[1], vG[0], vG[1]], WG_OFF, 8*2752, gflags, pre_g)
    stream("wu", 8, 4, rWU, [vG[0], vG[1], vG[0], vG[1]], WU_OFF, 8*2752, gflags, pre_g)
    stamp(7)
    a(f"v_xor_b32 v6, v{vSl}, v{vRow4}")
    for v in range(4):
        a(f"v_xor_b32 v7, {4*v}, v6")
        a(f"v_lshlrev_b32 v7, 4, v7")
        a(f"v_lshl_add_u32 v{vK[v]}, v{vRow4}, 8, v7")
    a(f"""
    s_lshr_b32 s{sT0}, s{sJ}, 2
    s_lshl_b32 s{sT0}, s{sT0}, 5
    s_add_u32 s{sT0}, s{sT0}, s{sH}
    s_lshl_b32 s{sKV}, s{sT0}, 20
    s_and_b32 s{sT0}, s{sJ}, 3
    s_lshl_b32 s{sT0}, s{sT0}, 16
    s_add_u32 s{sKV}, s{sKV}, s{sT0}
    s_add_u32 s{sKV}, s{sKV}, 0xC0000
    """)
    srd(rK, pK, 1 << 26); srd(rV, pV, 1 << 26)
    def pre_kv():
        a(f"s_mul_i32 s{sRel}, s2, {rot}")
        a(f"s_and_b32 s{sRel}, s{sRel}, 63")
        a(f"s_lshl_b32 s{sRel}, s{sRel}, 10")
        a(f"s_add_u32 s{sOff}, s{sKV}, s{sRel}")
    stream("k", 64, 4, rK, vK, K_OFF, 1024, kvflags, pre_kv, rotate=True)
    stamp(3)
    srd(rWO, pWO, 4096*512*2); srd(rWD, pWD, 1376*512*2)
    stream("v0", 32, 4, rV, [vV[0], vV[0], vV[1], vV[1]], V_OFF, 1024, kvflags, pre_kv, rotate=True)
    a(f"""
    L_ld_s1:
    ds_read_b32 v27, v26 offset:{S1DONE}
    s_waitcnt lgkmcnt(0)
    v_readfirstlane_b32 s{sT0}, v27
    s_cmp_ge_u32 s{sT0}, {0 if loaderonly else 4}
    s_cbranch_scc1 L_ld_s1_ok
    s_sub_u32 s{sTMO}, s{sTMO}, 1
    s_cbranch_scc1 L_exit
    s_sleep 1
    s_branch L_ld_s1
    L_ld_s1_ok:
    s_add_i32 s{sN}, s{sN}, {W - W2}
    """)
    stream("v", 32, 4, rV, [vV[0], vV[0], vV[1], vV[1]], V_OFF + 32*1024, 1024, kvflags, lambda: a("s_nop 0"), wait=W2, rotate=True)
    stamp(4)
    def pre_o():
        a(f"s_lshl_b32 s{sOff}, s{sH}, 17")
        a(f"s_lshl_b32 s{sT0}, s{sJ}, 7")
        a(f"s_add_u32 s{sOff}, s{sOff}, s{sT0}")
    def pre_d():
        a(f"s_lshl_b32 s{sOff}, s{sU}, 13")
        a(f"s_lshl_b32 s{sT0}, s{sJ}, 7")
        a(f"s_add_u32 s{sOff}, s{sOff}, s{sT0}")
    stream("wo", 16, 4, rWO, [vO[0], vO[1], vO[0], vO[1]], S2_OFF, 8192, wflags, pre_o, wait=W2)
    a(f"s_mov_b32 m0, {S2_OFF + 16*1024}")
    pre_d()
    a(f"s_mov_b32 s{sCnt}, 0x7fff0000")
    for i in range(8):
        a(f"s_cmp_lt_u32 {i}, s{sC}")
        a(f"s_cselect_b32 s{sT0}, s{sOff}, s{sCnt}")
        a(f"buffer_load_dwordx4 v{vO[i & 1]}, s[{rWD}:{rWD+3}], s{sT0} offen {wflags} lds")
        a(f"s_add_u32 m0, m0, 1024")
        a(f"s_add_u32 s{sOff}, s{sOff}, 8192")
        if 176 + i + 1 + 1 - W2 <= 160:
            a(f"s_waitcnt vmcnt({W2-1})")
        if (i & 1) and 176 + i + 1 + 1 - W2 <= 160:
            a(f"""
            s_add_i32 s{sN}, s{sN}, 2
            s_max_i32 s{sLast}, s{sN}, s{sLast}
            v_mov_b32 v27, s{sLast}
            s_mov_b64 exec, 1
            ds_write_b32 v26, v27 offset:{PROG}
            s_mov_b64 exec, -1
            """)
    landed = NL + 1 - W2
    for m in [x for x in (128, 136, 144, 152) if x > landed]:
        a(f"s_waitcnt vmcnt({NL - m})")
        a(f"v_mov_b32 v27, {m}")
        a("s_mov_b64 exec, 1")
        a(f"ds_write_b32 v26, v27 offset:{PROG}")
        a("s_mov_b64 exec, -1")
    a(f"s_waitcnt vmcnt({NL - 160})")
    stamp(5)
    a("s_barrier")
    a("s_waitcnt vmcnt(0)")
    a("s_barrier")
    stamp(6)
    a("s_waitcnt lgkmcnt(0)")
    dump_stamps(27, 28, [(0, 1), (1, 2), (2, 3), (3, 4), (4, 5), (5, 6)])
    a("s_endpgm")

    role[0] = "compute"
    a.label("L_compute")
    if loaderonly:
        a("s_endpgm")
    R = Regs(1, 256)
    vL = R.alloc(); vN = R.alloc(); vKG = R.alloc(); vR4 = R.alloc(); vC = R.alloc()
    vFF = R.alloc(); vMisc = R.alloc(); vOne = R.alloc()
    vt0 = R.alloc(8, 4); vt = [vt0 + i for i in range(8)]
    vx0 = R.alloc(4, 4); vxt = [vx0 + i for i in range(4)]
    vTR = [R.alloc(), R.alloc()]
    vTRG = R.alloc(); vTRS = R.alloc()
    vKA = [R.alloc() for _ in range(4)]
    vXB = [R.alloc(4, 4), R.alloc(4, 4)]
    vJunk = R.alloc(4, 4)
    vGx = R.alloc(12, 4)
    rWS = 32
    sM1, sM3, sM4 = 36, 37, 38
    def spin_tail(label, tight=False):
        a(f"""
        s_sub_u32 s{sTMO}, s{sTMO}, 1
        s_cbranch_scc1 L_exit
        {"" if tight else f"s_sleep {sleep}"}
        s_branch {label}
        """)
    def wait_lds(off, n, label):
        a(f"""
        {label}:
        ds_read_b32 v{vt[7]}, v{vMisc} offset:{off}
        s_waitcnt lgkmcnt(0)
        v_readfirstlane_b32 s{sT0}, v{vt[7]}
        s_cmp_ge_u32 s{sT0}, {n}
        s_cbranch_scc1 {label}_ok
        """)
        spin_tail(label)
        a.label(f"{label}_ok")
    def wait_prog(n, label, tight=False):
        a(f"""
        s_cmp_ge_u32 s{sPG}, {n}
        s_cbranch_scc1 {label}_ok
        {label}:
        ds_read_b32 v{vt[7]}, v{vMisc} offset:{PROG}
        s_waitcnt lgkmcnt(0)
        v_readfirstlane_b32 s{sPG}, v{vt[7]}
        s_cmp_ge_u32 s{sPG}, {n}
        s_cbranch_scc1 {label}_ok
        """)
        spin_tail(label, tight)
        a.label(f"{label}_ok")
    def signal(off):
        a(f"""
        s_mov_b64 exec, 1
        ds_add_u32 v{vMisc}, v{vOne} offset:{off}
        s_mov_b64 exec, -1
        """)
    def tag(v):
        a(f"v_bfi_b32 v{v}, v{vFF}, s{sTAG}, v{v}")
    def exec_n_lt2():
        a("s_mov_b32 exec_lo, 0x00030003")
        a("s_mov_b32 exec_hi, 0x00030003")
    def xrow(regs, op="v_add_f32"):
        for ins in ("v_permlane16_swap_b32", "v_permlane32_swap_b32"):
            for k0 in range(0, len(regs), 4):
                grp = regs[k0:k0+4]
                for r, t in zip(grp, vxt):
                    a(f"v_mov_b32 v{t}, v{r}")
                if len(grp) < 2:
                    a("s_nop 1")
                elif len(grp) < 3:
                    a("s_nop 0")
                for r, t in zip(grp, vxt):
                    a(f"{ins} v{t}, v{r}")
                for r, t in zip(grp, vxt):
                    a(f"{op} v{r}, v{t}, v{r}")
    vBad = R.alloc()
    def check_tags(regs):
        for r in regs:
            a(f"v_xor_b32 v{r}, s{sTAG}, v{r}")
        a(f"v_or_b32 v{vBad}, v{regs[0]}, v{regs[1]}")
        for k in range(2, len(regs), 2):
            a(f"v_or3_b32 v{vBad}, v{vBad}, v{regs[k]}, v{regs[k+1]}")
        a(f"v_and_b32 v{vBad}, v{vFF}, v{vBad}")
        a(f"v_cmp_ne_u32 vcc, 0, v{vBad}")
    def retry(label_again, label_ok):
        a(f"""
        s_cbranch_vccz {label_ok}
        s_sub_u32 s{sTMO}, s{sTMO}, 1
        s_cbranch_scc1 L_exit
        s_branch {label_again}
        {label_ok}:
        """)

    a(f"""
    v_mov_b32 v{vL}, v0
    s_sub_u32 s{sCW}, s{sWAVE}, 1
    s_lshr_b32 s{sB}, s{sJ}, 2
    s_load_dword s{sE1}, s[{pWS}:{pWS+1}], 0
    v_and_b32 v{vN}, 15, v{vL}
    v_lshrrev_b32 v{vKG}, 4, v{vL}
    v_and_b32 v{vt[0]}, 1, v{vN}
    v_lshlrev_b32 v{vt[0]}, 10, v{vt[0]}
    v_lshl_add_u32 v{vt[0]}, v{vKG}, 4, v{vt[0]}
    s_lshl_b32 s{sT0}, s{sJ}, 7
    v_add_u32 v{vt[0]}, s{sT0}, v{vt[0]}
    v_lshlrev_b32 v{vt[1]}, 4, v{vL}
    global_load_dwordx4 {vr(vXB[0],4)}, v{vt[0]}, s[{pX}:{pX+1}]
    global_load_dwordx4 {vr(vXB[1],4)}, v{vt[0]}, s[{pX}:{pX+1}] offset:64
    s_mov_b32 s{sPG}, 0
    v_lshrrev_b32 v{vR4}, 2, v{vN}
    v_and_b32 v{vC}, 3, v{vN}
    v_mov_b32 v{vFF}, 0xff
    v_mov_b32 v{vMisc}, {MISC}
    v_mov_b32 v{vOne}, 1
    s_cmp_lg_u32 s{sCW}, 3
    s_cbranch_scc1 L_nopf
    global_load_dwordx4 {vr(vGx,4)}, v{vt[1]}, s[{pX}:{pX+1}]
    global_load_dwordx4 {vr(vGx+4,4)}, v{vt[1]}, s[{pX}:{pX+1}] offset:1024
    global_load_dwordx4 {vr(vGx+8,4)}, v{vt[1]}, s[{pGW}:{pGW+1}]
    """)
    if prefetch_code:
        a(f"""
        s_getpc_b64 s[{sT2}:{sT3}]
        L_pc:
        s_lshr_b32 s{sT0}, s2, 3
        s_and_b32 s{sT0}, s{sT0}, 15
        s_lshl_b32 s{sT0}, s{sT0}, 10
        s_sub_u32 s{sT2}, s{sT2}, L_pc-{KN}
        s_subb_u32 s{sT3}, s{sT3}, 0
        s_min_u32 s{sT0}, s{sT0}, L_codeend-{KN}-1024
        s_add_u32 s{sT2}, s{sT2}, s{sT0}
        s_addc_u32 s{sT3}, s{sT3}, 0
        global_load_dwordx4 {vr(vJunk,4)}, v{vt[1]}, s[{sT2}:{sT3}]
        """)
    a.label("L_nopf")
    a(f"""
    s_mov_b32 s{rWS}, s{pWS}
    s_mov_b32 s{rWS+1}, s{pWS+1}
    s_mov_b32 s{rWS+2}, {WS_SIZE}
    s_mov_b32 s{rWS+3}, 0x20000
    s_lshl_b32 s{sT0}, s{sH}, 3
    s_add_u32 s{sT0}, s{sT0}, s{sJ}
    s_mul_i32 s{sM1}, s{sT0}, 2048
    s_add_u32 s{sM1}, s{sM1}, {WS_M1}
    s_mul_i32 s{sM3}, s{sT0}, 640
    s_add_u32 s{sM3}, s{sM3}, {WS_M3}
    s_lshl_b32 s{sM4}, s{sJ}, 14
    s_lshl_b32 s{sT0}, s{sH}, 9
    s_add_u32 s{sM4}, s{sM4}, s{sT0}
    s_add_u32 s{sM4}, s{sM4}, {WS_M4}
    v_lshl_add_u32 v{vt[0]}, v{vKG}, 3, v{vR4}          ; 8kg + r4
    v_and_b32 v{vt[1]}, 1, v{vKG}
    v_lshl_or_b32 v{vt[2]}, v{vt[1]}, 2, v{vR4}         ; f = r4 | (kg&1)<<2
    v_lshlrev_b32 v{vt[3]}, 8, v{vt[0]}
    v_lshl_add_u32 v{vt[3]}, v{vC}, 3, v{vt[3]}
    v_add_u32 v{vt[3]}, {V_OFF}, v{vt[3]}
    s_lshl_b32 s{sT0}, s{sCW}, 1
    v_xor_b32 v{vTR[0]}, s{sT0}, v{vt[2]}
    v_lshl_add_u32 v{vTR[0]}, v{vTR[0]}, 5, v{vt[3]}
    s_add_u32 s{sT0}, s{sT0}, 1
    v_xor_b32 v{vTR[1]}, s{sT0}, v{vt[2]}
    v_lshl_add_u32 v{vTR[1]}, v{vTR[1]}, 5, v{vt[3]}
    v_lshrrev_b32 v{vt[2]}, 1, v{vR4}
    v_lshl_or_b32 v{vt[3]}, v{vt[1]}, 1, v{vt[2]}
    v_xor_b32 v{vt[3]}, s{sCW}, v{vt[3]}
    v_lshlrev_b32 v{vt[3]}, 5, v{vt[3]}
    v_lshl_add_u32 v{vt[3]}, v{vt[0]}, 7, v{vt[3]}
    v_lshl_add_u32 v{vt[3]}, v{vC}, 3, v{vt[3]}
    v_add_u32 v{vTRG}, {WG_OFF}, v{vt[3]}
    v_add_u32 v{vTRS}, {S2_OFF}, v{vt[3]}
    s_lshl_b32 s{sT0}, s{sCW}, 14
    v_lshlrev_b32 v{vt[0]}, 8, v{vN}
    v_add_u32 v{vt[0]}, s{sT0}, v{vt[0]}
    v_xor_b32 v{vt[1]}, v{vKG}, v{vN}
    """)
    for t in range(4):
        a(f"v_xor_b32 v{vt[2]}, {4*t}, v{vt[1]}")
        a(f"v_lshl_add_u32 v{vKA[t]}, v{vt[2]}, 4, v{vt[0]}")
    stamp(1)

    vA = R.alloc(16, 4)
    vAcc = R.alloc(8, 4)
    vM1 = R.alloc()
    a(f"""
    v_mul_u32_u24 v{vM1}, 1024, v{vN}
    v_lshl_add_u32 v{vM1}, v{vKG}, 4, v{vM1}
    """)
    wait_prog(16, "L_w16")
    stamp(2)
    for ti in range(2):
        for u in range(2):
            f = vA + (ti*2 + u) * 4
            a(f"ds_read_b64_tr_b16 {vr(f,2)}, v{vTR[ti]} offset:{WQ_OFF - V_OFF + u*8192}")
            a(f"ds_read_b64_tr_b16 {vr(f+2,2)}, v{vTR[ti]} offset:{WQ_OFF - V_OFF + u*8192+1024}")
    a(f"""
    s_add_u32 s{sE1}, s{sE1}, 1
    s_and_b32 s{sTAG}, s{sE1}, 0xff
    s_waitcnt vmcnt(0) lgkmcnt(0)
    """)
    for u in range(2):
        for ti in range(2):
            f = vA + (ti*2 + u) * 4
            c = "0" if u == 0 else vr(vAcc + 4*ti, 4)
            a(f"v_mfma_f32_16x16x32_bf16 {vr(vAcc+4*ti,4)}, {vr(f,4)}, {vr(vXB[u],4)}, {c}")
    a(f"""
    s_lshl_b32 s{sT0}, s{sCW}, 7
    s_add_u32 s{sT0}, s{sT0}, s{sM1}
    s_nop 6
    """)
    for i in range(8):
        tag(vAcc + i)
    exec_n_lt2()
    a(f"s_add_u32 s{sT1}, s{sT0}, {WS_M1L - WS_M1}")
    a(f"buffer_store_dwordx4 {vr(vAcc,4)}, v{vM1}, s[{rWS}:{rWS+3}], s{sT1} offen")
    a(f"buffer_store_dwordx4 {vr(vAcc+4,4)}, v{vM1}, s[{rWS}:{rWS+3}], s{sT1} offen offset:64")
    sMODE, sDL1, sDL3, sIDW, sXCC = 60, 69, 70, 100, 101
    a(f"""
    s_getreg_b32 s{sXCC}, hwreg(HW_REG_XCC_ID)
    s_add_u32 s{sIDW}, s{sE1}, 0x5bd1e995
    s_cmp_lg_u32 s{sCW}, 0
    s_cbranch_scc1 L_noid
    s_lshl_b32 s{sT1}, s{sH}, 7
    s_lshl_b32 s{sT2}, s{sJ}, 3
    s_add_u32 s{sT1}, s{sT1}, s{sT2}
    s_add_u32 s{sT1}, s{sT1}, {WS_ID}
    v_mov_b32 v{vt[2]}, s{sIDW}
    v_mov_b32 v{vt[3]}, s{sXCC}
    v_mov_b32 v{vt[0]}, 0
    s_mov_b64 exec, 1
    buffer_store_dwordx2 v[{vt[2]}:{vt[3]}], v{vt[0]}, s[{rWS}:{rWS+3}], s{sT1} offen
    L_noid:
    s_mov_b64 exec, -1
    """)
    stamp(3)
    vAcc2 = R.alloc(8, 4)
    a(f"""
    s_cmp_eq_u32 s{sCW}, 3
    s_cbranch_scc1 L_gate
    """)
    wait_prog(32, "L_w32")
    for mi_, off in enumerate((0, 8192)):
        for u in range(2):
            f = vA + (mi_*2 + u) * 4
            a(f"ds_read_b64_tr_b16 {vr(f,2)}, v{vTRG} offset:{off + u*4096}")
            a(f"ds_read_b64_tr_b16 {vr(f+2,2)}, v{vTRG} offset:{off + u*4096 + 512}")
    a("s_waitcnt lgkmcnt(0)")
    for u in range(2):
        for mi_ in range(2):
            f = vA + (mi_*2 + u) * 4
            c = "0" if u == 0 else vr(vAcc2 + 4*mi_, 4)
            a(f"v_mfma_f32_16x16x32_bf16 {vr(vAcc2+4*mi_,4)}, {vr(f,4)}, {vr(vXB[u],4)}, {c}")
    signal(S1DONE)
    a(f"""
    s_lshl_b32 s{sT0}, s{sCW}, 6
    s_add_u32 s{sT0}, s{sT0}, s{sM1}
    s_nop 5
    """)
    for i in range(8):
        tag(vAcc2 + i)
    exec_n_lt2()
    a(f"s_add_u32 s{sT1}, s{sT0}, {WS_M1L - WS_M1}")
    a(f"buffer_store_dwordx4 {vr(vAcc2,4)}, v{vM1}, s[{rWS}:{rWS+3}], s{sT1} offen offset:512")
    a(f"buffer_store_dwordx4 {vr(vAcc2+4,4)}, v{vM1}, s[{rWS}:{rWS+3}], s{sT1} offen offset:768")
    a("s_mov_b64 exec, -1")
    a("s_branch L_p3")
    a.label("L_gate")
    signal(S1DONE)
    gx0, gx1, gw = vGx, vGx + 4, vGx + 8
    z = [vt[2], vt[3]]
    a(f"v_mov_b32 v{z[0]}, 0")
    a(f"v_mov_b32 v{z[1]}, 0")
    for i in range(4):
        a(f"v_lshlrev_b32 v{vt[4]}, 16, v{gw+i}")
        a(f"v_and_b32 v{vt[5]}, 0xffff0000, v{gw+i}")
        for bi, gx in enumerate((gx0, gx1)):
            a(f"v_lshlrev_b32 v{vt[6]}, 16, v{gx+i}")
            a(f"v_fmac_f32 v{z[bi]}, v{vt[6]}, v{vt[4]}")
            a(f"v_and_b32 v{vt[6]}, 0xffff0000, v{gx+i}")
            a(f"v_fmac_f32 v{z[bi]}, v{vt[6]}, v{vt[5]}")
    for rot in (8, 4, 2, 1):
        a("s_nop 1")
        for bi in range(2):
            a(f"v_add_f32_dpp v{z[bi]}, v{z[bi]}, v{z[bi]} row_ror:{rot} row_mask:0xf bank_mask:0xf")
    xrow(z)
    a(f"""
    v_mul_f32 v{z[0]}, {hex(f2u(-1.4426950408889634))}, v{z[0]}
    v_mul_f32 v{z[1]}, {hex(f2u(-1.4426950408889634))}, v{z[1]}
    v_exp_f32 v{z[0]}, v{z[0]}
    v_exp_f32 v{z[1]}, v{z[1]}
    s_nop 0
    v_add_f32 v{z[0]}, 1.0, v{z[0]}
    v_add_f32 v{z[1]}, 1.0, v{z[1]}
    v_rcp_f32 v{z[0]}, v{z[0]}
    v_rcp_f32 v{z[1]}, v{z[1]}
    s_nop 0
    s_mov_b64 exec, 1
    ds_write_b64 v{vMisc}, v[{z[0]}:{z[1]}] offset:{GV}
    s_mov_b64 exec, -1
    """)
    a.label("L_p3")
    stamp(4)
    if exit_after == "p2":
        a("s_endpgm")
    R.release(vGx, 12)
    vG4 = R.alloc(16, 4)
    vId = R.alloc(2, 2)
    def gstores():
        lab = a.newlabel("L_gs")
        a(f"""
        s_lshl_b32 s{sT1}, s{sCW}, 7
        s_add_u32 s{sT1}, s{sT1}, s{sM1}
        s_lshl_b32 s{sT2}, s{sCW}, 6
        s_add_u32 s{sT2}, s{sT2}, s{sM1}
        """)
        exec_n_lt2()
        a(f"""
        buffer_store_dwordx4 {vr(vAcc,4)}, v{vM1}, s[{rWS}:{rWS+3}], s{sT1} offen sc1
        buffer_store_dwordx4 {vr(vAcc+4,4)}, v{vM1}, s[{rWS}:{rWS+3}], s{sT1} offen offset:64 sc1
        s_cmp_eq_u32 s{sCW}, 3
        s_cbranch_scc1 {lab}
        buffer_store_dwordx4 {vr(vAcc2,4)}, v{vM1}, s[{rWS}:{rWS+3}], s{sT2} offen offset:512 sc1
        buffer_store_dwordx4 {vr(vAcc2+4,4)}, v{vM1}, s[{rWS}:{rWS+3}], s{sT2} offen offset:768 sc1
        {lab}:
        s_mov_b64 exec, -1
        """)
    def q_loads(delta):
        a(f"s_add_u32 s{sT1}, s{sT0}, {delta}")
        for i in range(4):
            a(f"buffer_load_dwordx4 {vr(vG4+4*i,4)}, v{vt[1]}, s[{rWS}:{rWS+3}], s{sT1} offen sc1")
            if i < 3:
                a(f"s_add_u32 s{sT1}, s{sT1}, 4096")
    a(f"""
    s_cmp_lg_u32 s{sCW}, 0
    s_cbranch_scc1 L_waitm
    s_mul_i32 s{sT0}, s{sH}, {8*2048}
    s_mul_i32 s{sT1}, s{sB}, 1024
    s_add_u32 s{sT0}, s{sT0}, s{sT1}
    s_add_u32 s{sT0}, s{sT0}, {WS_M1}
    s_add_u32 s40, s{pWS}, s{sT0}
    s_addc_u32 s41, s{pWS+1}, 0
    v_lshrrev_b32 v{vt[1]}, 5, v{vL}
    v_mul_u32_u24 v{vt[1]}, 2048, v{vt[1]}
    v_and_b32 v{vt[2]}, 31, v{vL}
    v_lshl_add_u32 v{vt[1]}, v{vt[2]}, 4, v{vt[1]}
    v_and_b32 v{vt[3]}, 7, v{vL}
    v_lshlrev_b32 v{vt[3]}, 3, v{vt[3]}
    s_lshl_b32 s42, s{sH}, 7
    s_add_u32 s42, s42, {WS_ID}
    s_mov_b32 s43, {0 if forceglobal else ntry}
    s_cmp_eq_u32 s43, 0
    s_cbranch_scc1 L_needg
    L_ql:
    buffer_load_dwordx2 {vr(vId,2)}, v{vt[3]}, s[{rWS}:{rWS+3}], s42 offen sc1
    """)
    q_loads(WS_M1L - WS_M1)
    a("s_waitcnt vmcnt(0)")
    check_tags([vG4 + i for i in range(16)])
    a(f"""
    s_mov_b64 s[44:45], vcc
    v_cmp_ne_u32 vcc, s{sIDW}, v{vId}
    s_or_b64 s[44:45], s[44:45], vcc
    s_cmp_eq_u64 s[44:45], 0
    s_cbranch_scc0 L_ql_again
    v_cmp_ne_u32 vcc, s{sXCC}, v{vId+1}
    s_cbranch_vccnz L_needg
    s_mov_b32 s{sT2}, 1
    s_branch L_setmode
    L_ql_again:
    s_sub_u32 s43, s43, 1
    s_cmp_lg_u32 s43, 0
    s_cbranch_scc1 L_ql
    L_needg:
    v_mov_b32 v{vt[4]}, 2
    s_mov_b64 exec, 1
    ds_write_b32 v{vMisc}, v{vt[4]} offset:{MODE}
    s_mov_b64 exec, -1
    """)
    gstores()
    a("L_hint1:")
    for jj in range(8):
        a(f"s_load_dwordx2 s[{44+2*jj}:{45+2*jj}], s[40:41], {jj*2048 + 504} glc")
    a("s_waitcnt lgkmcnt(0)")
    a(f"s_xor_b32 s42, s44, s{sTAG}")
    for k in range(45, 60):
        a(f"s_xor_b32 s43, s{k}, s{sTAG}")
        a(f"s_or_b32 s42, s42, s43")
    a(f"""
    s_and_b32 s42, s42, 0xff
    s_cbranch_scc0 L_gq
    s_sub_u32 s{sTMO}, s{sTMO}, 1
    s_cbranch_scc1 L_exit
    s_branch L_hint1
    L_gq:
    """)
    q_loads(0)
    a("s_waitcnt vmcnt(0)")
    check_tags([vG4 + i for i in range(16)])
    a(f"""
    s_mov_b32 s{sT2}, 2
    s_cbranch_vccz L_setmode
    s_sub_u32 s{sTMO}, s{sTMO}, 1
    s_cbranch_scc1 L_exit
    s_branch L_gq
    L_setmode:
    v_mov_b32 v{vt[4]}, s{sT2}
    s_mov_b64 exec, 1
    ds_write_b32 v{vMisc}, v{vt[4]} offset:{MODE}
    s_mov_b64 exec, -1
    """)
    stamp(5)
    for e in range(4):
        a(f"v_add_f32 v{vG4+e}, v{vG4+e}, v{vG4+4+e}")
        a(f"v_add_f32 v{vG4+8+e}, v{vG4+8+e}, v{vG4+12+e}")
    for e in range(4):
        a(f"v_add_f32 v{vG4+e}, v{vG4+e}, v{vG4+8+e}")
    for e in range(4):
        a(f"v_mov_b32 v{vG4+4+e}, v{vG4+e}")
    for e in range(4):
        a(f"v_permlane32_swap_b32 v{vG4+4+e}, v{vG4+e}")
    for e in range(4):
        a(f"v_add_f32 v{vG4+e}, v{vG4+e}, v{vG4+4+e}")
    a(f"""
    v_cvt_pk_bf16_f32 v{vG4+4}, v{vG4}, v{vG4+1}
    v_cvt_pk_bf16_f32 v{vG4+5}, v{vG4+2}, v{vG4+3}
    v_lshl_add_u32 v{vt[2]}, v{vt[2]}, 3, v{vMisc}
    s_mov_b32 exec_hi, 0
    ds_write_b64 v{vt[2]}, {vr(vG4+4,2)} offset:{QB}
    s_mov_b64 exec, 1
    ds_write_b32 v{vMisc}, v{vOne} offset:{QRDY}
    s_mov_b64 exec, -1
    """)
    a("s_branch L_waitq")
    a(f"""
    L_waitm:
    ds_read_b32 v{vt[7]}, v{vMisc} offset:{MODE}
    s_waitcnt lgkmcnt(0)
    v_readfirstlane_b32 s{sT0}, v{vt[7]}
    s_cmp_lg_u32 s{sT0}, 0
    s_cbranch_scc1 L_waitm_ok
    """)
    spin_tail("L_waitm")
    a(f"""
    L_waitm_ok:
    s_cmp_eq_u32 s{sT0}, 1
    s_cbranch_scc1 L_waitq
    """)
    gstores()
    a.label("L_waitq")
    wait_lds(QRDY, 1, "L_wq")
    a(f"""
    ds_read_b32 v{vt[7]}, v{vMisc} offset:{MODE}
    s_waitcnt lgkmcnt(0)
    v_readfirstlane_b32 s{sMODE}, v{vt[7]}
    s_cmp_eq_u32 s{sMODE}, 1
    s_cselect_b32 s{sDL1}, {WS_M1L - WS_M1}, 0
    s_cselect_b32 s{sDL3}, {WS_M3L - WS_M3}, 0
    """)
    stamp(6)
    if exit_after == "q":
        a("s_endpgm")
    vFoff = R.alloc()
    vF4 = R.alloc(16, 4)
    a(f"""
    v_mul_u32_u24 v{vFoff}, 2048, v{vKG}
    v_lshl_add_u32 v{vFoff}, v{vN}, 4, v{vFoff}
    s_sub_u32 s{sT0}, s{sCW}, 1
    s_and_b32 s{sT1}, s{sT0}, 1
    s_mul_i32 s{sT1}, s{sT1}, 1024
    s_mul_i32 s39, s{sH}, {8*2048}
    s_add_u32 s39, s39, s{sT1}
    s_add_u32 s39, s39, {WS_M1 + 512}
    s_add_u32 s39, s39, s{sDL1}
    s_cmp_gt_u32 s{sT0}, 1
    s_cbranch_scc1 L_noffn1
    """)
    def ffn_loads():
        a(f"""
        v_cmp_gt_u32 vcc, 12, v{vN}
        s_and_b64 exec, exec, vcc
        s_add_u32 s{sT1}, s39, {4*2048}
        buffer_load_dwordx4 {vr(vF4,4)}, v{vFoff}, s[{rWS}:{rWS+3}], s39 offen sc1
        buffer_load_dwordx4 {vr(vF4+4,4)}, v{vFoff}, s[{rWS}:{rWS+3}], s{sT1} offen sc1
        buffer_load_dwordx4 {vr(vF4+8,4)}, v{vFoff}, s[{rWS}:{rWS+3}], s39 offen offset:256 sc1
        buffer_load_dwordx4 {vr(vF4+12,4)}, v{vFoff}, s[{rWS}:{rWS+3}], s{sT1} offen offset:256 sc1
        s_mov_b64 exec, -1
        """)
    ffn_loads()
    a.label("L_noffn1")
    if exit_after == "ffn":
        a("s_waitcnt vmcnt(0)")
        a("s_endpgm")
    vQ = R.alloc(16, 4)
    vKf = R.alloc(64, 4)
    vS = R.alloc(16, 4)
    a(f"""
    v_lshlrev_b32 v{vt[0]}, 4, v{vKG}
    v_add_u32 v{vt[0]}, v{vMisc}, v{vt[0]}
    """)
    for t in range(4):
        a(f"ds_read_b128 {vr(vQ+4*t,4)}, v{vt[0]} offset:{QB + 64*t}")
    a(f"s_lshl_b32 s{sT1}, s{sCW}, 4")
    a(f"s_add_u32 s{sT1}, s{sT1}, 48")
    wait_prog(f"s{sT1}", "L_wk")
    for T in range(4):
        for t in range(4):
            a(f"ds_read_b128 {vr(vKf + 16*T + 4*t, 4)}, v{vKA[t]} offset:{T*4096}")
    for T in range(4):
        a(f"s_waitcnt lgkmcnt({4*(3-T)})")
        for t in range(4):
            c = "0" if t == 0 else vr(vS + 4*T, 4)
            a(f"v_mfma_f32_16x16x32_bf16 {vr(vS+4*T,4)}, {vr(vKf+16*T+4*t,4)}, {vr(vQ+4*t,4)}, {c}")
    vSt = R.alloc(2, 2)
    vMc, vSum = vSt, vSt + 1
    a(f"""
    s_mov_b32 s{sT1}, {hex(f2u(CEXP))}
    s_nop 3
    v_max3_f32 v{vMc}, v{vS}, v{vS+1}, v{vS+2}
    """)
    for k in range(3, 11, 2):
        a(f"v_max3_f32 v{vMc}, v{vMc}, v{vS+k}, v{vS+k+1}")
    a(f"v_max_f32 v{vMc}, v{vMc}, v{vS+11}")
    a("s_nop 1")
    a(f"v_max3_f32 v{vMc}, v{vMc}, v{vS+12}, v{vS+13}")
    a(f"v_max3_f32 v{vMc}, v{vMc}, v{vS+14}, v{vS+15}")
    xrow([vMc], "v_max_f32")
    a(f"""
    v_mul_f32 v{vMc}, s{sT1}, v{vMc}
    v_and_b32 v{vMc}, 0xffffff00, v{vMc}
    """)
    for k in range(16):
        a(f"v_fma_f32 v{vS+k}, v{vS+k}, s{sT1}, -v{vMc}")
    for k in range(16):
        a(f"v_exp_f32 v{vS+k}, v{vS+k}")
    for T in range(4):
        a(f"v_cvt_pk_bf16_f32 v{vKf+2*T}, v{vS+4*T}, v{vS+4*T+1}")
        a(f"v_cvt_pk_bf16_f32 v{vKf+2*T+1}, v{vS+4*T+2}, v{vS+4*T+3}")
    a(f"""
    s_lshl_b32 s{sT0}, s{sCW}, 7
    v_lshl_add_u32 v{vt[1]}, v{vKG}, 3, v{vMisc}
    v_add_u32 v{vt[1]}, s{sT0}, v{vt[1]}
    s_mov_b32 exec_lo, 0x00010001
    s_mov_b32 exec_hi, 0x00010001
    """)
    for T in range(4):
        a(f"ds_write_b64 v{vt[1]}, {vr(vKf+2*T,2)} offset:{PB + 32*T}")
    a("s_mov_b64 exec, -1")
    for k in range(0, 16, 2):
        a(f"v_add_f32 v{vS+k}, v{vS+k}, v{vS+k+1}")
    for k in range(0, 16, 4):
        a(f"v_add_f32 v{vS+k}, v{vS+k}, v{vS+k+2}")
    a(f"v_add_f32 v{vS}, v{vS}, v{vS+4}")
    a(f"v_add_f32 v{vS+8}, v{vS+8}, v{vS+12}")
    a(f"v_add_f32 v{vSum}, v{vS}, v{vS+8}")
    xrow([vSum])
    a(f"""
    s_lshl_b32 s{sT0}, s{sCW}, 3
    v_add_u32 v{vt[0]}, s{sT0}, v{vMisc}
    s_mov_b64 exec, 1
    ds_write_b64 v{vt[0]}, {vr(vSt,2)} offset:{STATW}
    ds_add_u32 v{vMisc}, v{vOne} offset:{BAR}
    s_mov_b64 exec, -1
    """)
    wait_lds(BAR, 4, "L_bar1")
    stamp(7)
    if exit_after == "bar":
        a("s_waitcnt vmcnt(0)")
        a("s_endpgm")
    R.release(vKf, 64); R.release(vQ, 16); R.release(vS, 16)
    vP = R.alloc(32, 4)
    vFw = R.alloc(8, 4)
    a(f"""
    v_lshl_add_u32 v{vt[0]}, v{vKG}, 4, v{vMisc}
    ds_read_b128 {vr(vFw,4)}, v{vMisc} offset:{STATW}
    ds_read_b128 {vr(vFw+4,4)}, v{vMisc} offset:{STATW+16}
    """)
    for u in range(8):
        a(f"ds_read_b128 {vr(vP+4*u,4)}, v{vt[0]} offset:{PB + 64*u}")
    a(f"""
    s_waitcnt lgkmcnt(8)
    v_max3_f32 v{vt[4]}, v{vFw}, v{vFw+2}, v{vFw+4}
    v_max_f32 v{vt[4]}, v{vt[4]}, v{vFw+6}
    """)
    for w in range(4):
        a(f"v_sub_f32 v{vFw+2*w}, v{vFw+2*w}, v{vt[4]}")
    for w in range(4):
        a(f"v_exp_f32 v{vFw+2*w}, v{vFw+2*w}")
    a(f"""
    s_cmp_lg_u32 s{sCW}, 0
    s_cbranch_scc1 L_nostat
    v_mul_f32 v{vt[5]}, v{vFw}, v{vFw+1}
    v_fmac_f32 v{vt[5]}, v{vFw+2}, v{vFw+3}
    v_fmac_f32 v{vt[5]}, v{vFw+4}, v{vFw+5}
    v_fmac_f32 v{vt[5]}, v{vFw+6}, v{vFw+7}
    """)
    tag(vt[4])
    tag(vt[5])
    a(f"""
    v_mov_b32 v{vt[6]}, v{vt[4]}
    v_mov_b32 v{vt[7]}, v{vt[5]}
    v_mov_b32 v{vt[0]}, 0
    s_mov_b64 exec, 1
    s_add_u32 s{sT0}, s{sM3}, {WS_M3L - WS_M3}
    buffer_store_dwordx4 v[{vt[4]}:{vt[7]}], v{vt[0]}, s[{rWS}:{rWS+3}], s{sT0} offen offset:512
    s_cmp_eq_u32 s{sMODE}, 1
    s_cbranch_scc1 L_g3s
    buffer_store_dwordx4 v[{vt[4]}:{vt[7]}], v{vt[0]}, s[{rWS}:{rWS+3}], s{sM3} offen offset:512 sc1
    L_g3s:
    s_mov_b64 exec, -1
    L_nostat:
    """)
    stamp(8)
    vO = R.alloc(32, 4)
    vVf = R.alloc(32, 4)
    def pv_batch(us, need, label):
        if need is None:
            a("s_barrier")
        else:
            wait_prog(need, label, tight=(need >= 152))
        for k, u in enumerate(us):
            f0 = vVf + 8*k
            for ti in range(2):
                a(f"ds_read_b64_tr_b16 {vr(f0+4*ti,2)}, v{vTR[ti]} offset:{u*8192}")
                a(f"ds_read_b64_tr_b16 {vr(f0+4*ti+2,2)}, v{vTR[ti]} offset:{u*8192+1024}")
        for k, u in enumerate(us):
            a(f"s_waitcnt lgkmcnt({4*(len(us)-1-k)})")
            f0 = vVf + 8*k
            w = u >> 1
            for ti in range(2):
                acc = vO + 8*w + 4*ti
                c = "0" if (u & 1) == 0 else vr(acc, 4)
                a(f"v_mfma_f32_16x16x32_bf16 {vr(acc,4)}, {vr(f0+4*ti,4)}, {vr(vP+4*u,4)}, {c}")
    pv_batch([0, 1, 2, 3], 128, "L_wvA")
    vM3 = R.alloc(); vX3 = R.alloc(); vSa = R.alloc(); vSg = R.alloc(2, 2); vSgG = R.alloc(2, 2)
    vWs = R.alloc(4, 4)
    sFB = 47
    def g3_base(delta):
        a(f"""
        s_and_b32 s{sT3}, s{sCW}, 1
        s_lshl_b32 s{sT3}, s{sT3}, 8
        s_add_u32 s41, s40, s{sT3}
        s_add_u32 s41, s41, {delta}
        s_add_u32 s42, s41, 640
        s_add_u32 s43, s41, 1280
        s_add_u32 s44, s41, 1920
        """)
    a(f"""
    v_and_b32 v{vt[0]}, 1, v{vN}
    v_lshlrev_b32 v{vt[1]}, 6, v{vt[0]}
    v_lshl_add_u32 v{vM3}, v{vKG}, 4, v{vt[1]}
    s_lshr_b32 s{sT1}, s{sCW}, 1
    s_lshl_b32 s{sT2}, s{sH}, 3
    s_lshl_b32 s{sT3}, s{sT1}, 2
    s_add_u32 s{sT2}, s{sT2}, s{sT3}
    s_mul_i32 s40, s{sT2}, 640
    s_add_u32 s40, s40, {WS_M3}
    v_lshlrev_b32 v{vX3}, 2, v{vL}
    v_and_b32 v{vSa}, 3, v{vL}
    v_mul_u32_u24 v{vSa}, 640, v{vSa}
    """)
    a(f"s_add_u32 s40, s40, s{sDL3}")
    g3_base(0)
    a(f"""
    s_sub_u32 s{sT0}, s{sCW}, 1
    s_cmp_gt_u32 s{sT0}, 1
    s_cbranch_scc1 L_noffn2
    s_waitcnt vmcnt(0)
    L_ffnchk:
    v_cmp_gt_u32 vcc, 12, v{vN}
    s_and_b64 exec, exec, vcc
    """)
    check_tags([vF4 + i for i in range(16)])
    a(f"""
    s_mov_b64 exec, -1
    s_cbranch_vccz L_ffn_ok
    s_sub_u32 s{sTMO}, s{sTMO}, 1
    s_cbranch_scc1 L_exit
    """)
    ffn_loads()
    a("s_waitcnt vmcnt(0)")
    a("s_branch L_ffnchk")
    a.label("L_ffn_ok")
    gsum = [vF4 + e for e in range(4)]; usum = [vF4 + 8 + e for e in range(4)]
    for e in range(4):
        a(f"v_add_f32 v{vF4+e}, v{vF4+e}, v{vF4+4+e}")
        a(f"v_add_f32 v{vF4+8+e}, v{vF4+8+e}, v{vF4+12+e}")
    xrow(gsum + usum)
    a(f"v_cmp_gt_u32 vcc, 12, v{vN}")
    for e in range(4):
        a(f"v_max_f32 v{gsum[e]}, 0, v{gsum[e]}")
        a(f"v_mul_f32 v{gsum[e]}, v{gsum[e]}, v{usum[e]}")
        a(f"v_cndmask_b32 v{gsum[e]}, 0, v{gsum[e]}, vcc")
    a(f"""
    v_cvt_pk_bf16_f32 v{vF4+4}, v{gsum[0]}, v{gsum[1]}
    v_cvt_pk_bf16_f32 v{vF4+5}, v{gsum[2]}, v{gsum[3]}
    s_lshl_b32 s{sT0}, s{sT0}, 7
    v_lshl_add_u32 v{vt[1]}, v{vN}, 3, v{vMisc}
    v_add_u32 v{vt[1]}, s{sT0}, v{vt[1]}
    s_mov_b64 exec, 0xffff
    ds_write_b64 v{vt[1]}, {vr(vF4+4,2)} offset:{HID}
    s_mov_b64 exec, -1
    L_noffn2:
    """)
    pv_batch([4, 5], 144, "L_wvB")
    a(f"buffer_load_dwordx2 {vr(vSg,2)}, v{vSa}, s[{rWS}:{rWS+3}], s40 offen offset:512 sc1")
    for i in range(8):
        a(f"v_mul_f32 v{vO+i}, v{vFw}, v{vO+i}")
    for i in range(8):
        a(f"v_fmac_f32 v{vO+i}, v{vFw+2}, v{vO+8+i}")
    pv_batch([6], 152, "L_wvC")
    for i in range(8):
        a(f"v_fmac_f32 v{vO+i}, v{vFw+4}, v{vO+16+i}")
    a(f"""
    v_cmp_eq_u32 vcc, 1, v{vt[0]}
    s_lshl_b32 s45, s{sCW}, 7
    s_add_u32 s45, s45, s{sM3}
    s_add_u32 s46, s45, {WS_M3L - WS_M3}
    """)
    for e in range(4):
        a(f"v_cndmask_b32 v{vO+e}, v{vO+e}, v{vO+4+e}, vcc")
    pv_batch([7], None, "L_wvD")
    a("s_nop 7")
    for e in range(4):
        a(f"v_cndmask_b32 v{vO+24+e}, v{vO+24+e}, v{vO+28+e}, vcc")
    for e in range(4):
        a(f"v_fmac_f32 v{vO+e}, v{vFw+6}, v{vO+24+e}")
    for e in range(4):
        tag(vO + e)
    exec_n_lt2()
    a(f"buffer_store_dwordx4 {vr(vO,4)}, v{vM3}, s[{rWS}:{rWS+3}], s46 offen")
    a(f"s_cmp_eq_u32 s{sMODE}, 1")
    a("s_cbranch_scc1 L_g3o")
    a(f"buffer_store_dwordx4 {vr(vO,4)}, v{vM3}, s[{rWS}:{rWS+3}], s45 offen sc1")
    a.label("L_g3o")
    a("s_mov_b64 exec, -1")
    stamp(9)
    R.release(vP, 32); R.release(vVf, 32); R.release(vFw, 8)
    vG3 = vG4
    vG3b = vG4 + 4
    def g3_loads(dst):
        for s_ in range(4):
            a(f"buffer_load_dword v{dst+s_}, v{vX3}, s[{rWS}:{rWS+3}], s{41+s_} offen sc1")
    a("s_waitcnt vmcnt(1)")
    a("L_sg:")
    check_tags([vSg, vSg + 1])
    a(f"""
    s_cbranch_vccz L_sg_ok
    s_sub_u32 s{sTMO}, s{sTMO}, 1
    s_cbranch_scc1 L_exit
    buffer_load_dwordx2 {vr(vSg,2)}, v{vSa}, s[{rWS}:{rWS+3}], s40 offen offset:512 sc1
    s_waitcnt vmcnt(0)
    s_branch L_sg
    L_sg_ok:
    v_mov_b32 v{vt[3]}, v{vSg}
    s_nop 1
    v_max_f32_dpp v{vt[3]}, v{vt[3]}, v{vt[3]} quad_perm:[1,0,3,2] row_mask:0xf bank_mask:0xf
    s_nop 1
    v_max_f32_dpp v{vt[3]}, v{vt[3]}, v{vt[3]} quad_perm:[2,3,0,1] row_mask:0xf bank_mask:0xf
    v_sub_f32 v{vt[3]}, v{vSg}, v{vt[3]}
    v_exp_f32 v{vt[3]}, v{vt[3]}
    s_nop 0
    v_mul_f32 v{vt[4]}, v{vt[3]}, v{vSg+1}
    s_nop 1
    v_add_f32_dpp v{vt[4]}, v{vt[4]}, v{vt[4]} quad_perm:[1,0,3,2] row_mask:0xf bank_mask:0xf
    s_nop 1
    v_add_f32_dpp v{vt[4]}, v{vt[4]}, v{vt[4]} quad_perm:[2,3,0,1] row_mask:0xf bank_mask:0xf
    v_rcp_f32 v{vt[4]}, v{vt[4]}
    s_nop 0
    v_mul_f32 v{vt[3]}, v{vt[3]}, v{vt[4]}
    s_nop 1
    """)
    for s_ in range(4):
        a(f"v_mov_b32_dpp v{vWs+s_}, v{vt[3]} quad_perm:[{s_},{s_},{s_},{s_}] row_mask:0xf bank_mask:0xf")
    vWf = R.alloc(16, 4); vDf = R.alloc(8, 4); vHf = R.alloc(8, 4)
    vYa = R.alloc(4, 4); vYf = R.alloc(4, 4); vGl = R.alloc()
    vAH = R.alloc(); vAG = R.alloc(); vAO = R.alloc(); vAW = R.alloc(); vM4 = R.alloc()
    a(f"""
    v_and_b32 v{vt[0]}, 1, v{vN}
    v_lshlrev_b32 v{vt[1]}, 7, v{vt[0]}
    v_add_u32 v{vt[1]}, v{vMisc}, v{vt[1]}
    v_lshl_add_u32 v{vAH}, v{vKG}, 4, v{vt[1]}
    v_lshl_add_u32 v{vAG}, v{vt[0]}, 2, v{vMisc}
    v_lshlrev_b32 v{vt[1]}, 8, v{vt[0]}
    v_lshl_add_u32 v{vM4}, v{vKG}, 4, v{vt[1]}
    v_add_u32 v{vAO}, v{vMisc}, v{vM4}
    s_lshl_b32 s{sT0}, s{sCW}, 7
    v_lshl_add_u32 v{vAW}, v{vL}, 1, v{vMisc}
    v_add_u32 v{vAW}, s{sT0}, v{vAW}
    s_lshl_b32 s48, s{sCW}, 6
    s_add_u32 s48, s48, s{sM4}
    """)
    g3_loads(vG3)
    a("s_barrier")
    for u in range(4):
        a(f"ds_read_b64_tr_b16 {vr(vWf+4*u,2)}, v{vTRS} offset:{u*4096}")
        a(f"ds_read_b64_tr_b16 {vr(vWf+4*u+2,2)}, v{vTRS} offset:{u*4096+512}")
    a(f"""
    ds_read_b64_tr_b16 {vr(vDf,2)}, v{vTRS} offset:{4*4096}
    ds_read_b64_tr_b16 {vr(vDf+2,2)}, v{vTRS} offset:{4*4096+512}
    ds_read_b64_tr_b16 {vr(vDf+4,2)}, v{vTRS} offset:{5*4096}
    ds_read_b64_tr_b16 {vr(vDf+6,2)}, v{vTRS} offset:{5*4096+512}
    """)
    g3_loads(vG3b)
    stamp(11)
    a(f"""
    L_g3:
    s_waitcnt vmcnt(4)
    """)
    check_tags([vG3 + i for i in range(4)])
    a(f"""
    s_cbranch_vccz L_g3_ok
    s_sub_u32 s{sTMO}, s{sTMO}, 1
    s_cbranch_scc1 L_exit
    """)
    if stamps: a("s_add_u32 s71, s71, 1")
    g3_loads(vG3)
    a("s_waitcnt vmcnt(4)")
    check_tags([vG3b + i for i in range(4)])
    a("s_cbranch_vccz L_g3_okb")
    g3_loads(vG3b)
    vRes = R.alloc()
    def combine(src):
        a(f"v_mul_f32 v{vRes}, v{vWs}, v{src}")
        for k in range(1, 4):
            a(f"v_fmac_f32 v{vRes}, v{vWs+k}, v{src+k}")
    a("s_branch L_g3")
    a.label("L_g3_okb")
    combine(vG3b)
    a("s_branch L_g3_done")
    a.label("L_g3_ok")
    combine(vG3)
    a.label("L_g3_done")
    stamp(12)
    a(f"""
    v_cvt_pk_bf16_f32 v{vRes}, v{vRes}, v{vRes}
    ds_write_b16 v{vAW}, v{vRes} offset:{OB}
    s_waitcnt lgkmcnt(0)
    s_barrier
    ds_read_b128 {vr(vHf,4)}, v{vAH} offset:{HID}
    ds_read_b128 {vr(vHf+4,4)}, v{vAH} offset:{HID+64}
    ds_read_b32 v{vGl}, v{vAG} offset:{GV}
    """)
    vOf = R.alloc(16, 4)
    for u in range(4):
        a(f"ds_read_b128 {vr(vOf+4*u,4)}, v{vAO} offset:{OB + 64*u}")
    a("s_waitcnt lgkmcnt(4)")
    a(f"v_mfma_f32_16x16x32_bf16 {vr(vYf,4)}, {vr(vDf,4)}, {vr(vHf,4)}, 0")
    for u in range(4):
        a(f"s_waitcnt lgkmcnt({3-u})")
        c = "0" if u == 0 else vr(vYa, 4)
        a(f"v_mfma_f32_16x16x32_bf16 {vr(vYa,4)}, {vr(vWf+4*u,4)}, {vr(vOf+4*u,4)}, {c}")
    a(f"v_mfma_f32_16x16x32_bf16 {vr(vYf,4)}, {vr(vDf+4,4)}, {vr(vHf+4,4)}, {vr(vYf,4)}")
    a(f"""
    v_sub_f32 v{vt[0]}, 1.0, v{vGl}
    s_nop 6
    """)
    for e in range(4):
        a(f"v_mul_f32 v{vYa+e}, v{vGl}, v{vYa+e}")
    for e in range(4):
        a(f"v_fmac_f32 v{vYa+e}, v{vt[0]}, v{vYf+e}")
    for e in range(4):
        tag(vYa + e)
    exec_n_lt2()
    a(f"buffer_store_dwordx4 {vr(vYa,4)}, v{vM4}, s[{rWS}:{rWS+3}], s48 offen sc1")
    a("s_mov_b64 exec, -1")
    a(f"""
    s_lshl_b32 s{sT0}, s{sJ}, 2
    s_cmp_lg_u32 s{sT0}, s{sH}
    s_cbranch_scc1 L_done
    s_lshl_b32 s{sT0}, s{sJ}, 14
    s_lshl_b32 s{sT1}, s{sCW}, 7
    s_add_u32 s{sT0}, s{sT0}, s{sT1}
    s_add_u32 s40, s{sT0}, {WS_M4}
    s_add_u32 s41, s40, 4096
    s_add_u32 s42, s40, 8192
    s_add_u32 s43, s40, 12288
    v_lshrrev_b32 v{vt[1]}, 3, v{vL}
    v_lshlrev_b32 v{vt[1]}, 9, v{vt[1]}
    v_and_b32 v{vt[2]}, 7, v{vL}
    v_lshl_add_u32 v{vt[1]}, v{vt[2]}, 4, v{vt[1]}
    s_lshr_b32 s{sT0}, s{sCW}, 1
    s_lshl_b32 s{sT0}, s{sT0}, 10
    s_and_b32 s{sT1}, s{sCW}, 1
    s_lshl_b32 s{sT1}, s{sT1}, 6
    s_add_u32 s{sT0}, s{sT0}, s{sT1}
    s_lshl_b32 s{sT1}, s{sJ}, 7
    s_add_u32 s{sT0}, s{sT0}, s{sT1}
    v_lshlrev_b32 v{vt[2]}, 3, v{vt[2]}
    v_lshl_add_u32 v{vt[2]}, v{vKG}, 1, v{vt[2]}
    v_add_u32 v{vt[2]}, s{sT0}, v{vt[2]}
    L_g4:
    """)
    for i in range(4):
        a(f"buffer_load_dwordx4 {vr(vG4+4*i,4)}, v{vt[1]}, s[{rWS}:{rWS+3}], s{40+i} offen sc1")
    a("s_waitcnt vmcnt(0)")
    check_tags([vG4 + i for i in range(16)])
    retry("L_g4", "L_g4_ok")
    for e in range(4):
        a(f"v_add_f32 v{vG4+e}, v{vG4+e}, v{vG4+4+e}")
        a(f"v_add_f32 v{vG4+8+e}, v{vG4+8+e}, v{vG4+12+e}")
    for e in range(4):
        a(f"v_add_f32 v{vG4+e}, v{vG4+e}, v{vG4+8+e}")
    a(f"""
    s_nop 0
    v_permlane32_swap_b32 v{vG4}, v{vG4+2}
    v_permlane32_swap_b32 v{vG4+1}, v{vG4+3}
    v_add_f32 v{vG4}, v{vG4}, v{vG4+2}
    v_add_f32 v{vG4+1}, v{vG4+1}, v{vG4+3}
    s_nop 1
    v_permlane16_swap_b32 v{vG4}, v{vG4+1}
    v_add_f32 v{vG4}, v{vG4}, v{vG4+1}
    s_nop 1
    v_add_f32_dpp v{vG4}, v{vG4}, v{vG4} row_ror:8 row_mask:0xf bank_mask:0xf
    v_cvt_pk_bf16_f32 v{vG4}, v{vG4}, v{vG4}
    s_mov_b32 exec_lo, 0x00ff00ff
    s_mov_b32 exec_hi, 0x00ff00ff
    global_store_short v{vt[2]}, v{vG4}, s[{pOUT}:{pOUT+1}]
    s_or_b32 s{sT0}, s{sJ}, s{sCW}
    s_cmp_lg_u32 s{sT0}, 0
    s_cbranch_scc1 L_done
    s_mov_b64 exec, 1
    v_mov_b32 v{vt[0]}, 0
    v_mov_b32 v{vt[1]}, s{sE1}
    global_store_dword v{vt[0]}, v{vt[1]}, s[{pWS}:{pWS+1}] sc1
    L_done:
    """)
    stamp(13)
    dump_stamps(vt[0], vt[1], [(6, 2), (7, 3), (8, 5), (9, 6), (10, 7), (11, 9), (12, 11), (13, 12), (14, 13)])
    a.label("L_exit")
    a("s_endpgm")
    a.label("L_codeend")
    nv = R.hi
    txt = (f"; @launch grid=(256,1,1) block=(320,1,1) lds={LDS_BYTES}\n" + HEAD + kernel_begin(KN) + a.text()
           + kernel_desc(KN, nv, sgpr=102))
    return txt

if __name__ == "__main__":
    import argparse
    ap = argparse.ArgumentParser()
    ap.add_argument("-o", default="main.s"); ap.add_argument("--stamps", action="store_true")
    ap.add_argument("-W", type=int, default=28)
    ap.add_argument("--nopf", action="store_true")
    ap.add_argument("--forceglobal", action="store_true")
    ap.add_argument("--ntry", type=int, default=3)
    ap.add_argument("--m1st", default="sc1"); ap.add_argument("--m1ld", default="sc1")
    ap.add_argument("--table", default="6,5,6,5,6,5,5,5")
    ap.add_argument("--exit", default=None)
    ap.add_argument("--loaderonly", action="store_true")
    ap.add_argument("--rot", type=int, default=17)
    ap.add_argument("--vsplit", type=int, default=0)
    ap.add_argument("--cset", default=None); ap.add_argument("--lset", default=None)
    ap.add_argument("--W2", type=int, default=None)
    ap.add_argument("--dbg", action="store_true")
    ap.add_argument("--nont", action="store_true")
    ap.add_argument("--noxcd", action="store_true")
    x = ap.parse_args()
    fl = "" if x.nont else "nt"
    open(x.o, "w").write(gen(W=x.W, W2=x.W2, forceglobal=x.forceglobal, ntry=x.ntry, m1st=x.m1st, m1ld=x.m1ld, table=tuple(int(c) for c in x.table.split(',')), exit_after=x.exit, loaderonly=x.loaderonly, rot=x.rot, vsplit=x.vsplit, cset=None if x.cset is None else [int(i) for i in x.cset.split(',')], lset=None if x.lset is None else [int(i) for i in x.lset.split(',')], stamps=x.stamps or x.dbg, dbgstamps=x.dbg, prefetch_code=not x.nopf,
                             wflags=fl, gflags=fl, kvflags=fl, xcdmap=not x.noxcd))
```

```python
import sys, math, struct
from asmgen import *

K_OFF = 0
V_OFF = 65536
WQ_OFF = V_OFF + 32768
WG_OFF = V_OFF + 49152
WU_OFF = V_OFF + 57344
S2_OFF = 131072
MISC = 155648
PROG, S1DONE, BAR, QRDY = 0, 4, 8, 12
MODE = 56
STATW, GV = 16, 48
QB, HID, PB, OB = 64, 320, 576, 1088
LDS_BYTES = 157696
WS_ID = 0x8000
WS_M1 = 0x10000
WS_M3 = 0x100000
WS_M4 = 0x140000
WS_M3L = 0x180000
WS_M1L = 0x280000
WS_STAMP = 0x200000
WS_SIZE = 0x400000
CEXP = 1.4426950408889634 / math.sqrt(128.0)

def f2u(x):
    return struct.unpack("<I", struct.pack("<f", x))[0]

class Regs:
    def __init__(self, lo, hi):
        self.free = list(range(lo, hi))
        self.hi = lo
    def alloc(self, n=1, align=1):
        if n > 1 and align == 1:
            align = 2
        for s in self.free:
            if s % align == 0 and all((s + i) in self.free for i in range(n)):
                for i in range(n):
                    self.free.remove(s + i)
                self.hi = max(self.hi, s + n)
                return s
        raise RuntimeError("out of registers")
    def release(self, s, n=1):
        for i in range(n):
            assert (s + i) not in self.free
            self.free.append(s + i)
        self.free.sort()

def vr(b, n=1):
    return f"v{b}" if n == 1 else f"v[{b}:{b+n-1}]"

def gen(W=28, stamps=False, dbgstamps=False, wflags="nt", gflags="nt", kvflags="nt", prefetch_code=True, xcdmap=True,
        sleep=1, W2=None, vsplit=0, cset=None, lset=None, rot=17, loaderonly=False, exit_after=None, forceglobal=False, ntry=3, m1st='sc1', m1ld='sc1', table=(8, 8, 8, 8, 5, 1, 4, 1)):
    assert sum(table) == 43 and max(table) <= 6
    tabC = sum(c << (4*x) for x, c in enumerate(table))
    pre = [sum(table[:x]) for x in range(8)]
    tabP = sum(p << (8*x) for x, p in enumerate(pre))
    W2 = W2 or W
    a = Asm()
    KN = NAME + "_kernel"
    sWAVE, sH, sJ, sTAG, sE1 = 3, 4, 5, 6, 7
    pX, pK, pV, pWQ, pWO, pBX, pWG, pWU = 8, 10, 12, 14, 16, 18, 20, 22
    pWD, pGW, pOUT, pWS = 24, 26, 28, 30
    sU, sTMO, sT0, sT1, sT2, sT3 = 60, 61, 62, 63, 64, 65
    sCW, sB, sPG = 66, 67, 68
    sC = 58 + 12
    STAMP0 = 72
    role = ["entry"]
    def stamp(idx):
        sel = lset if role[0] == "loader" else cset
        if stamps and (sel is None or idx in sel):
            a(f"s_memrealtime s[{STAMP0+2*idx}:{STAMP0+2*idx+1}]")
            a("s_waitcnt lgkmcnt(0)")
    def dump_stamps(vtmp, vaddr, dbg_slots=None):
        if not stamps:
            return
        if dbgstamps:
            lab = a.newlabel("L_nodbg")
            a(f"""
            s_cmp_lg_u32 s2, 0
            s_cbranch_scc1 {lab}
            s_cmp_gt_u32 s{sWAVE}, 1
            s_cbranch_scc1 {lab}
            s_load_dwordx2 s[{sT2}:{sT3}], s[0:1], 88
            s_waitcnt lgkmcnt(0)
            s_mov_b64 exec, 1
            v_mov_b32 v{vaddr}, 0
            """)
            for slot, idx in dbg_slots:
                a(f"s_sub_u32 s{sT0}, s{STAMP0+2*idx}, s{STAMP0}")
                a(f"v_mov_b32 v{vtmp}, s{sT0}")
                a(f"global_store_dword v{vaddr}, v{vtmp}, s[{sT2}:{sT3}] offset:{4*slot}")
                a("s_nop 1")
            a("s_waitcnt vmcnt(0)")
            a.label(lab)
            return
        a(f"""
        s_mov_b64 exec, 1
        s_lshl_b32 s{sT0}, s2, 3
        s_add_u32 s{sT0}, s{sT0}, s{sWAVE}
        s_lshl_b32 s{sT0}, s{sT0}, 6
        s_add_u32 s{sT0}, s{sT0}, {WS_STAMP}
        s_add_u32 s{sT2}, s{pWS}, s{sT0}
        s_addc_u32 s{sT3}, s{pWS+1}, 0
        v_mov_b32 v{vaddr}, 0
        """)
        for i in range(14):
            a(f"v_mov_b32 v{vtmp}, s{STAMP0+2*i}")
            a(f"global_store_dword v{vaddr}, v{vtmp}, s[{sT2}:{sT3}] offset:{4*i}")
            a("s_nop 1")
        for i, r in ((14, 71), (15, 71)):
            a(f"v_mov_b32 v{vtmp}, s{r}")
            a(f"global_store_dword v{vaddr}, v{vtmp}, s[{sT2}:{sT3}] offset:{4*i}")
            a("s_nop 1")
        a("s_waitcnt vmcnt(0)")

    def ffn_range():
        a(f"""
        s_lshr_b32 s{sT0}, s{sH}, 2
        s_lshl_b32 s{sT1}, s{sT0}, 2
        s_lshr_b32 s{sC}, {hex(tabC)}, s{sT1}
        s_and_b32 s{sC}, s{sC}, 15
        s_lshl_b32 s{sT1}, s{sT0}, 3
        s_mov_b32 s{sT2}, {hex(tabP & 0xffffffff)}
        s_mov_b32 s{sT3}, {hex(tabP >> 32)}
        s_lshr_b64 s[{sT2}:{sT3}], s[{sT2}:{sT3}], s{sT1}
        s_and_b32 s{sU}, s{sT2}, 0xff
        s_lshl_b32 s{sU}, s{sU}, 2
        s_and_b32 s{sT0}, s{sH}, 3
        s_mul_i32 s{sT0}, s{sT0}, s{sC}
        s_add_u32 s{sU}, s{sU}, s{sT0}
        """)

    vRow4, vSl, vCb = 1, 2, 3
    vWQ = [8, 9]; vV = [10, 11]; vK = [12, 13, 14, 15]; vO = [16, 17]; vG = [18, 19]
    rK, rV, rWQ, rWO, rWG, rWU, rWD = 32, 36, 40, 44, 48, 52, 56
    sOff, sKV, sCnt, sN, sLast = 66, 67, 68, 69, 59 + 41
    a(f"""
    s_cmp_ge_u32 s2, 256
    s_cbranch_scc1 L_exit
    s_load_dwordx16 s[8:23], s[0:1], 0
    s_load_dwordx4 s[24:27], s[0:1], 64
    s_load_dwordx2 s[28:29], s[0:1], 80
    s_load_dwordx2 s[30:31], s[0:1], 96
    """)
    if stamps:
        for i in range(14):
            a(f"s_mov_b32 s{STAMP0+2*i}, 0")
        a("s_mov_b32 s71, 0")
        a(f"s_memrealtime s[{STAMP0}:{STAMP0+1}]")
    a(f"""
    v_lshrrev_b32 v1, 6, v0
    v_and_b32 v0, 63, v0
    s_and_b32 s{sT0}, s2, 7
    s_lshr_b32 s{sT1}, s2, 3
    v_readfirstlane_b32 s{sWAVE}, v1
    s_lshr_b32 s{sH}, s{sT1}, 3
    s_lshl_b32 s{sT0}, s{sT0}, 2
    s_add_u32 s{sH}, s{sH}, s{sT0}
    s_and_b32 s{sJ}, s{sT1}, 7
    {"" if xcdmap else f"s_lshr_b32 s{sH}, s2, 3"}
    {"" if xcdmap else f"s_and_b32 s{sJ}, s2, 7"}
    v_mov_b32 v4, 0
    v_mov_b32 v5, 0
    v_mov_b32 v6, 0
    v_mov_b32 v7, 0
    v_mov_b32 v26, {MISC}
    s_mov_b64 exec, 1
    ds_write_b128 v26, v[4:7]
    ds_write_b32 v26, v4 offset:{MODE}
    s_mov_b64 exec, -1
    v_lshrrev_b32 v{vRow4}, 4, v0
    v_and_b32 v{vSl}, 15, v0
    v_lshrrev_b32 v{vCb}, 1, v{vSl}
    v_xor_b32 v{vCb}, v{vCb}, v{vRow4}
    v_and_b32 v5, 1, v0
    v_lshlrev_b32 v5, 4, v5
    v_lshl_or_b32 v6, v{vCb}, 5, v5
    v_xor_b32 v7, 0x80, v6
    v_lshl_add_u32 v{vWQ[0]}, v{vRow4}, 13, v6
    v_lshl_add_u32 v{vWQ[1]}, v{vRow4}, 13, v7
    s_lshl_b32 s{sOff}, s{sJ}, 19
    s_lshl_b32 s{sT0}, s{sH}, 8
    s_add_u32 s{sOff}, s{sOff}, s{sT0}
    s_mov_b32 s{sN}, {1 - W}
    s_mov_b32 s{sLast}, 0
    s_mov_b32 s{sTMO}, 1000000
    s_mov_b32 s{rWQ+2}, {512*4096*2}
    s_mov_b32 s{rWQ+3}, 0x20000
    s_cmp_lg_u32 s{sWAVE}, 0
    s_waitcnt lgkmcnt(0)
    s_barrier
    s_cbranch_scc1 L_compute
    s_mov_b32 s{rWQ}, s{pWQ}
    s_mov_b32 s{rWQ+1}, s{pWQ+1}
    s_setprio 3
    """)
    role[0] = "loader"
    stamp(1)
    NL = 184
    def srd(r, p, size):
        a(f"""
        s_mov_b32 s{r}, s{p}
        s_mov_b32 s{r+1}, s{p+1}
        s_mov_b32 s{r+2}, {size}
        s_mov_b32 s{r+3}, 0x20000
        """)
    sRel = 101
    def stream(name, cnt, unr, srdr, voffs, lds0, step, fl, pre=None, wait=None, rotate=False):
        Wc = wait or W
        a(f"s_mov_b32 m0, {lds0}")
        if pre:
            pre()
        a(f"s_mov_b32 s{sCnt}, {cnt // unr}")
        a.label(f"L_ld_{name}")
        for i in range(unr):
            a(f"buffer_load_dwordx4 v{voffs[i]}, s[{srdr}:{srdr+3}], s{sOff} offen {fl} lds")
            a(f"s_add_u32 m0, m0, 1024")
            if rotate:
                a(f"s_add_u32 s{sRel}, s{sRel}, 1024")
                a(f"s_and_b32 s{sRel}, s{sRel}, 0xffff")
                a(f"s_add_u32 s{sOff}, s{sKV}, s{sRel}")
            else:
                a(f"s_add_u32 s{sOff}, s{sOff}, {step}")
            a(f"s_waitcnt vmcnt({Wc-1})")
        a(f"""
        s_add_i32 s{sN}, s{sN}, {unr}
        s_max_i32 s{sLast}, s{sN}, s{sLast}
        v_mov_b32 v27, s{sLast}
        s_mov_b64 exec, 1
        ds_write_b32 v26, v27 offset:{PROG}
        s_mov_b64 exec, -1
        s_sub_u32 s{sCnt}, s{sCnt}, 1
        s_cmp_lg_u32 s{sCnt}, 0
        s_cbranch_scc1 L_ld_{name}
        """)
    stream("wq", 16, 4, rWQ, [vWQ[0], vWQ[0], vWQ[1], vWQ[1]], WQ_OFF, 4*8192, wflags)
    stamp(2)
    a(f"""
    v_lshl_add_u32 v{vV[0]}, v{vRow4}, 8, v6
    v_lshl_add_u32 v{vV[1]}, v{vRow4}, 8, v7
    v_lshrrev_b32 v20, 3, v0
    v_and_b32 v21, 7, v0
    v_lshrrev_b32 v21, 1, v21
    v_and_b32 v22, 1, v{vRow4}
    v_xor_b32 v21, v21, v22
    v_mul_u32_u24 v23, 2752, v20
    v_mov_b32 v24, 0x7fff0000
    """)
    ffn_range()
    for var in range(2):
        a(f"""
        v_xor_b32 v22, {2*var}, v21
        v_lshl_or_b32 v25, v22, 5, v5
        v_lshrrev_b32 v22, 4, v25
        v_cmp_le_u32 vcc, s{sC}, v22
        v_lshl_add_u32 v{vO[var]}, v20, 10, v25
        v_add_u32 v{vG[var]}, v23, v25
        v_cndmask_b32 v{vG[var]}, v{vG[var]}, v24, vcc
        """)
    srd(rWG, pWG, 512*1376*2); srd(rWU, pWU, 512*1376*2)
    def pre_g():
        a(f"s_mul_i32 s{sOff}, s{sJ}, {64*2752}")
        a(f"s_lshl_b32 s{sT0}, s{sU}, 4")
        a(f"s_add_u32 s{sOff}, s{sOff}, s{sT0}")
    stream("wg", 8, 4, rWG, [vG[0], vG[1], vG[0], vG[1]], WG_OFF, 8*2752, gflags, pre_g)
    stream("wu", 8, 4, rWU, [vG[0], vG[1], vG[0], vG[1]], WU_OFF, 8*2752, gflags, pre_g)
    stamp(7)
    a(f"v_xor_b32 v6, v{vSl}, v{vRow4}")
    for v in range(4):
        a(f"v_xor_b32 v7, {4*v}, v6")
        a(f"v_lshlrev_b32 v7, 4, v7")
        a(f"v_lshl_add_u32 v{vK[v]}, v{vRow4}, 8, v7")
    a(f"""
    s_lshr_b32 s{sT0}, s{sJ}, 2
    s_lshl_b32 s{sT0}, s{sT0}, 5
    s_add_u32 s{sT0}, s{sT0}, s{sH}
    s_lshl_b32 s{sKV}, s{sT0}, 20
    s_and_b32 s{sT0}, s{sJ}, 3
    s_lshl_b32 s{sT0}, s{sT0}, 16
    s_add_u32 s{sKV}, s{sKV}, s{sT0}
    s_add_u32 s{sKV}, s{sKV}, 0xC0000
    """)
    srd(rK, pK, 1 << 26); srd(rV, pV, 1 << 26)
    def pre_kv():
        a(f"s_mul_i32 s{sRel}, s2, {rot}")
        a(f"s_and_b32 s{sRel}, s{sRel}, 63")
        a(f"s_lshl_b32 s{sRel}, s{sRel}, 10")
        a(f"s_add_u32 s{sOff}, s{sKV}, s{sRel}")
    stream("k", 64, 4, rK, vK, K_OFF, 1024, kvflags, pre_kv, rotate=True)
    stamp(3)
    srd(rWO, pWO, 4096*512*2); srd(rWD, pWD, 1376*512*2)
    stream("v0", 32, 4, rV, [vV[0], vV[0], vV[1], vV[1]], V_OFF, 1024, kvflags, pre_kv, rotate=True)
    a(f"""
    L_ld_s1:
    ds_read_b32 v27, v26 offset:{S1DONE}
    s_waitcnt lgkmcnt(0)
    v_readfirstlane_b32 s{sT0}, v27
    s_cmp_ge_u32 s{sT0}, {0 if loaderonly else 4}
    s_cbranch_scc1 L_ld_s1_ok
    s_sub_u32 s{sTMO}, s{sTMO}, 1
    s_cbranch_scc1 L_exit
    s_sleep 1
    s_branch L_ld_s1
    L_ld_s1_ok:
    s_add_i32 s{sN}, s{sN}, {W - W2}
    """)
    stream("v", 32, 4, rV, [vV[0], vV[0], vV[1], vV[1]], V_OFF + 32*1024, 1024, kvflags, lambda: a("s_nop 0"), wait=W2, rotate=True)
    stamp(4)
    def pre_o():
        a(f"s_lshl_b32 s{sOff}, s{sH}, 17")
        a(f"s_lshl_b32 s{sT0}, s{sJ}, 7")
        a(f"s_add_u32 s{sOff}, s{sOff}, s{sT0}")
    def pre_d():
        a(f"s_lshl_b32 s{sOff}, s{sU}, 13")
        a(f"s_lshl_b32 s{sT0}, s{sJ}, 7")
        a(f"s_add_u32 s{sOff}, s{sOff}, s{sT0}")
    stream("wo", 16, 4, rWO, [vO[0], vO[1], vO[0], vO[1]], S2_OFF, 8192, wflags, pre_o, wait=W2)
    a(f"s_mov_b32 m0, {S2_OFF + 16*1024}")
    pre_d()
    a(f"s_mov_b32 s{sCnt}, 0x7fff0000")
    for i in range(8):
        a(f"s_cmp_lt_u32 {i}, s{sC}")
        a(f"s_cselect_b32 s{sT0}, s{sOff}, s{sCnt}")
        a(f"buffer_load_dwordx4 v{vO[i & 1]}, s[{rWD}:{rWD+3}], s{sT0} offen {wflags} lds")
        a(f"s_add_u32 m0, m0, 1024")
        a(f"s_add_u32 s{sOff}, s{sOff}, 8192")
        if 176 + i + 1 + 1 - W2 <= 160:
            a(f"s_waitcnt vmcnt({W2-1})")
        if (i & 1) and 176 + i + 1 + 1 - W2 <= 160:
            a(f"""
            s_add_i32 s{sN}, s{sN}, 2
            s_max_i32 s{sLast}, s{sN}, s{sLast}
            v_mov_b32 v27, s{sLast}
            s_mov_b64 exec, 1
            ds_write_b32 v26, v27 offset:{PROG}
            s_mov_b64 exec, -1
            """)
    landed = NL + 1 - W2
    for m in [x for x in (128, 136, 144, 152) if x > landed]:
        a(f"s_waitcnt vmcnt({NL - m})")
        a(f"v_mov_b32 v27, {m}")
        a("s_mov_b64 exec, 1")
        a(f"ds_write_b32 v26, v27 offset:{PROG}")
        a("s_mov_b64 exec, -1")
    a(f"s_waitcnt vmcnt({NL - 160})")
    stamp(5)
    a("s_barrier")
    a("s_waitcnt vmcnt(0)")
    a("s_barrier")
    stamp(6)
    a("s_waitcnt lgkmcnt(0)")
    dump_stamps(27, 28, [(0, 1), (1, 2), (2, 3), (3, 4), (4, 5), (5, 6)])
    a("s_endpgm")

    role[0] = "compute"
    a.label("L_compute")
    if loaderonly:
        a("s_endpgm")
    R = Regs(1, 256)
    vL = R.alloc(); vN = R.alloc(); vKG = R.alloc(); vR4 = R.alloc(); vC = R.alloc()
    vFF = R.alloc(); vMisc = R.alloc(); vOne = R.alloc()
    vt0 = R.alloc(8, 4); vt = [vt0 + i for i in range(8)]
    vx0 = R.alloc(4, 4); vxt = [vx0 + i for i in range(4)]
    vTR = [R.alloc(), R.alloc()]
    vTRG = R.alloc(); vTRS = R.alloc()
    vKA = [R.alloc() for _ in range(4)]
    vXB = [R.alloc(4, 4), R.alloc(4, 4)]
    vJunk = R.alloc(4, 4)
    vGx = R.alloc(12, 4)
    rWS = 32
    sM1, sM3, sM4 = 36, 37, 38
    def spin_tail(label, tight=False):
        a(f"""
        s_sub_u32 s{sTMO}, s{sTMO}, 1
        s_cbranch_scc1 L_exit
        {"" if tight else f"s_sleep {sleep}"}
        s_branch {label}
        """)
    def wait_lds(off, n, label):
        a(f"""
        {label}:
        ds_read_b32 v{vt[7]}, v{vMisc} offset:{off}
        s_waitcnt lgkmcnt(0)
        v_readfirstlane_b32 s{sT0}, v{vt[7]}
        s_cmp_ge_u32 s{sT0}, {n}
        s_cbranch_scc1 {label}_ok
        """)
        spin_tail(label)
        a.label(f"{label}_ok")
    def wait_prog(n, label, tight=False):
        a(f"""
        s_cmp_ge_u32 s{sPG}, {n}
        s_cbranch_scc1 {label}_ok
        {label}:
        ds_read_b32 v{vt[7]}, v{vMisc} offset:{PROG}
        s_waitcnt lgkmcnt(0)
        v_readfirstlane_b32 s{sPG}, v{vt[7]}
        s_cmp_ge_u32 s{sPG}, {n}
        s_cbranch_scc1 {label}_ok
        """)
        spin_tail(label, tight)
        a.label(f"{label}_ok")
    def signal(off):
        a(f"""
        s_mov_b64 exec, 1
        ds_add_u32 v{vMisc}, v{vOne} offset:{off}
        s_mov_b64 exec, -1
        """)
    def tag(v):
        a(f"v_bfi_b32 v{v}, v{vFF}, s{sTAG}, v{v}")
    def exec_n_lt2():
        a("s_mov_b32 exec_lo, 0x00030003")
        a("s_mov_b32 exec_hi, 0x00030003")
    def xrow(regs, op="v_add_f32"):
        for ins in ("v_permlane16_swap_b32", "v_permlane32_swap_b32"):
            for k0 in range(0, len(regs), 4):
                grp = regs[k0:k0+4]
                for r, t in zip(grp, vxt):
                    a(f"v_mov_b32 v{t}, v{r}")
                if len(grp) < 2:
                    a("s_nop 1")
                elif len(grp) < 3:
                    a("s_nop 0")
                for r, t in zip(grp, vxt):
                    a(f"{ins} v{t}, v{r}")
                for r, t in zip(grp, vxt):
                    a(f"{op} v{r}, v{t}, v{r}")
    vBad = R.alloc()
    def check_tags(regs):
        for r in regs:
            a(f"v_xor_b32 v{r}, s{sTAG}, v{r}")
        a(f"v_or_b32 v{vBad}, v{regs[0]}, v{regs[1]}")
        for k in range(2, len(regs), 2):
            a(f"v_or3_b32 v{vBad}, v{vBad}, v{regs[k]}, v{regs[k+1]}")
        a(f"v_and_b32 v{vBad}, v{vFF}, v{vBad}")
        a(f"v_cmp_ne_u32 vcc, 0, v{vBad}")
    def retry(label_again, label_ok):
        a(f"""
        s_cbranch_vccz {label_ok}
        s_sub_u32 s{sTMO}, s{sTMO}, 1
        s_cbranch_scc1 L_exit
        s_branch {label_again}
        {label_ok}:
        """)

    a(f"""
    v_mov_b32 v{vL}, v0
    s_sub_u32 s{sCW}, s{sWAVE}, 1
    s_lshr_b32 s{sB}, s{sJ}, 2
    s_load_dword s{sE1}, s[{pWS}:{pWS+1}], 0
    v_and_b32 v{vN}, 15, v{vL}
    v_lshrrev_b32 v{vKG}, 4, v{vL}
    v_and_b32 v{vt[0]}, 1, v{vN}
    v_lshlrev_b32 v{vt[0]}, 10, v{vt[0]}
    v_lshl_add_u32 v{vt[0]}, v{vKG}, 4, v{vt[0]}
    s_lshl_b32 s{sT0}, s{sJ}, 7
    v_add_u32 v{vt[0]}, s{sT0}, v{vt[0]}
    v_lshlrev_b32 v{vt[1]}, 4, v{vL}
    global_load_dwordx4 {vr(vXB[0],4)}, v{vt[0]}, s[{pX}:{pX+1}]
    global_load_dwordx4 {vr(vXB[1],4)}, v{vt[0]}, s[{pX}:{pX+1}] offset:64
    s_mov_b32 s{sPG}, 0
    v_lshrrev_b32 v{vR4}, 2, v{vN}
    v_and_b32 v{vC}, 3, v{vN}
    v_mov_b32 v{vFF}, 0xff
    v_mov_b32 v{vMisc}, {MISC}
    v_mov_b32 v{vOne}, 1
    s_cmp_lg_u32 s{sCW}, 3
    s_cbranch_scc1 L_nopf
    global_load_dwordx4 {vr(vGx,4)}, v{vt[1]}, s[{pX}:{pX+1}]
    global_load_dwordx4 {vr(vGx+4,4)}, v{vt[1]}, s[{pX}:{pX+1}] offset:1024
    global_load_dwordx4 {vr(vGx+8,4)}, v{vt[1]}, s[{pGW}:{pGW+1}]
    """)
    if prefetch_code:
        a(f"""
        s_getpc_b64 s[{sT2}:{sT3}]
        L_pc:
        s_lshr_b32 s{sT0}, s2, 3
        s_and_b32 s{sT0}, s{sT0}, 15
        s_lshl_b32 s{sT0}, s{sT0}, 10
        s_sub_u32 s{sT2}, s{sT2}, L_pc-{KN}
        s_subb_u32 s{sT3}, s{sT3}, 0
        s_min_u32 s{sT0}, s{sT0}, L_codeend-{KN}-1024
        s_add_u32 s{sT2}, s{sT2}, s{sT0}
        s_addc_u32 s{sT3}, s{sT3}, 0
        global_load_dwordx4 {vr(vJunk,4)}, v{vt[1]}, s[{sT2}:{sT3}]
        """)
    a.label("L_nopf")
    a(f"""
    s_mov_b32 s{rWS}, s{pWS}
    s_mov_b32 s{rWS+1}, s{pWS+1}
    s_mov_b32 s{rWS+2}, {WS_SIZE}
    s_mov_b32 s{rWS+3}, 0x20000
    s_lshl_b32 s{sT0}, s{sH}, 3
    s_add_u32 s{sT0}, s{sT0}, s{sJ}
    s_mul_i32 s{sM1}, s{sT0}, 2048
    s_add_u32 s{sM1}, s{sM1}, {WS_M1}
    s_mul_i32 s{sM3}, s{sT0}, 640
    s_add_u32 s{sM3}, s{sM3}, {WS_M3}
    s_lshl_b32 s{sM4}, s{sJ}, 14
    s_lshl_b32 s{sT0}, s{sH}, 9
    s_add_u32 s{sM4}, s{sM4}, s{sT0}
    s_add_u32 s{sM4}, s{sM4}, {WS_M4}
    v_lshl_add_u32 v{vt[0]}, v{vKG}, 3, v{vR4}          ; 8kg + r4
    v_and_b32 v{vt[1]}, 1, v{vKG}
    v_lshl_or_b32 v{vt[2]}, v{vt[1]}, 2, v{vR4}         ; f = r4 | (kg&1)<<2
    v_lshlrev_b32 v{vt[3]}, 8, v{vt[0]}
    v_lshl_add_u32 v{vt[3]}, v{vC}, 3, v{vt[3]}
    v_add_u32 v{vt[3]}, {V_OFF}, v{vt[3]}
    s_lshl_b32 s{sT0}, s{sCW}, 1
    v_xor_b32 v{vTR[0]}, s{sT0}, v{vt[2]}
    v_lshl_add_u32 v{vTR[0]}, v{vTR[0]}, 5, v{vt[3]}
    s_add_u32 s{sT0}, s{sT0}, 1
    v_xor_b32 v{vTR[1]}, s{sT0}, v{vt[2]}
    v_lshl_add_u32 v{vTR[1]}, v{vTR[1]}, 5, v{vt[3]}
    v_lshrrev_b32 v{vt[2]}, 1, v{vR4}
    v_lshl_or_b32 v{vt[3]}, v{vt[1]}, 1, v{vt[2]}
    v_xor_b32 v{vt[3]}, s{sCW}, v{vt[3]}
    v_lshlrev_b32 v{vt[3]}, 5, v{vt[3]}
    v_lshl_add_u32 v{vt[3]}, v{vt[0]}, 7, v{vt[3]}
    v_lshl_add_u32 v{vt[3]}, v{vC}, 3, v{vt[3]}
    v_add_u32 v{vTRG}, {WG_OFF}, v{vt[3]}
    v_add_u32 v{vTRS}, {S2_OFF}, v{vt[3]}
    s_lshl_b32 s{sT0}, s{sCW}, 14
    v_lshlrev_b32 v{vt[0]}, 8, v{vN}
    v_add_u32 v{vt[0]}, s{sT0}, v{vt[0]}
    v_xor_b32 v{vt[1]}, v{vKG}, v{vN}
    """)
    for t in range(4):
        a(f"v_xor_b32 v{vt[2]}, {4*t}, v{vt[1]}")
        a(f"v_lshl_add_u32 v{vKA[t]}, v{vt[2]}, 4, v{vt[0]}")
    stamp(1)

    vA = R.alloc(16, 4)
    vAcc = R.alloc(8, 4)
    vM1 = R.alloc()
    a(f"""
    v_lshlrev_b32 v{vM1}, 6, v{vN}
    v_lshl_add_u32 v{vM1}, v{vKG}, 4, v{vM1}
    """)
    wait_prog(16, "L_w16")
    stamp(2)
    for ti in range(2):
        for u in range(2):
            f = vA + (ti*2 + u) * 4
            a(f"ds_read_b64_tr_b16 {vr(f,2)}, v{vTR[ti]} offset:{WQ_OFF - V_OFF + u*8192}")
            a(f"ds_read_b64_tr_b16 {vr(f+2,2)}, v{vTR[ti]} offset:{WQ_OFF - V_OFF + u*8192+1024}")
    a(f"""
    s_add_u32 s{sE1}, s{sE1}, 1
    s_and_b32 s{sTAG}, s{sE1}, 0xff
    s_waitcnt vmcnt(0) lgkmcnt(0)
    """)
    for u in range(2):
        for ti in range(2):
            f = vA + (ti*2 + u) * 4
            c = "0" if u == 0 else vr(vAcc + 4*ti, 4)
            a(f"v_mfma_f32_16x16x32_bf16 {vr(vAcc+4*ti,4)}, {vr(f,4)}, {vr(vXB[u],4)}, {c}")
    a(f"""
    s_lshl_b32 s{sT0}, s{sCW}, 8
    s_add_u32 s{sT0}, s{sT0}, s{sM1}
    s_nop 6
    """)
    for i in range(8):
        tag(vAcc + i)
    exec_n_lt2()
    a(f"s_add_u32 s{sT1}, s{sT0}, {WS_M1L - WS_M1}")
    a(f"buffer_store_dwordx4 {vr(vAcc,4)}, v{vM1}, s[{rWS}:{rWS+3}], s{sT1} offen")
    a(f"buffer_store_dwordx4 {vr(vAcc+4,4)}, v{vM1}, s[{rWS}:{rWS+3}], s{sT1} offen offset:128")
    sMODE, sDL1, sDL3, sIDW, sXCC = 60, 69, 70, 100, 101
    a(f"""
    s_getreg_b32 s{sXCC}, hwreg(HW_REG_XCC_ID)
    s_add_u32 s{sIDW}, s{sE1}, 0x5bd1e995
    s_cmp_lg_u32 s{sCW}, 0
    s_cbranch_scc1 L_noid
    s_lshl_b32 s{sT1}, s{sH}, 7
    s_lshl_b32 s{sT2}, s{sJ}, 3
    s_add_u32 s{sT1}, s{sT1}, s{sT2}
    s_add_u32 s{sT1}, s{sT1}, {WS_ID}
    v_mov_b32 v{vt[2]}, s{sIDW}
    v_mov_b32 v{vt[3]}, s{sXCC}
    v_mov_b32 v{vt[0]}, 0
    s_mov_b64 exec, 1
    buffer_store_dwordx2 v[{vt[2]}:{vt[3]}], v{vt[0]}, s[{rWS}:{rWS+3}], s{sT1} offen
    L_noid:
    s_mov_b64 exec, -1
    """)
    stamp(3)
    vAcc2 = R.alloc(8, 4)
    a(f"""
    s_cmp_eq_u32 s{sCW}, 3
    s_cbranch_scc1 L_gate
    """)
    wait_prog(32, "L_w32")
    for mi_, off in enumerate((0, 8192)):
        for u in range(2):
            f = vA + (mi_*2 + u) * 4
            a(f"ds_read_b64_tr_b16 {vr(f,2)}, v{vTRG} offset:{off + u*4096}")
            a(f"ds_read_b64_tr_b16 {vr(f+2,2)}, v{vTRG} offset:{off + u*4096 + 512}")
    a("s_waitcnt lgkmcnt(0)")
    for u in range(2):
        for mi_ in range(2):
            f = vA + (mi_*2 + u) * 4
            c = "0" if u == 0 else vr(vAcc2 + 4*mi_, 4)
            a(f"v_mfma_f32_16x16x32_bf16 {vr(vAcc2+4*mi_,4)}, {vr(f,4)}, {vr(vXB[u],4)}, {c}")
    signal(S1DONE)
    a(f"""
    s_lshl_b32 s{sT0}, s{sCW}, 7
    s_add_u32 s{sT0}, s{sT0}, s{sM1}
    s_nop 5
    """)
    for i in range(8):
        tag(vAcc2 + i)
    exec_n_lt2()
    a(f"s_add_u32 s{sT1}, s{sT0}, {WS_M1L - WS_M1}")
    a(f"buffer_store_dwordx4 {vr(vAcc2,4)}, v{vM1}, s[{rWS}:{rWS+3}], s{sT1} offen offset:1024")
    a(f"buffer_store_dwordx4 {vr(vAcc2+4,4)}, v{vM1}, s[{rWS}:{rWS+3}], s{sT1} offen offset:1536")
    a("s_mov_b64 exec, -1")
    a("s_branch L_p3")
    a.label("L_gate")
    signal(S1DONE)
    gx0, gx1, gw = vGx, vGx + 4, vGx + 8
    z = [vt[2], vt[3]]
    a(f"v_mov_b32 v{z[0]}, 0")
    a(f"v_mov_b32 v{z[1]}, 0")
    for i in range(4):
        a(f"v_lshlrev_b32 v{vt[4]}, 16, v{gw+i}")
        a(f"v_and_b32 v{vt[5]}, 0xffff0000, v{gw+i}")
        for bi, gx in enumerate((gx0, gx1)):
            a(f"v_lshlrev_b32 v{vt[6]}, 16, v{gx+i}")
            a(f"v_fmac_f32 v{z[bi]}, v{vt[6]}, v{vt[4]}")
            a(f"v_and_b32 v{vt[6]}, 0xffff0000, v{gx+i}")
            a(f"v_fmac_f32 v{z[bi]}, v{vt[6]}, v{vt[5]}")
    for rot in (8, 4, 2, 1):
        a("s_nop 1")
        for bi in range(2):
            a(f"v_add_f32_dpp v{z[bi]}, v{z[bi]}, v{z[bi]} row_ror:{rot} row_mask:0xf bank_mask:0xf")
    xrow(z)
    a(f"""
    v_mul_f32 v{z[0]}, {hex(f2u(-1.4426950408889634))}, v{z[0]}
    v_mul_f32 v{z[1]}, {hex(f2u(-1.4426950408889634))}, v{z[1]}
    v_exp_f32 v{z[0]}, v{z[0]}
    v_exp_f32 v{z[1]}, v{z[1]}
    s_nop 0
    v_add_f32 v{z[0]}, 1.0, v{z[0]}
    v_add_f32 v{z[1]}, 1.0, v{z[1]}
    v_rcp_f32 v{z[0]}, v{z[0]}
    v_rcp_f32 v{z[1]}, v{z[1]}
    s_nop 0
    s_mov_b64 exec, 1
    ds_write_b64 v{vMisc}, v[{z[0]}:{z[1]}] offset:{GV}
    s_mov_b64 exec, -1
    """)
    a.label("L_p3")
    stamp(4)
    if exit_after == "p2":
        a("s_endpgm")
    R.release(vGx, 12)
    vG4 = R.alloc(16, 4)
    vId = R.alloc(2, 2)
    def gstores():
        lab = a.newlabel("L_gs")
        a(f"""
        s_lshl_b32 s{sT1}, s{sCW}, 8
        s_add_u32 s{sT1}, s{sT1}, s{sM1}
        s_lshl_b32 s{sT2}, s{sCW}, 7
        s_add_u32 s{sT2}, s{sT2}, s{sM1}
        """)
        exec_n_lt2()
        a(f"""
        buffer_store_dwordx4 {vr(vAcc,4)}, v{vM1}, s[{rWS}:{rWS+3}], s{sT1} offen sc1
        buffer_store_dwordx4 {vr(vAcc+4,4)}, v{vM1}, s[{rWS}:{rWS+3}], s{sT1} offen offset:128 sc1
        s_cmp_eq_u32 s{sCW}, 3
        s_cbranch_scc1 {lab}
        buffer_store_dwordx4 {vr(vAcc2,4)}, v{vM1}, s[{rWS}:{rWS+3}], s{sT2} offen offset:1024 sc1
        buffer_store_dwordx4 {vr(vAcc2+4,4)}, v{vM1}, s[{rWS}:{rWS+3}], s{sT2} offen offset:1536 sc1
        {lab}:
        s_mov_b64 exec, -1
        """)
    def q_loads(delta):
        a(f"s_add_u32 s{sT1}, s{sT0}, {delta}")
        for i in range(4):
            a(f"buffer_load_dwordx4 {vr(vG4+4*i,4)}, v{vt[1]}, s[{rWS}:{rWS+3}], s{sT1} offen sc1")
            if i < 3:
                a(f"s_add_u32 s{sT1}, s{sT1}, 4096")
    a(f"""
    s_cmp_lg_u32 s{sCW}, 0
    s_cbranch_scc1 L_waitm
    s_mul_i32 s{sT0}, s{sH}, {8*2048}
    s_lshl_b32 s{sT1}, s{sB}, 6
    s_add_u32 s{sT0}, s{sT0}, s{sT1}
    s_add_u32 s{sT0}, s{sT0}, {WS_M1}
    s_add_u32 s40, s{pWS}, s{sT0}
    s_addc_u32 s41, s{pWS+1}, 0
    v_lshrrev_b32 v{vt[1]}, 5, v{vL}
    v_lshlrev_b32 v{vt[1]}, 11, v{vt[1]}
    v_and_b32 v{vt[2]}, 31, v{vL}
    v_lshrrev_b32 v{vt[4]}, 2, v{vt[2]}
    v_lshl_add_u32 v{vt[1]}, v{vt[4]}, 7, v{vt[1]}
    v_and_b32 v{vt[4]}, 3, v{vt[2]}
    v_lshl_add_u32 v{vt[1]}, v{vt[4]}, 4, v{vt[1]}
    v_and_b32 v{vt[3]}, 7, v{vL}
    v_lshlrev_b32 v{vt[3]}, 3, v{vt[3]}
    s_lshl_b32 s42, s{sH}, 7
    s_add_u32 s42, s42, {WS_ID}
    s_mov_b32 s43, {0 if forceglobal else ntry}
    s_cmp_eq_u32 s43, 0
    s_cbranch_scc1 L_needg
    L_ql:
    buffer_load_dwordx2 {vr(vId,2)}, v{vt[3]}, s[{rWS}:{rWS+3}], s42 offen sc1
    """)
    q_loads(WS_M1L - WS_M1)
    a("s_waitcnt vmcnt(0)")
    check_tags([vG4 + i for i in range(16)])
    a(f"""
    s_mov_b64 s[44:45], vcc
    v_cmp_ne_u32 vcc, s{sIDW}, v{vId}
    s_or_b64 s[44:45], s[44:45], vcc
    s_cmp_eq_u64 s[44:45], 0
    s_cbranch_scc0 L_ql_again
    v_cmp_ne_u32 vcc, s{sXCC}, v{vId+1}
    s_cbranch_vccnz L_needg
    s_mov_b32 s{sT2}, 1
    s_branch L_setmode
    L_ql_again:
    s_sub_u32 s43, s43, 1
    s_cmp_lg_u32 s43, 0
    s_cbranch_scc1 L_ql
    L_needg:
    v_mov_b32 v{vt[4]}, 2
    s_mov_b64 exec, 1
    ds_write_b32 v{vMisc}, v{vt[4]} offset:{MODE}
    s_mov_b64 exec, -1
    """)
    gstores()
    a("L_hint1:")
    for jj in range(8):
        a(f"s_load_dwordx2 s[{44+2*jj}:{45+2*jj}], s[40:41], {jj*2048 + 952} glc")
    a("s_waitcnt lgkmcnt(0)")
    a(f"s_xor_b32 s42, s44, s{sTAG}")
    for k in range(45, 60):
        a(f"s_xor_b32 s43, s{k}, s{sTAG}")
        a(f"s_or_b32 s42, s42, s43")
    a(f"""
    s_and_b32 s42, s42, 0xff
    s_cbranch_scc0 L_gq
    s_sub_u32 s{sTMO}, s{sTMO}, 1
    s_cbranch_scc1 L_exit
    s_branch L_hint1
    L_gq:
    """)
    q_loads(0)
    a("s_waitcnt vmcnt(0)")
    check_tags([vG4 + i for i in range(16)])
    a(f"""
    s_mov_b32 s{sT2}, 2
    s_cbranch_vccz L_setmode
    s_sub_u32 s{sTMO}, s{sTMO}, 1
    s_cbranch_scc1 L_exit
    s_branch L_gq
    L_setmode:
    v_mov_b32 v{vt[4]}, s{sT2}
    s_mov_b64 exec, 1
    ds_write_b32 v{vMisc}, v{vt[4]} offset:{MODE}
    s_mov_b64 exec, -1
    """)
    stamp(5)
    for e in range(4):
        a(f"v_add_f32 v{vG4+e}, v{vG4+e}, v{vG4+4+e}")
        a(f"v_add_f32 v{vG4+8+e}, v{vG4+8+e}, v{vG4+12+e}")
    for e in range(4):
        a(f"v_add_f32 v{vG4+e}, v{vG4+e}, v{vG4+8+e}")
    for e in range(4):
        a(f"v_mov_b32 v{vG4+4+e}, v{vG4+e}")
    for e in range(4):
        a(f"v_permlane32_swap_b32 v{vG4+4+e}, v{vG4+e}")
    for e in range(4):
        a(f"v_add_f32 v{vG4+e}, v{vG4+e}, v{vG4+4+e}")
    a(f"""
    v_cvt_pk_bf16_f32 v{vG4+4}, v{vG4}, v{vG4+1}
    v_cvt_pk_bf16_f32 v{vG4+5}, v{vG4+2}, v{vG4+3}
    v_lshl_add_u32 v{vt[2]}, v{vt[2]}, 3, v{vMisc}
    s_mov_b32 exec_hi, 0
    ds_write_b64 v{vt[2]}, {vr(vG4+4,2)} offset:{QB}
    s_mov_b64 exec, 1
    ds_write_b32 v{vMisc}, v{vOne} offset:{QRDY}
    s_mov_b64 exec, -1
    """)
    a("s_branch L_waitq")
    a(f"""
    L_waitm:
    ds_read_b32 v{vt[7]}, v{vMisc} offset:{MODE}
    s_waitcnt lgkmcnt(0)
    v_readfirstlane_b32 s{sT0}, v{vt[7]}
    s_cmp_lg_u32 s{sT0}, 0
    s_cbranch_scc1 L_waitm_ok
    """)
    spin_tail("L_waitm")
    a(f"""
    L_waitm_ok:
    s_cmp_eq_u32 s{sT0}, 1
    s_cbranch_scc1 L_waitq
    """)
    gstores()
    a.label("L_waitq")
    wait_lds(QRDY, 1, "L_wq")
    a(f"""
    ds_read_b32 v{vt[7]}, v{vMisc} offset:{MODE}
    s_waitcnt lgkmcnt(0)
    v_readfirstlane_b32 s{sMODE}, v{vt[7]}
    s_cmp_eq_u32 s{sMODE}, 1
    s_cselect_b32 s{sDL1}, {WS_M1L - WS_M1}, 0
    s_cselect_b32 s{sDL3}, {WS_M3L - WS_M3}, 0
    """)
    stamp(6)
    if exit_after == "q":
        a("s_endpgm")
    vFoff = R.alloc()
    vF4 = R.alloc(16, 4)
    a(f"""
    v_lshlrev_b32 v{vFoff}, 11, v{vKG}
    v_lshl_add_u32 v{vFoff}, v{vR4}, 7, v{vFoff}
    v_lshl_add_u32 v{vFoff}, v{vC}, 4, v{vFoff}
    s_sub_u32 s{sT0}, s{sCW}, 1
    s_and_b32 s{sT1}, s{sT0}, 1
    s_lshl_b32 s{sT1}, s{sT1}, 6
    s_mul_i32 s39, s{sH}, {8*2048}
    s_add_u32 s39, s39, s{sT1}
    s_add_u32 s39, s39, {WS_M1 + 1024}
    s_add_u32 s39, s39, s{sDL1}
    s_cmp_gt_u32 s{sT0}, 1
    s_cbranch_scc1 L_noffn1
    """)
    def ffn_loads():
        a(f"""
        v_cmp_gt_u32 vcc, 12, v{vN}
        s_and_b64 exec, exec, vcc
        s_add_u32 s{sT1}, s39, {4*2048}
        buffer_load_dwordx4 {vr(vF4,4)}, v{vFoff}, s[{rWS}:{rWS+3}], s39 offen sc1
        buffer_load_dwordx4 {vr(vF4+4,4)}, v{vFoff}, s[{rWS}:{rWS+3}], s{sT1} offen sc1
        buffer_load_dwordx4 {vr(vF4+8,4)}, v{vFoff}, s[{rWS}:{rWS+3}], s39 offen offset:512 sc1
        buffer_load_dwordx4 {vr(vF4+12,4)}, v{vFoff}, s[{rWS}:{rWS+3}], s{sT1} offen offset:512 sc1
        s_mov_b64 exec, -1
        """)
    ffn_loads()
    a.label("L_noffn1")
    if exit_after == "ffn":
        a("s_waitcnt vmcnt(0)")
        a("s_endpgm")
    vQ = R.alloc(16, 4)
    vKf = R.alloc(64, 4)
    vS = R.alloc(16, 4)
    a(f"""
    v_lshlrev_b32 v{vt[0]}, 4, v{vKG}
    v_add_u32 v{vt[0]}, v{vMisc}, v{vt[0]}
    """)
    for t in range(4):
        a(f"ds_read_b128 {vr(vQ+4*t,4)}, v{vt[0]} offset:{QB + 64*t}")
    a(f"s_lshl_b32 s{sT1}, s{sCW}, 4")
    a(f"s_add_u32 s{sT1}, s{sT1}, 48")
    wait_prog(f"s{sT1}", "L_wk")
    for T in range(4):
        for t in range(4):
            a(f"ds_read_b128 {vr(vKf + 16*T + 4*t, 4)}, v{vKA[t]} offset:{T*4096}")
    for T in range(4):
        a(f"s_waitcnt lgkmcnt({4*(3-T)})")
        for t in range(4):
            c = "0" if t == 0 else vr(vS + 4*T, 4)
            a(f"v_mfma_f32_16x16x32_bf16 {vr(vS+4*T,4)}, {vr(vKf+16*T+4*t,4)}, {vr(vQ+4*t,4)}, {c}")
    vSt = R.alloc(2, 2)
    vMc, vSum = vSt, vSt + 1
    a(f"""
    s_mov_b32 s{sT1}, {hex(f2u(CEXP))}
    s_nop 3
    v_max3_f32 v{vMc}, v{vS}, v{vS+1}, v{vS+2}
    """)
    for k in range(3, 11, 2):
        a(f"v_max3_f32 v{vMc}, v{vMc}, v{vS+k}, v{vS+k+1}")
    a(f"v_max_f32 v{vMc}, v{vMc}, v{vS+11}")
    a("s_nop 1")
    a(f"v_max3_f32 v{vMc}, v{vMc}, v{vS+12}, v{vS+13}")
    a(f"v_max3_f32 v{vMc}, v{vMc}, v{vS+14}, v{vS+15}")
    xrow([vMc], "v_max_f32")
    a(f"""
    v_mul_f32 v{vMc}, s{sT1}, v{vMc}
    v_and_b32 v{vMc}, 0xffffff00, v{vMc}
    """)
    for k in range(16):
        a(f"v_fma_f32 v{vS+k}, v{vS+k}, s{sT1}, -v{vMc}")
    for k in range(16):
        a(f"v_exp_f32 v{vS+k}, v{vS+k}")
    for T in range(4):
        a(f"v_cvt_pk_bf16_f32 v{vKf+2*T}, v{vS+4*T}, v{vS+4*T+1}")
        a(f"v_cvt_pk_bf16_f32 v{vKf+2*T+1}, v{vS+4*T+2}, v{vS+4*T+3}")
    a(f"""
    s_lshl_b32 s{sT0}, s{sCW}, 7
    v_lshl_add_u32 v{vt[1]}, v{vKG}, 3, v{vMisc}
    v_add_u32 v{vt[1]}, s{sT0}, v{vt[1]}
    s_mov_b32 exec_lo, 0x00010001
    s_mov_b32 exec_hi, 0x00010001
    """)
    for T in range(4):
        a(f"ds_write_b64 v{vt[1]}, {vr(vKf+2*T,2)} offset:{PB + 32*T}")
    a("s_mov_b64 exec, -1")
    for k in range(0, 16, 2):
        a(f"v_add_f32 v{vS+k}, v{vS+k}, v{vS+k+1}")
    for k in range(0, 16, 4):
        a(f"v_add_f32 v{vS+k}, v{vS+k}, v{vS+k+2}")
    a(f"v_add_f32 v{vS}, v{vS}, v{vS+4}")
    a(f"v_add_f32 v{vS+8}, v{vS+8}, v{vS+12}")
    a(f"v_add_f32 v{vSum}, v{vS}, v{vS+8}")
    xrow([vSum])
    a(f"""
    s_lshl_b32 s{sT0}, s{sCW}, 3
    v_add_u32 v{vt[0]}, s{sT0}, v{vMisc}
    s_mov_b64 exec, 1
    ds_write_b64 v{vt[0]}, {vr(vSt,2)} offset:{STATW}
    ds_add_u32 v{vMisc}, v{vOne} offset:{BAR}
    s_mov_b64 exec, -1
    """)
    wait_lds(BAR, 4, "L_bar1")
    stamp(7)
    if exit_after == "bar":
        a("s_waitcnt vmcnt(0)")
        a("s_endpgm")
    R.release(vKf, 64); R.release(vQ, 16); R.release(vS, 16)
    vP = R.alloc(32, 4)
    vFw = R.alloc(8, 4)
    a(f"""
    v_lshl_add_u32 v{vt[0]}, v{vKG}, 4, v{vMisc}
    ds_read_b128 {vr(vFw,4)}, v{vMisc} offset:{STATW}
    ds_read_b128 {vr(vFw+4,4)}, v{vMisc} offset:{STATW+16}
    """)
    for u in range(8):
        a(f"ds_read_b128 {vr(vP+4*u,4)}, v{vt[0]} offset:{PB + 64*u}")
    a(f"""
    s_waitcnt lgkmcnt(8)
    v_max3_f32 v{vt[4]}, v{vFw}, v{vFw+2}, v{vFw+4}
    v_max_f32 v{vt[4]}, v{vt[4]}, v{vFw+6}
    """)
    for w in range(4):
        a(f"v_sub_f32 v{vFw+2*w}, v{vFw+2*w}, v{vt[4]}")
    for w in range(4):
        a(f"v_exp_f32 v{vFw+2*w}, v{vFw+2*w}")
    a(f"""
    s_cmp_lg_u32 s{sCW}, 0
    s_cbranch_scc1 L_nostat
    v_mul_f32 v{vt[5]}, v{vFw}, v{vFw+1}
    v_fmac_f32 v{vt[5]}, v{vFw+2}, v{vFw+3}
    v_fmac_f32 v{vt[5]}, v{vFw+4}, v{vFw+5}
    v_fmac_f32 v{vt[5]}, v{vFw+6}, v{vFw+7}
    """)
    tag(vt[4])
    tag(vt[5])
    a(f"""
    v_mov_b32 v{vt[6]}, v{vt[4]}
    v_mov_b32 v{vt[7]}, v{vt[5]}
    v_lshlrev_b32 v{vt[0]}, 4, v{vL}
    s_mov_b64 exec, 0xff
    s_add_u32 s{sT0}, s{sM3}, {WS_M3L - WS_M3}
    buffer_store_dwordx4 v[{vt[4]}:{vt[7]}], v{vt[0]}, s[{rWS}:{rWS+3}], s{sT0} offen offset:512
    s_cmp_eq_u32 s{sMODE}, 1
    s_cbranch_scc1 L_g3s
    buffer_store_dwordx4 v[{vt[4]}:{vt[7]}], v{vt[0]}, s[{rWS}:{rWS+3}], s{sM3} offen offset:512 sc1
    L_g3s:
    s_mov_b64 exec, -1
    L_nostat:
    """)
    stamp(8)
    vO = R.alloc(32, 4)
    vVf = R.alloc(32, 4)
    def pv_batch(us, need, label):
        if need is None:
            a("s_barrier")
        else:
            wait_prog(need, label, tight=(need >= 152))
        for k, u in enumerate(us):
            f0 = vVf + 8*k
            for ti in range(2):
                a(f"ds_read_b64_tr_b16 {vr(f0+4*ti,2)}, v{vTR[ti]} offset:{u*8192}")
                a(f"ds_read_b64_tr_b16 {vr(f0+4*ti+2,2)}, v{vTR[ti]} offset:{u*8192+1024}")
        for k, u in enumerate(us):
            a(f"s_waitcnt lgkmcnt({4*(len(us)-1-k)})")
            f0 = vVf + 8*k
            w = u >> 1
            for ti in range(2):
                acc = vO + 8*w + 4*ti
                c = "0" if (u & 1) == 0 else vr(acc, 4)
                a(f"v_mfma_f32_16x16x32_bf16 {vr(acc,4)}, {vr(f0+4*ti,4)}, {vr(vP+4*u,4)}, {c}")
    pv_batch([0, 1, 2, 3], 128, "L_wvA")
    vM3 = R.alloc(); vX3 = R.alloc(); vSa = R.alloc(); vSg = R.alloc(2, 2); vSgG = R.alloc(2, 2)
    vWs = R.alloc(4, 4)
    sFB = 47
    def g3_base(delta):
        a(f"""
        s_and_b32 s{sT3}, s{sCW}, 1
        s_lshl_b32 s{sT3}, s{sT3}, 8
        s_add_u32 s41, s40, s{sT3}
        s_add_u32 s41, s41, {delta}
        s_add_u32 s42, s41, 640
        s_add_u32 s43, s41, 1280
        s_add_u32 s44, s41, 1920
        """)
    a(f"""
    v_and_b32 v{vt[0]}, 1, v{vN}
    v_lshlrev_b32 v{vt[1]}, 6, v{vt[0]}
    v_lshl_add_u32 v{vM3}, v{vKG}, 4, v{vt[1]}
    s_lshr_b32 s{sT1}, s{sCW}, 1
    s_lshl_b32 s{sT2}, s{sH}, 3
    s_lshl_b32 s{sT3}, s{sT1}, 2
    s_add_u32 s{sT2}, s{sT2}, s{sT3}
    s_mul_i32 s40, s{sT2}, 640
    s_add_u32 s40, s40, {WS_M3}
    v_lshlrev_b32 v{vX3}, 2, v{vL}
    v_and_b32 v{vSa}, 3, v{vL}
    v_mul_u32_u24 v{vSa}, 640, v{vSa}
    """)
    a(f"s_add_u32 s40, s40, s{sDL3}")
    g3_base(0)
    a(f"""
    s_sub_u32 s{sT0}, s{sCW}, 1
    s_cmp_gt_u32 s{sT0}, 1
    s_cbranch_scc1 L_noffn2
    s_waitcnt vmcnt(0)
    L_ffnchk:
    v_cmp_gt_u32 vcc, 12, v{vN}
    s_and_b64 exec, exec, vcc
    """)
    check_tags([vF4 + i for i in range(16)])
    a(f"""
    s_mov_b64 exec, -1
    s_cbranch_vccz L_ffn_ok
    s_sub_u32 s{sTMO}, s{sTMO}, 1
    s_cbranch_scc1 L_exit
    """)
    ffn_loads()
    a("s_waitcnt vmcnt(0)")
    a("s_branch L_ffnchk")
    a.label("L_ffn_ok")
    gsum = [vF4 + e for e in range(4)]; usum = [vF4 + 8 + e for e in range(4)]
    for e in range(4):
        a(f"v_add_f32 v{vF4+e}, v{vF4+e}, v{vF4+4+e}")
        a(f"v_add_f32 v{vF4+8+e}, v{vF4+8+e}, v{vF4+12+e}")
    xrow(gsum + usum)
    a(f"v_cmp_gt_u32 vcc, 12, v{vN}")
    for e in range(4):
        a(f"v_max_f32 v{gsum[e]}, 0, v{gsum[e]}")
        a(f"v_mul_f32 v{gsum[e]}, v{gsum[e]}, v{usum[e]}")
        a(f"v_cndmask_b32 v{gsum[e]}, 0, v{gsum[e]}, vcc")
    a(f"""
    v_cvt_pk_bf16_f32 v{vF4+4}, v{gsum[0]}, v{gsum[1]}
    v_cvt_pk_bf16_f32 v{vF4+5}, v{gsum[2]}, v{gsum[3]}
    s_lshl_b32 s{sT0}, s{sT0}, 7
    v_lshl_add_u32 v{vt[1]}, v{vN}, 3, v{vMisc}
    v_add_u32 v{vt[1]}, s{sT0}, v{vt[1]}
    s_mov_b64 exec, 0xffff
    ds_write_b64 v{vt[1]}, {vr(vF4+4,2)} offset:{HID}
    s_mov_b64 exec, -1
    L_noffn2:
    """)
    pv_batch([4, 5], 144, "L_wvB")
    a(f"buffer_load_dwordx2 {vr(vSg,2)}, v{vSa}, s[{rWS}:{rWS+3}], s40 offen offset:512 sc1")
    for i in range(8):
        a(f"v_mul_f32 v{vO+i}, v{vFw}, v{vO+i}")
    for i in range(8):
        a(f"v_fmac_f32 v{vO+i}, v{vFw+2}, v{vO+8+i}")
    pv_batch([6], 152, "L_wvC")
    for i in range(8):
        a(f"v_fmac_f32 v{vO+i}, v{vFw+4}, v{vO+16+i}")
    a(f"""
    v_cmp_eq_u32 vcc, 1, v{vt[0]}
    s_lshl_b32 s45, s{sCW}, 7
    s_add_u32 s45, s45, s{sM3}
    s_add_u32 s46, s45, {WS_M3L - WS_M3}
    """)
    for e in range(4):
        a(f"v_cndmask_b32 v{vO+e}, v{vO+e}, v{vO+4+e}, vcc")
    pv_batch([7], None, "L_wvD")
    a("s_nop 7")
    for e in range(4):
        a(f"v_cndmask_b32 v{vO+24+e}, v{vO+24+e}, v{vO+28+e}, vcc")
    for e in range(4):
        a(f"v_fmac_f32 v{vO+e}, v{vFw+6}, v{vO+24+e}")
    for e in range(4):
        tag(vO + e)
    exec_n_lt2()
    a(f"buffer_store_dwordx4 {vr(vO,4)}, v{vM3}, s[{rWS}:{rWS+3}], s46 offen")
    a(f"s_cmp_eq_u32 s{sMODE}, 1")
    a("s_cbranch_scc1 L_g3o")
    a(f"buffer_store_dwordx4 {vr(vO,4)}, v{vM3}, s[{rWS}:{rWS+3}], s45 offen sc1")
    a.label("L_g3o")
    a("s_mov_b64 exec, -1")
    stamp(9)
    R.release(vP, 32); R.release(vVf, 32); R.release(vFw, 8)
    vG3 = vG4
    vG3b = vG4 + 4
    def g3_loads(dst):
        for s_ in range(4):
            a(f"buffer_load_dword v{dst+s_}, v{vX3}, s[{rWS}:{rWS+3}], s{41+s_} offen sc1")
    a("s_waitcnt vmcnt(1)")
    a("L_sg:")
    check_tags([vSg, vSg + 1])
    a(f"""
    s_cbranch_vccz L_sg_ok
    s_sub_u32 s{sTMO}, s{sTMO}, 1
    s_cbranch_scc1 L_exit
    buffer_load_dwordx2 {vr(vSg,2)}, v{vSa}, s[{rWS}:{rWS+3}], s40 offen offset:512 sc1
    s_waitcnt vmcnt(0)
    s_branch L_sg
    L_sg_ok:
    v_mov_b32 v{vt[3]}, v{vSg}
    s_nop 1
    v_max_f32_dpp v{vt[3]}, v{vt[3]}, v{vt[3]} quad_perm:[1,0,3,2] row_mask:0xf bank_mask:0xf
    s_nop 1
    v_max_f32_dpp v{vt[3]}, v{vt[3]}, v{vt[3]} quad_perm:[2,3,0,1] row_mask:0xf bank_mask:0xf
    v_sub_f32 v{vt[3]}, v{vSg}, v{vt[3]}
    v_exp_f32 v{vt[3]}, v{vt[3]}
    s_nop 0
    v_mul_f32 v{vt[4]}, v{vt[3]}, v{vSg+1}
    s_nop 1
    v_add_f32_dpp v{vt[4]}, v{vt[4]}, v{vt[4]} quad_perm:[1,0,3,2] row_mask:0xf bank_mask:0xf
    s_nop 1
    v_add_f32_dpp v{vt[4]}, v{vt[4]}, v{vt[4]} quad_perm:[2,3,0,1] row_mask:0xf bank_mask:0xf
    v_rcp_f32 v{vt[4]}, v{vt[4]}
    s_nop 0
    v_mul_f32 v{vt[3]}, v{vt[3]}, v{vt[4]}
    s_nop 1
    """)
    for s_ in range(4):
        a(f"v_mov_b32_dpp v{vWs+s_}, v{vt[3]} quad_perm:[{s_},{s_},{s_},{s_}] row_mask:0xf bank_mask:0xf")
    vWf = R.alloc(16, 4); vDf = R.alloc(8, 4); vHf = R.alloc(8, 4)
    vYa = R.alloc(4, 4); vYf = R.alloc(4, 4); vGl = R.alloc()
    vAH = R.alloc(); vAG = R.alloc(); vAO = R.alloc(); vAW = R.alloc(); vM4 = R.alloc()
    a(f"""
    v_and_b32 v{vt[0]}, 1, v{vN}
    v_lshlrev_b32 v{vt[1]}, 7, v{vt[0]}
    v_add_u32 v{vt[1]}, v{vMisc}, v{vt[1]}
    v_lshl_add_u32 v{vAH}, v{vKG}, 4, v{vt[1]}
    v_lshl_add_u32 v{vAG}, v{vt[0]}, 2, v{vMisc}
    v_lshlrev_b32 v{vt[1]}, 8, v{vt[0]}
    v_lshl_add_u32 v{vt[1]}, v{vKG}, 4, v{vt[1]}
    v_add_u32 v{vAO}, v{vMisc}, v{vt[1]}
    v_lshlrev_b32 v{vt[1]}, 6, v{vt[0]}
    v_lshl_add_u32 v{vM4}, v{vKG}, 4, v{vt[1]}
    s_lshl_b32 s{sT0}, s{sCW}, 7
    v_lshl_add_u32 v{vAW}, v{vL}, 1, v{vMisc}
    v_add_u32 v{vAW}, s{sT0}, v{vAW}
    s_lshl_b32 s48, s{sCW}, 7
    s_add_u32 s48, s48, s{sM4}
    """)
    g3_loads(vG3)
    a("s_barrier")
    for u in range(4):
        a(f"ds_read_b64_tr_b16 {vr(vWf+4*u,2)}, v{vTRS} offset:{u*4096}")
        a(f"ds_read_b64_tr_b16 {vr(vWf+4*u+2,2)}, v{vTRS} offset:{u*4096+512}")
    a(f"""
    ds_read_b64_tr_b16 {vr(vDf,2)}, v{vTRS} offset:{4*4096}
    ds_read_b64_tr_b16 {vr(vDf+2,2)}, v{vTRS} offset:{4*4096+512}
    ds_read_b64_tr_b16 {vr(vDf+4,2)}, v{vTRS} offset:{5*4096}
    ds_read_b64_tr_b16 {vr(vDf+6,2)}, v{vTRS} offset:{5*4096+512}
    """)
    g3_loads(vG3b)
    stamp(11)
    a(f"""
    L_g3:
    s_waitcnt vmcnt(4)
    """)
    check_tags([vG3 + i for i in range(4)])
    a(f"""
    s_cbranch_vccz L_g3_ok
    s_sub_u32 s{sTMO}, s{sTMO}, 1
    s_cbranch_scc1 L_exit
    """)
    if stamps: a("s_add_u32 s71, s71, 1")
    g3_loads(vG3)
    a("s_waitcnt vmcnt(4)")
    check_tags([vG3b + i for i in range(4)])
    a("s_cbranch_vccz L_g3_okb")
    g3_loads(vG3b)
    vRes = R.alloc()
    def combine(src):
        a(f"v_mul_f32 v{vRes}, v{vWs}, v{src}")
        for k in range(1, 4):
            a(f"v_fmac_f32 v{vRes}, v{vWs+k}, v{src+k}")
    a("s_branch L_g3")
    a.label("L_g3_okb")
    combine(vG3b)
    a("s_branch L_g3_done")
    a.label("L_g3_ok")
    combine(vG3)
    a.label("L_g3_done")
    stamp(12)
    a(f"""
    v_cvt_pk_bf16_f32 v{vRes}, v{vRes}, v{vRes}
    ds_write_b16 v{vAW}, v{vRes} offset:{OB}
    s_waitcnt lgkmcnt(0)
    s_barrier
    ds_read_b128 {vr(vHf,4)}, v{vAH} offset:{HID}
    ds_read_b128 {vr(vHf+4,4)}, v{vAH} offset:{HID+64}
    ds_read_b32 v{vGl}, v{vAG} offset:{GV}
    """)
    vOf = R.alloc(16, 4)
    for u in range(4):
        a(f"ds_read_b128 {vr(vOf+4*u,4)}, v{vAO} offset:{OB + 64*u}")
    a("s_waitcnt lgkmcnt(4)")
    a(f"v_mfma_f32_16x16x32_bf16 {vr(vYf,4)}, {vr(vDf,4)}, {vr(vHf,4)}, 0")
    for u in range(4):
        a(f"s_waitcnt lgkmcnt({3-u})")
        c = "0" if u == 0 else vr(vYa, 4)
        a(f"v_mfma_f32_16x16x32_bf16 {vr(vYa,4)}, {vr(vWf+4*u,4)}, {vr(vOf+4*u,4)}, {c}")
    a(f"v_mfma_f32_16x16x32_bf16 {vr(vYf,4)}, {vr(vDf+4,4)}, {vr(vHf+4,4)}, {vr(vYf,4)}")
    a(f"""
    v_sub_f32 v{vt[0]}, 1.0, v{vGl}
    s_nop 6
    """)
    for e in range(4):
        a(f"v_mul_f32 v{vYa+e}, v{vGl}, v{vYa+e}")
    for e in range(4):
        a(f"v_fmac_f32 v{vYa+e}, v{vt[0]}, v{vYf+e}")
    for e in range(4):
        tag(vYa + e)
    exec_n_lt2()
    a(f"buffer_store_dwordx4 {vr(vYa,4)}, v{vM4}, s[{rWS}:{rWS+3}], s48 offen sc1")
    a("s_mov_b64 exec, -1")
    a(f"""
    s_lshl_b32 s{sT0}, s{sJ}, 2
    s_cmp_lg_u32 s{sT0}, s{sH}
    s_cbranch_scc1 L_done
    s_lshl_b32 s{sT0}, s{sJ}, 14
    s_lshl_b32 s{sT1}, s{sCW}, 7
    s_add_u32 s{sT0}, s{sT0}, s{sT1}
    s_add_u32 s40, s{sT0}, {WS_M4}
    s_add_u32 s41, s40, 4096
    s_add_u32 s42, s40, 8192
    s_add_u32 s43, s40, 12288
    v_lshrrev_b32 v{vt[1]}, 3, v{vL}
    v_lshlrev_b32 v{vt[1]}, 9, v{vt[1]}
    v_and_b32 v{vt[2]}, 7, v{vL}
    v_lshl_add_u32 v{vt[1]}, v{vt[2]}, 4, v{vt[1]}
    s_lshl_b32 s{sT0}, s{sJ}, 7
    s_lshl_b32 s{sT1}, s{sCW}, 5
    s_add_u32 s{sT0}, s{sT0}, s{sT1}
    v_lshrrev_b32 v{vt[3]}, 2, v{vt[2]}
    v_lshlrev_b32 v{vt[3]}, 10, v{vt[3]}
    v_and_b32 v{vt[2]}, 3, v{vt[2]}
    v_lshl_add_u32 v{vt[2]}, v{vt[2]}, 3, v{vt[3]}
    v_lshl_add_u32 v{vt[2]}, v{vKG}, 1, v{vt[2]}
    v_add_u32 v{vt[2]}, s{sT0}, v{vt[2]}
    L_g4:
    """)
    for i in range(4):
        a(f"buffer_load_dwordx4 {vr(vG4+4*i,4)}, v{vt[1]}, s[{rWS}:{rWS+3}], s{40+i} offen sc1")
    a("s_waitcnt vmcnt(0)")
    check_tags([vG4 + i for i in range(16)])
    retry("L_g4", "L_g4_ok")
    for e in range(4):
        a(f"v_add_f32 v{vG4+e}, v{vG4+e}, v{vG4+4+e}")
        a(f"v_add_f32 v{vG4+8+e}, v{vG4+8+e}, v{vG4+12+e}")
    for e in range(4):
        a(f"v_add_f32 v{vG4+e}, v{vG4+e}, v{vG4+8+e}")
    a(f"""
    s_nop 0
    v_permlane32_swap_b32 v{vG4}, v{vG4+2}
    v_permlane32_swap_b32 v{vG4+1}, v{vG4+3}
    v_add_f32 v{vG4}, v{vG4}, v{vG4+2}
    v_add_f32 v{vG4+1}, v{vG4+1}, v{vG4+3}
    s_nop 1
    v_permlane16_swap_b32 v{vG4}, v{vG4+1}
    v_add_f32 v{vG4}, v{vG4}, v{vG4+1}
    s_nop 1
    v_add_f32_dpp v{vG4}, v{vG4}, v{vG4} row_ror:8 row_mask:0xf bank_mask:0xf
    v_cvt_pk_bf16_f32 v{vG4}, v{vG4}, v{vG4}
    s_mov_b32 exec_lo, 0x00ff00ff
    s_mov_b32 exec_hi, 0x00ff00ff
    global_store_short v{vt[2]}, v{vG4}, s[{pOUT}:{pOUT+1}]
    s_or_b32 s{sT0}, s{sJ}, s{sCW}
    s_cmp_lg_u32 s{sT0}, 0
    s_cbranch_scc1 L_done
    s_mov_b64 exec, 1
    v_mov_b32 v{vt[0]}, 0
    v_mov_b32 v{vt[1]}, s{sE1}
    global_store_dword v{vt[0]}, v{vt[1]}, s[{pWS}:{pWS+1}] sc1
    L_done:
    """)
    stamp(13)
    dump_stamps(vt[0], vt[1], [(6, 2), (7, 3), (8, 5), (9, 6), (10, 7), (11, 9), (12, 11), (13, 12), (14, 13)])
    a.label("L_exit")
    a("s_endpgm")
    a.label("L_codeend")
    nv = R.hi
    txt = (f"; @launch grid=(256,1,1) block=(320,1,1) lds={LDS_BYTES}\n" + HEAD + kernel_begin(KN) + a.text()
           + kernel_desc(KN, nv, sgpr=102))
    return txt

if __name__ == "__main__":
    import argparse
    ap = argparse.ArgumentParser()
    ap.add_argument("-o", default="main.s"); ap.add_argument("--stamps", action="store_true")
    ap.add_argument("-W", type=int, default=28)
    ap.add_argument("--nopf", action="store_true")
    ap.add_argument("--forceglobal", action="store_true")
    ap.add_argument("--ntry", type=int, default=3)
    ap.add_argument("--m1st", default="sc1"); ap.add_argument("--m1ld", default="sc1")
    ap.add_argument("--table", default="6,5,6,5,6,5,5,5")
    ap.add_argument("--exit", default=None)
    ap.add_argument("--loaderonly", action="store_true")
    ap.add_argument("--rot", type=int, default=17)
    ap.add_argument("--vsplit", type=int, default=0)
    ap.add_argument("--cset", default=None); ap.add_argument("--lset", default=None)
    ap.add_argument("--W2", type=int, default=None)
    ap.add_argument("--dbg", action="store_true")
    ap.add_argument("--nont", action="store_true")
    ap.add_argument("--noxcd", action="store_true")
    x = ap.parse_args()
    fl = "" if x.nont else "nt"
    open(x.o, "w").write(gen(W=x.W, W2=x.W2, forceglobal=x.forceglobal, ntry=x.ntry, m1st=x.m1st, m1ld=x.m1ld, table=tuple(int(c) for c in x.table.split(',')), exit_after=x.exit, loaderonly=x.loaderonly, rot=x.rot, vsplit=x.vsplit, cset=None if x.cset is None else [int(i) for i in x.cset.split(',')], lset=None if x.lset is None else [int(i) for i in x.lset.split(',')], stamps=x.stamps or x.dbg, dbgstamps=x.dbg, prefetch_code=not x.nopf,
                             wflags=fl, gflags=fl, kvflags=fl, xcdmap=not x.noxcd))
```

```python
import sys, math, struct
from asmgen import *

K_OFF = 0
V_OFF = 65536
WQ_OFF = V_OFF + 32768
WG_OFF = V_OFF + 49152
WU_OFF = V_OFF + 57344
S2_OFF = 131072
MISC = 155648
PROG, S1DONE, BAR, QRDY = 0, 4, 8, 12
NEEDG, FMODE = 56, 60
STATW, GV = 16, 48
QB, HID, PB, OB = 64, 320, 576, 1088
LDS_BYTES = 157696
WS_ID = 0x8000
WS_IDG = 0x9000
WS_M1 = 0x10000
WS_M3 = 0x100000
WS_M4 = 0x140000
WS_M3L = 0x180000
WS_M1L = 0x280000
WS_STAMP = 0x200000
WS_SIZE = 0x400000
CEXP = 1.4426950408889634 / math.sqrt(128.0)

def f2u(x):
    return struct.unpack("<I", struct.pack("<f", x))[0]

class Regs:
    def __init__(self, lo, hi):
        self.free = list(range(lo, hi))
        self.hi = lo
    def alloc(self, n=1, align=1):
        if n > 1 and align == 1:
            align = 2
        for s in self.free:
            if s % align == 0 and all((s + i) in self.free for i in range(n)):
                for i in range(n):
                    self.free.remove(s + i)
                self.hi = max(self.hi, s + n)
                return s
        raise RuntimeError("out of registers")
    def release(self, s, n=1):
        for i in range(n):
            assert (s + i) not in self.free
            self.free.append(s + i)
        self.free.sort()

def vr(b, n=1):
    return f"v{b}" if n == 1 else f"v[{b}:{b+n-1}]"

def gen(W=28, stamps=False, dbgstamps=False, wflags="nt", gflags="nt", kvflags="nt", prefetch_code=True, xcdmap=True,
        sleep=1, W2=None, vsplit=0, cset=None, lset=None, rot=17, loaderonly=False, exit_after=None, forceglobal=False, skipl=False, ntry=3, fin2=True, xfl='', pffl='', m1st='sc1', m1ld='sc1', table=(8, 8, 8, 8, 5, 1, 4, 1)):
    assert sum(table) == 43 and max(table) <= 6
    tabC = sum(c << (4*x) for x, c in enumerate(table))
    pre = [sum(table[:x]) for x in range(8)]
    tabP = sum(p << (8*x) for x, p in enumerate(pre))
    W2 = W2 or W
    a = Asm()
    KN = NAME + "_kernel"
    sWAVE, sH, sJ, sTAG, sE1 = 3, 4, 5, 6, 7
    pX, pK, pV, pWQ, pWO, pBX, pWG, pWU = 8, 10, 12, 14, 16, 18, 20, 22
    pWD, pGW, pOUT, pWS = 24, 26, 28, 30
    sU, sTMO, sT0, sT1, sT2, sT3 = 60, 61, 62, 63, 64, 65
    sCW, sB, sPG = 66, 67, 68
    sC = 58 + 12
    STAMP0 = 72
    role = ["entry"]
    def stamp(idx):
        sel = lset if role[0] == "loader" else cset
        if stamps and (sel is None or idx in sel):
            a(f"s_memrealtime s[{STAMP0+2*idx}:{STAMP0+2*idx+1}]")
            a("s_waitcnt lgkmcnt(0)")
    def dump_stamps(vtmp, vaddr, dbg_slots=None):
        if not stamps:
            return
        if dbgstamps:
            lab = a.newlabel("L_nodbg")
            a(f"""
            s_cmp_lg_u32 s2, 0
            s_cbranch_scc1 {lab}
            s_cmp_gt_u32 s{sWAVE}, 1
            s_cbranch_scc1 {lab}
            s_load_dwordx2 s[{sT2}:{sT3}], s[0:1], 88
            s_waitcnt lgkmcnt(0)
            s_mov_b64 exec, 1
            v_mov_b32 v{vaddr}, 0
            """)
            for slot, idx in dbg_slots:
                a(f"s_sub_u32 s{sT0}, s{STAMP0+2*idx}, s{STAMP0}")
                a(f"v_mov_b32 v{vtmp}, s{sT0}")
                a(f"global_store_dword v{vaddr}, v{vtmp}, s[{sT2}:{sT3}] offset:{4*slot}")
                a("s_nop 1")
            a("s_waitcnt vmcnt(0)")
            a.label(lab)
            return
        a(f"""
        s_mov_b64 exec, 1
        s_lshl_b32 s{sT0}, s2, 3
        s_add_u32 s{sT0}, s{sT0}, s{sWAVE}
        s_lshl_b32 s{sT0}, s{sT0}, 6
        s_add_u32 s{sT0}, s{sT0}, {WS_STAMP}
        s_add_u32 s{sT2}, s{pWS}, s{sT0}
        s_addc_u32 s{sT3}, s{pWS+1}, 0
        v_mov_b32 v{vaddr}, 0
        """)
        for i in range(14):
            a(f"v_mov_b32 v{vtmp}, s{STAMP0+2*i}")
            a(f"global_store_dword v{vaddr}, v{vtmp}, s[{sT2}:{sT3}] offset:{4*i}")
            a("s_nop 1")
        for i, r in ((14, 71), (15, 71)):
            a(f"v_mov_b32 v{vtmp}, s{r}")
            a(f"global_store_dword v{vaddr}, v{vtmp}, s[{sT2}:{sT3}] offset:{4*i}")
            a("s_nop 1")
        a("s_waitcnt vmcnt(0)")

    def ffn_range():
        a(f"""
        s_lshr_b32 s{sT0}, s{sH}, 2
        s_lshl_b32 s{sT1}, s{sT0}, 2
        s_lshr_b32 s{sC}, {hex(tabC)}, s{sT1}
        s_and_b32 s{sC}, s{sC}, 15
        s_lshl_b32 s{sT1}, s{sT0}, 3
        s_mov_b32 s{sT2}, {hex(tabP & 0xffffffff)}
        s_mov_b32 s{sT3}, {hex(tabP >> 32)}
        s_lshr_b64 s[{sT2}:{sT3}], s[{sT2}:{sT3}], s{sT1}
        s_and_b32 s{sU}, s{sT2}, 0xff
        s_lshl_b32 s{sU}, s{sU}, 2
        s_and_b32 s{sT0}, s{sH}, 3
        s_mul_i32 s{sT0}, s{sT0}, s{sC}
        s_add_u32 s{sU}, s{sU}, s{sT0}
        """)

    vRow4, vSl, vCb = 1, 2, 3
    vWQ = [8, 9]; vV = [10, 11]; vK = [12, 13, 14, 15]; vO = [16, 17]; vG = [18, 19]
    rK, rV, rWQ, rWO, rWG, rWU, rWD = 32, 36, 40, 44, 48, 52, 56
    sOff, sKV, sCnt, sN, sLast = 66, 67, 68, 69, 59 + 41
    a(f"""
    s_cmp_ge_u32 s2, 256
    s_cbranch_scc1 L_exit
    s_load_dwordx16 s[8:23], s[0:1], 0
    s_load_dwordx4 s[24:27], s[0:1], 64
    s_load_dwordx2 s[28:29], s[0:1], 80
    s_load_dwordx2 s[30:31], s[0:1], 96
    """)
    if stamps:
        for i in range(14):
            a(f"s_mov_b32 s{STAMP0+2*i}, 0")
        a("s_mov_b32 s71, 0")
        a(f"s_memrealtime s[{STAMP0}:{STAMP0+1}]")
    a(f"""
    v_lshrrev_b32 v1, 6, v0
    v_and_b32 v0, 63, v0
    s_and_b32 s{sT0}, s2, 7
    s_lshr_b32 s{sT1}, s2, 3
    v_readfirstlane_b32 s{sWAVE}, v1
    s_lshr_b32 s{sH}, s{sT1}, 3
    s_lshl_b32 s{sT0}, s{sT0}, 2
    s_add_u32 s{sH}, s{sH}, s{sT0}
    s_and_b32 s{sJ}, s{sT1}, 7
    {"" if xcdmap else f"s_lshr_b32 s{sH}, s2, 3"}
    {"" if xcdmap else f"s_and_b32 s{sJ}, s2, 7"}
    v_mov_b32 v4, 0
    v_mov_b32 v5, 0
    v_mov_b32 v6, 0
    v_mov_b32 v7, 0
    v_mov_b32 v26, {MISC}
    s_mov_b64 exec, 1
    ds_write_b128 v26, v[4:7]
    ds_write_b64 v26, v[4:5] offset:{NEEDG}
    s_mov_b64 exec, -1
    v_lshrrev_b32 v{vRow4}, 4, v0
    v_and_b32 v{vSl}, 15, v0
    v_lshrrev_b32 v{vCb}, 1, v{vSl}
    v_xor_b32 v{vCb}, v{vCb}, v{vRow4}
    v_and_b32 v5, 1, v0
    v_lshlrev_b32 v5, 4, v5
    v_lshl_or_b32 v6, v{vCb}, 5, v5
    v_xor_b32 v7, 0x80, v6
    v_lshl_add_u32 v{vWQ[0]}, v{vRow4}, 13, v6
    v_lshl_add_u32 v{vWQ[1]}, v{vRow4}, 13, v7
    s_lshl_b32 s{sOff}, s{sJ}, 19
    s_lshl_b32 s{sT0}, s{sH}, 8
    s_add_u32 s{sOff}, s{sOff}, s{sT0}
    s_mov_b32 s{sN}, {1 - W}
    s_mov_b32 s{sLast}, 0
    s_mov_b32 s{sTMO}, 1000000
    s_mov_b32 s{rWQ+2}, {512*4096*2}
    s_mov_b32 s{rWQ+3}, 0x20000
    s_cmp_lg_u32 s{sWAVE}, 0
    s_waitcnt lgkmcnt(0)
    s_barrier
    s_cbranch_scc1 L_compute
    s_mov_b32 s{rWQ}, s{pWQ}
    s_mov_b32 s{rWQ+1}, s{pWQ+1}
    s_setprio 3
    """)
    role[0] = "loader"
    stamp(1)
    NL = 184
    def srd(r, p, size):
        a(f"""
        s_mov_b32 s{r}, s{p}
        s_mov_b32 s{r+1}, s{p+1}
        s_mov_b32 s{r+2}, {size}
        s_mov_b32 s{r+3}, 0x20000
        """)
    sRel = 101
    def stream(name, cnt, unr, srdr, voffs, lds0, step, fl, pre=None, wait=None, rotate=False):
        Wc = wait or W
        a(f"s_mov_b32 m0, {lds0}")
        if pre:
            pre()
        a(f"s_mov_b32 s{sCnt}, {cnt // unr}")
        a.label(f"L_ld_{name}")
        for i in range(unr):
            a(f"buffer_load_dwordx4 v{voffs[i]}, s[{srdr}:{srdr+3}], s{sOff} offen {fl} lds")
            a(f"s_add_u32 m0, m0, 1024")
            if rotate:
                a(f"s_add_u32 s{sRel}, s{sRel}, 1024")
                a(f"s_and_b32 s{sRel}, s{sRel}, 0xffff")
                a(f"s_add_u32 s{sOff}, s{sKV}, s{sRel}")
            else:
                a(f"s_add_u32 s{sOff}, s{sOff}, {step}")
            a(f"s_waitcnt vmcnt({Wc-1})")
        a(f"""
        s_add_i32 s{sN}, s{sN}, {unr}
        s_max_i32 s{sLast}, s{sN}, s{sLast}
        v_mov_b32 v27, s{sLast}
        s_mov_b64 exec, 1
        ds_write_b32 v26, v27 offset:{PROG}
        s_mov_b64 exec, -1
        s_sub_u32 s{sCnt}, s{sCnt}, 1
        s_cmp_lg_u32 s{sCnt}, 0
        s_cbranch_scc1 L_ld_{name}
        """)
    stream("wq", 16, 4, rWQ, [vWQ[0], vWQ[0], vWQ[1], vWQ[1]], WQ_OFF, 4*8192, wflags)
    stamp(2)
    a(f"""
    v_lshl_add_u32 v{vV[0]}, v{vRow4}, 8, v6
    v_lshl_add_u32 v{vV[1]}, v{vRow4}, 8, v7
    v_lshrrev_b32 v20, 3, v0
    v_and_b32 v21, 7, v0
    v_lshrrev_b32 v21, 1, v21
    v_and_b32 v22, 1, v{vRow4}
    v_xor_b32 v21, v21, v22
    v_mul_u32_u24 v23, 2752, v20
    v_mov_b32 v24, 0x7fff0000
    """)
    ffn_range()
    for var in range(2):
        a(f"""
        v_xor_b32 v22, {2*var}, v21
        v_lshl_or_b32 v25, v22, 5, v5
        v_lshrrev_b32 v22, 4, v25
        v_cmp_le_u32 vcc, s{sC}, v22
        v_lshl_add_u32 v{vO[var]}, v20, 10, v25
        v_add_u32 v{vG[var]}, v23, v25
        v_cndmask_b32 v{vG[var]}, v{vG[var]}, v24, vcc
        """)
    srd(rWG, pWG, 512*1376*2); srd(rWU, pWU, 512*1376*2)
    def pre_g():
        a(f"s_mul_i32 s{sOff}, s{sJ}, {64*2752}")
        a(f"s_lshl_b32 s{sT0}, s{sU}, 4")
        a(f"s_add_u32 s{sOff}, s{sOff}, s{sT0}")
    stream("wg", 8, 4, rWG, [vG[0], vG[1], vG[0], vG[1]], WG_OFF, 8*2752, gflags, pre_g)
    stream("wu", 8, 4, rWU, [vG[0], vG[1], vG[0], vG[1]], WU_OFF, 8*2752, gflags, pre_g)
    stamp(7)
    a(f"v_xor_b32 v6, v{vSl}, v{vRow4}")
    for v in range(4):
        a(f"v_xor_b32 v7, {4*v}, v6")
        a(f"v_lshlrev_b32 v7, 4, v7")
        a(f"v_lshl_add_u32 v{vK[v]}, v{vRow4}, 8, v7")
    a(f"""
    s_lshr_b32 s{sT0}, s{sJ}, 2
    s_lshl_b32 s{sT0}, s{sT0}, 5
    s_add_u32 s{sT0}, s{sT0}, s{sH}
    s_lshl_b32 s{sKV}, s{sT0}, 20
    s_and_b32 s{sT0}, s{sJ}, 3
    s_lshl_b32 s{sT0}, s{sT0}, 16
    s_add_u32 s{sKV}, s{sKV}, s{sT0}
    s_add_u32 s{sKV}, s{sKV}, 0xC0000
    """)
    srd(rK, pK, 1 << 26); srd(rV, pV, 1 << 26)
    def pre_kv():
        a(f"s_mul_i32 s{sRel}, s2, {rot}")
        a(f"s_and_b32 s{sRel}, s{sRel}, 63")
        a(f"s_lshl_b32 s{sRel}, s{sRel}, 10")
        a(f"s_add_u32 s{sOff}, s{sKV}, s{sRel}")
    stream("k", 64, 4, rK, vK, K_OFF, 1024, kvflags, pre_kv, rotate=True)
    stamp(3)
    srd(rWO, pWO, 4096*512*2); srd(rWD, pWD, 1376*512*2)
    stream("v0", 32, 4, rV, [vV[0], vV[0], vV[1], vV[1]], V_OFF, 1024, kvflags, pre_kv, rotate=True)
    a(f"""
    L_ld_s1:
    ds_read_b32 v27, v26 offset:{S1DONE}
    s_waitcnt lgkmcnt(0)
    v_readfirstlane_b32 s{sT0}, v27
    s_cmp_ge_u32 s{sT0}, {0 if loaderonly else 4}
    s_cbranch_scc1 L_ld_s1_ok
    s_sub_u32 s{sTMO}, s{sTMO}, 1
    s_cbranch_scc1 L_exit
    s_sleep 1
    s_branch L_ld_s1
    L_ld_s1_ok:
    s_add_i32 s{sN}, s{sN}, {W - W2}
    """)
    stream("v", 32, 4, rV, [vV[0], vV[0], vV[1], vV[1]], V_OFF + 32*1024, 1024, kvflags, lambda: a("s_nop 0"), wait=W2, rotate=True)
    stamp(4)
    def pre_o():
        a(f"s_lshl_b32 s{sOff}, s{sH}, 17")
        a(f"s_lshl_b32 s{sT0}, s{sJ}, 7")
        a(f"s_add_u32 s{sOff}, s{sOff}, s{sT0}")
    def pre_d():
        a(f"s_lshl_b32 s{sOff}, s{sU}, 13")
        a(f"s_lshl_b32 s{sT0}, s{sJ}, 7")
        a(f"s_add_u32 s{sOff}, s{sOff}, s{sT0}")
    stream("wo", 16, 4, rWO, [vO[0], vO[1], vO[0], vO[1]], S2_OFF, 8192, wflags, pre_o, wait=W2)
    a(f"s_mov_b32 m0, {S2_OFF + 16*1024}")
    pre_d()
    a(f"s_mov_b32 s{sCnt}, 0x7fff0000")
    for i in range(8):
        a(f"s_cmp_lt_u32 {i}, s{sC}")
        a(f"s_cselect_b32 s{sT0}, s{sOff}, s{sCnt}")
        a(f"buffer_load_dwordx4 v{vO[i & 1]}, s[{rWD}:{rWD+3}], s{sT0} offen {wflags} lds")
        a(f"s_add_u32 m0, m0, 1024")
        a(f"s_add_u32 s{sOff}, s{sOff}, 8192")
        if 176 + i + 1 + 1 - W2 <= 160:
            a(f"s_waitcnt vmcnt({W2-1})")
        if (i & 1) and 176 + i + 1 + 1 - W2 <= 160:
            a(f"""
            s_add_i32 s{sN}, s{sN}, 2
            s_max_i32 s{sLast}, s{sN}, s{sLast}
            v_mov_b32 v27, s{sLast}
            s_mov_b64 exec, 1
            ds_write_b32 v26, v27 offset:{PROG}
            s_mov_b64 exec, -1
            """)
    landed = NL + 1 - W2
    for m in [x for x in (128, 136, 144, 152) if x > landed]:
        a(f"s_waitcnt vmcnt({NL - m})")
        a(f"v_mov_b32 v27, {m}")
        a("s_mov_b64 exec, 1")
        a(f"ds_write_b32 v26, v27 offset:{PROG}")
        a("s_mov_b64 exec, -1")
    a(f"s_waitcnt vmcnt({NL - 160})")
    stamp(5)
    a("s_barrier")
    a("s_waitcnt vmcnt(0)")
    a("s_barrier")
    stamp(6)
    a("s_waitcnt lgkmcnt(0)")
    dump_stamps(27, 28, [(0, 1), (1, 2), (2, 3), (3, 4), (4, 5), (5, 6)])
    a("s_endpgm")

    role[0] = "compute"
    a.label("L_compute")
    if loaderonly:
        a("s_endpgm")
    R = Regs(1, 256)
    vL = R.alloc(); vN = R.alloc(); vKG = R.alloc(); vR4 = R.alloc(); vC = R.alloc()
    vFF = R.alloc(); vMisc = R.alloc(); vOne = R.alloc()
    vt0 = R.alloc(8, 4); vt = [vt0 + i for i in range(8)]
    vx0 = R.alloc(4, 4); vxt = [vx0 + i for i in range(4)]
    vTR = [R.alloc(), R.alloc()]
    vTRG = R.alloc(); vTRS = R.alloc()
    vKA = [R.alloc() for _ in range(4)]
    vXB = [R.alloc(4, 4), R.alloc(4, 4)]
    vJunk = R.alloc(4, 4)
    vGx = R.alloc(12, 4)
    rWS = 32
    sM1, sM3, sM4 = 36, 37, 38
    def spin_tail(label, tight=False):
        a(f"""
        s_sub_u32 s{sTMO}, s{sTMO}, 1
        s_cbranch_scc1 L_exit
        {"" if tight else f"s_sleep {sleep}"}
        s_branch {label}
        """)
    def wait_lds(off, n, label):
        a(f"""
        {label}:
        ds_read_b32 v{vt[7]}, v{vMisc} offset:{off}
        s_waitcnt lgkmcnt(0)
        v_readfirstlane_b32 s{sT0}, v{vt[7]}
        s_cmp_ge_u32 s{sT0}, {n}
        s_cbranch_scc1 {label}_ok
        """)
        spin_tail(label)
        a.label(f"{label}_ok")
    def wait_prog(n, label, tight=False):
        a(f"""
        s_cmp_ge_u32 s{sPG}, {n}
        s_cbranch_scc1 {label}_ok
        {label}:
        ds_read_b32 v{vt[7]}, v{vMisc} offset:{PROG}
        s_waitcnt lgkmcnt(0)
        v_readfirstlane_b32 s{sPG}, v{vt[7]}
        s_cmp_ge_u32 s{sPG}, {n}
        s_cbranch_scc1 {label}_ok
        """)
        spin_tail(label, tight)
        a.label(f"{label}_ok")
    def signal(off):
        a(f"""
        s_mov_b64 exec, 1
        ds_add_u32 v{vMisc}, v{vOne} offset:{off}
        s_mov_b64 exec, -1
        """)
    def tag(v):
        a(f"v_bfi_b32 v{v}, v{vFF}, s{sTAG}, v{v}")
    def exec_n_lt2():
        a("s_mov_b32 exec_lo, 0x00030003")
        a("s_mov_b32 exec_hi, 0x00030003")
    def xrow(regs, op="v_add_f32"):
        for ins in ("v_permlane16_swap_b32", "v_permlane32_swap_b32"):
            for k0 in range(0, len(regs), 4):
                grp = regs[k0:k0+4]
                for r, t in zip(grp, vxt):
                    a(f"v_mov_b32 v{t}, v{r}")
                if len(grp) < 2:
                    a("s_nop 1")
                elif len(grp) < 3:
                    a("s_nop 0")
                for r, t in zip(grp, vxt):
                    a(f"{ins} v{t}, v{r}")
                for r, t in zip(grp, vxt):
                    a(f"{op} v{r}, v{t}, v{r}")
    vBad = R.alloc()
    def check_tags(regs):
        for r in regs:
            a(f"v_xor_b32 v{r}, s{sTAG}, v{r}")
        a(f"v_or_b32 v{vBad}, v{regs[0]}, v{regs[1]}")
        for k in range(2, len(regs), 2):
            a(f"v_or3_b32 v{vBad}, v{vBad}, v{regs[k]}, v{regs[k+1]}")
        a(f"v_and_b32 v{vBad}, v{vFF}, v{vBad}")
        a(f"v_cmp_ne_u32 vcc, 0, v{vBad}")
    def retry(label_again, label_ok):
        a(f"""
        s_cbranch_vccz {label_ok}
        s_sub_u32 s{sTMO}, s{sTMO}, 1
        s_cbranch_scc1 L_exit
        s_branch {label_again}
        {label_ok}:
        """)

    a(f"""
    v_mov_b32 v{vL}, v0
    s_sub_u32 s{sCW}, s{sWAVE}, 1
    s_lshr_b32 s{sB}, s{sJ}, 2
    s_load_dword s{sE1}, s[{pWS}:{pWS+1}], 0
    v_and_b32 v{vN}, 15, v{vL}
    v_lshrrev_b32 v{vKG}, 4, v{vL}
    v_and_b32 v{vt[0]}, 1, v{vN}
    v_lshlrev_b32 v{vt[0]}, 10, v{vt[0]}
    v_lshl_add_u32 v{vt[0]}, v{vKG}, 4, v{vt[0]}
    s_lshl_b32 s{sT0}, s{sJ}, 7
    v_add_u32 v{vt[0]}, s{sT0}, v{vt[0]}
    v_lshlrev_b32 v{vt[1]}, 4, v{vL}
    global_load_dwordx4 {vr(vXB[0],4)}, v{vt[0]}, s[{pX}:{pX+1}] {xfl}
    global_load_dwordx4 {vr(vXB[1],4)}, v{vt[0]}, s[{pX}:{pX+1}] offset:64 {xfl}
    s_mov_b32 s{sPG}, 0
    v_lshrrev_b32 v{vR4}, 2, v{vN}
    v_and_b32 v{vC}, 3, v{vN}
    v_mov_b32 v{vFF}, 0xff
    v_mov_b32 v{vMisc}, {MISC}
    v_mov_b32 v{vOne}, 1
    s_cmp_lg_u32 s{sCW}, 3
    s_cbranch_scc1 L_nopf
    global_load_dwordx4 {vr(vGx,4)}, v{vt[1]}, s[{pX}:{pX+1}] {xfl}
    global_load_dwordx4 {vr(vGx+4,4)}, v{vt[1]}, s[{pX}:{pX+1}] offset:1024 {xfl}
    global_load_dwordx4 {vr(vGx+8,4)}, v{vt[1]}, s[{pGW}:{pGW+1}] {xfl}
    """)
    if prefetch_code:
        a(f"""
        s_getpc_b64 s[{sT2}:{sT3}]
        L_pc:
        s_lshr_b32 s{sT0}, s2, 3
        s_and_b32 s{sT0}, s{sT0}, 15
        s_lshl_b32 s{sT0}, s{sT0}, 10
        s_sub_u32 s{sT2}, s{sT2}, L_pc-{KN}
        s_subb_u32 s{sT3}, s{sT3}, 0
        s_min_u32 s{sT0}, s{sT0}, L_codeend-{KN}-1024
        s_add_u32 s{sT2}, s{sT2}, s{sT0}
        s_addc_u32 s{sT3}, s{sT3}, 0
        global_load_dwordx4 {vr(vJunk,4)}, v{vt[1]}, s[{sT2}:{sT3}] {pffl}
        """)
    a.label("L_nopf")
    a(f"""
    s_mov_b32 s{rWS}, s{pWS}
    s_mov_b32 s{rWS+1}, s{pWS+1}
    s_mov_b32 s{rWS+2}, {WS_SIZE}
    s_mov_b32 s{rWS+3}, 0x20000
    s_lshl_b32 s{sT0}, s{sH}, 3
    s_add_u32 s{sT0}, s{sT0}, s{sJ}
    s_mul_i32 s{sM1}, s{sT0}, 2048
    s_add_u32 s{sM1}, s{sM1}, {WS_M1}
    s_mul_i32 s{sM3}, s{sT0}, 640
    s_add_u32 s{sM3}, s{sM3}, {WS_M3}
    s_lshl_b32 s{sM4}, s{sJ}, 14
    s_lshl_b32 s{sT0}, s{sH}, 9
    s_add_u32 s{sM4}, s{sM4}, s{sT0}
    s_add_u32 s{sM4}, s{sM4}, {WS_M4}
    v_lshl_add_u32 v{vt[0]}, v{vKG}, 3, v{vR4}          ; 8kg + r4
    v_and_b32 v{vt[1]}, 1, v{vKG}
    v_lshl_or_b32 v{vt[2]}, v{vt[1]}, 2, v{vR4}         ; f = r4 | (kg&1)<<2
    v_lshlrev_b32 v{vt[3]}, 8, v{vt[0]}
    v_lshl_add_u32 v{vt[3]}, v{vC}, 3, v{vt[3]}
    v_add_u32 v{vt[3]}, {V_OFF}, v{vt[3]}
    s_lshl_b32 s{sT0}, s{sCW}, 1
    v_xor_b32 v{vTR[0]}, s{sT0}, v{vt[2]}
    v_lshl_add_u32 v{vTR[0]}, v{vTR[0]}, 5, v{vt[3]}
    s_add_u32 s{sT0}, s{sT0}, 1
    v_xor_b32 v{vTR[1]}, s{sT0}, v{vt[2]}
    v_lshl_add_u32 v{vTR[1]}, v{vTR[1]}, 5, v{vt[3]}
    v_lshrrev_b32 v{vt[2]}, 1, v{vR4}
    v_lshl_or_b32 v{vt[3]}, v{vt[1]}, 1, v{vt[2]}
    v_xor_b32 v{vt[3]}, s{sCW}, v{vt[3]}
    v_lshlrev_b32 v{vt[3]}, 5, v{vt[3]}
    v_lshl_add_u32 v{vt[3]}, v{vt[0]}, 7, v{vt[3]}
    v_lshl_add_u32 v{vt[3]}, v{vC}, 3, v{vt[3]}
    v_add_u32 v{vTRG}, {WG_OFF}, v{vt[3]}
    v_add_u32 v{vTRS}, {S2_OFF}, v{vt[3]}
    s_lshl_b32 s{sT0}, s{sCW}, 14
    v_lshlrev_b32 v{vt[0]}, 8, v{vN}
    v_add_u32 v{vt[0]}, s{sT0}, v{vt[0]}
    v_xor_b32 v{vt[1]}, v{vKG}, v{vN}
    """)
    for t in range(4):
        a(f"v_xor_b32 v{vt[2]}, {4*t}, v{vt[1]}")
        a(f"v_lshl_add_u32 v{vKA[t]}, v{vt[2]}, 4, v{vt[0]}")
    stamp(1)

    vA = R.alloc(16, 4)
    vAcc = R.alloc(8, 4)
    vM1 = R.alloc()
    a(f"""
    v_lshlrev_b32 v{vM1}, 6, v{vN}
    v_lshl_add_u32 v{vM1}, v{vKG}, 4, v{vM1}
    """)
    wait_prog(16, "L_w16")
    stamp(2)
    for ti in range(2):
        for u in range(2):
            f = vA + (ti*2 + u) * 4
            a(f"ds_read_b64_tr_b16 {vr(f,2)}, v{vTR[ti]} offset:{WQ_OFF - V_OFF + u*8192}")
            a(f"ds_read_b64_tr_b16 {vr(f+2,2)}, v{vTR[ti]} offset:{WQ_OFF - V_OFF + u*8192+1024}")
    a(f"""
    s_add_u32 s{sE1}, s{sE1}, 1
    s_and_b32 s{sTAG}, s{sE1}, 0xff
    s_waitcnt vmcnt(0) lgkmcnt(0)
    """)
    for u in range(2):
        for ti in range(2):
            f = vA + (ti*2 + u) * 4
            c = "0" if u == 0 else vr(vAcc + 4*ti, 4)
            a(f"v_mfma_f32_16x16x32_bf16 {vr(vAcc+4*ti,4)}, {vr(f,4)}, {vr(vXB[u],4)}, {c}")
    a(f"""
    s_lshl_b32 s{sT0}, s{sCW}, 8
    s_add_u32 s{sT0}, s{sT0}, s{sM1}
    s_nop 6
    """)
    for i in range(8):
        tag(vAcc + i)
    exec_n_lt2()
    a(f"s_add_u32 s{sT1}, s{sT0}, {WS_M1L - WS_M1}")
    a(f"buffer_store_dwordx4 {vr(vAcc,4)}, v{vM1}, s[{rWS}:{rWS+3}], s{sT1} offen")
    a(f"buffer_store_dwordx4 {vr(vAcc+4,4)}, v{vM1}, s[{rWS}:{rWS+3}], s{sT1} offen offset:128")
    sMODE, sDL1, sDL3, sIDW, sXCC = 60, 69, 70, 100, 101
    a(f"""
    s_getreg_b32 s{sXCC}, hwreg(HW_REG_XCC_ID)
    s_add_u32 s{sIDW}, s{sE1}, 0x5bd1e995
    s_cmp_lg_u32 s{sCW}, 0
    s_cbranch_scc1 L_noid
    s_lshl_b32 s{sT1}, s{sH}, 7
    s_lshl_b32 s{sT2}, s{sJ}, 3
    s_add_u32 s{sT1}, s{sT1}, s{sT2}
    s_add_u32 s{sT1}, s{sT1}, {WS_ID}
    v_mov_b32 v{vt[2]}, s{sIDW}
    v_mov_b32 v{vt[3]}, s{sXCC}
    v_mov_b32 v{vt[0]}, 0
    s_mov_b64 exec, 1
    buffer_store_dwordx2 v[{vt[2]}:{vt[3]}], v{vt[0]}, s[{rWS}:{rWS+3}], s{sT1} offen
    L_noid:
    s_mov_b64 exec, -1
    """)
    stamp(3)
    vAcc2 = R.alloc(8, 4)
    a(f"""
    s_cmp_eq_u32 s{sCW}, 3
    s_cbranch_scc1 L_gate
    """)
    wait_prog(32, "L_w32")
    for mi_, off in enumerate((0, 8192)):
        for u in range(2):
            f = vA + (mi_*2 + u) * 4
            a(f"ds_read_b64_tr_b16 {vr(f,2)}, v{vTRG} offset:{off + u*4096}")
            a(f"ds_read_b64_tr_b16 {vr(f+2,2)}, v{vTRG} offset:{off + u*4096 + 512}")
    a("s_waitcnt lgkmcnt(0)")
    for u in range(2):
        for mi_ in range(2):
            f = vA + (mi_*2 + u) * 4
            c = "0" if u == 0 else vr(vAcc2 + 4*mi_, 4)
            a(f"v_mfma_f32_16x16x32_bf16 {vr(vAcc2+4*mi_,4)}, {vr(f,4)}, {vr(vXB[u],4)}, {c}")
    signal(S1DONE)
    a(f"""
    s_lshl_b32 s{sT0}, s{sCW}, 7
    s_add_u32 s{sT0}, s{sT0}, s{sM1}
    s_nop 5
    """)
    for i in range(8):
        tag(vAcc2 + i)
    exec_n_lt2()
    a(f"s_add_u32 s{sT1}, s{sT0}, {WS_M1L - WS_M1}")
    a(f"buffer_store_dwordx4 {vr(vAcc2,4)}, v{vM1}, s[{rWS}:{rWS+3}], s{sT1} offen offset:1024")
    a(f"buffer_store_dwordx4 {vr(vAcc2+4,4)}, v{vM1}, s[{rWS}:{rWS+3}], s{sT1} offen offset:1536")
    a("s_mov_b64 exec, -1")
    a("s_branch L_p3")
    a.label("L_gate")
    signal(S1DONE)
    gx0, gx1, gw = vGx, vGx + 4, vGx + 8
    z = [vt[2], vt[3]]
    a(f"v_mov_b32 v{z[0]}, 0")
    a(f"v_mov_b32 v{z[1]}, 0")
    for i in range(4):
        a(f"v_lshlrev_b32 v{vt[4]}, 16, v{gw+i}")
        a(f"v_and_b32 v{vt[5]}, 0xffff0000, v{gw+i}")
        for bi, gx in enumerate((gx0, gx1)):
            a(f"v_lshlrev_b32 v{vt[6]}, 16, v{gx+i}")
            a(f"v_fmac_f32 v{z[bi]}, v{vt[6]}, v{vt[4]}")
            a(f"v_and_b32 v{vt[6]}, 0xffff0000, v{gx+i}")
            a(f"v_fmac_f32 v{z[bi]}, v{vt[6]}, v{vt[5]}")
    for rot in (8, 4, 2, 1):
        a("s_nop 1")
        for bi in range(2):
            a(f"v_add_f32_dpp v{z[bi]}, v{z[bi]}, v{z[bi]} row_ror:{rot} row_mask:0xf bank_mask:0xf")
    xrow(z)
    a(f"""
    v_mul_f32 v{z[0]}, {hex(f2u(-1.4426950408889634))}, v{z[0]}
    v_mul_f32 v{z[1]}, {hex(f2u(-1.4426950408889634))}, v{z[1]}
    v_exp_f32 v{z[0]}, v{z[0]}
    v_exp_f32 v{z[1]}, v{z[1]}
    s_nop 0
    v_add_f32 v{z[0]}, 1.0, v{z[0]}
    v_add_f32 v{z[1]}, 1.0, v{z[1]}
    v_rcp_f32 v{z[0]}, v{z[0]}
    v_rcp_f32 v{z[1]}, v{z[1]}
    s_nop 0
    s_mov_b64 exec, 1
    ds_write_b64 v{vMisc}, v[{z[0]}:{z[1]}] offset:{GV}
    s_mov_b64 exec, -1
    """)
    a.label("L_p3")
    stamp(4)
    if exit_after == "p2":
        a("s_endpgm")
    R.release(vGx, 12)
    vG4 = R.alloc(16, 4)
    vId = R.alloc(2, 2)
    def gstores():
        lab = a.newlabel("L_gs")
        a(f"""
        s_lshl_b32 s{sT1}, s{sCW}, 8
        s_add_u32 s{sT1}, s{sT1}, s{sM1}
        s_lshl_b32 s{sT2}, s{sCW}, 7
        s_add_u32 s{sT2}, s{sT2}, s{sM1}
        """)
        exec_n_lt2()
        a(f"""
        buffer_store_dwordx4 {vr(vAcc,4)}, v{vM1}, s[{rWS}:{rWS+3}], s{sT1} offen sc1
        buffer_store_dwordx4 {vr(vAcc+4,4)}, v{vM1}, s[{rWS}:{rWS+3}], s{sT1} offen offset:128 sc1
        s_cmp_eq_u32 s{sCW}, 3
        s_cbranch_scc1 {lab}
        buffer_store_dwordx4 {vr(vAcc2,4)}, v{vM1}, s[{rWS}:{rWS+3}], s{sT2} offen offset:1024 sc1
        buffer_store_dwordx4 {vr(vAcc2+4,4)}, v{vM1}, s[{rWS}:{rWS+3}], s{sT2} offen offset:1536 sc1
        {lab}:
        s_mov_b64 exec, -1
        """)
    def needg():
        a(f"""
        s_mov_b64 exec, 1
        ds_write_b32 v{vMisc}, v{vOne} offset:{NEEDG}
        s_mov_b64 exec, -1
        """)
        gstores()
        a(f"""
        s_lshl_b32 s{sT1}, s{sH}, 7
        s_lshl_b32 s{sT2}, s{sJ}, 3
        s_add_u32 s{sT1}, s{sT1}, s{sT2}
        s_add_u32 s{sT1}, s{sT1}, {WS_IDG}
        v_mov_b32 v{vId}, s{sIDW}
        v_mov_b32 v{vId+1}, s{sXCC}
        v_mov_b32 v{vt[4]}, 0
        s_mov_b64 exec, 1
        buffer_store_dwordx2 {vr(vId,2)}, v{vt[4]}, s[{rWS}:{rWS+3}], s{sT1} offen sc1
        s_mov_b64 exec, -1
        s_mov_b32 s46, 1
        """)
    def attempt(idbase, delta, ok_label):
        a(f"buffer_load_dwordx2 {vr(vId,2)}, v{vt[3]}, s[{rWS}:{rWS+3}], s{idbase} offen sc1")
        a(f"s_add_u32 s{sT1}, s{sT0}, {delta}")
        for i in range(4):
            a(f"buffer_load_dwordx4 {vr(vG4+4*i,4)}, v{vt[1]}, s[{rWS}:{rWS+3}], s{sT1} offen sc1")
            if i < 3:
                a(f"s_add_u32 s{sT1}, s{sT1}, 4096")
        a("s_waitcnt vmcnt(0)")
        check_tags([vG4 + i for i in range(16)])
        a(f"""
        s_mov_b64 s[44:45], vcc
        v_cmp_ne_u32 vcc, s{sIDW}, v{vId}
        s_or_b64 s[44:45], s[44:45], vcc
        s_cmp_eq_u64 s[44:45], 0
        s_cbranch_scc1 {ok_label}
        """)
    a(f"""
    s_cmp_lg_u32 s{sCW}, 0
    s_cbranch_scc1 L_waitm
    s_mul_i32 s{sT0}, s{sH}, {8*2048}
    s_lshl_b32 s{sT1}, s{sB}, 6
    s_add_u32 s{sT0}, s{sT0}, s{sT1}
    s_add_u32 s{sT0}, s{sT0}, {WS_M1}
    v_lshrrev_b32 v{vt[1]}, 5, v{vL}
    v_lshlrev_b32 v{vt[1]}, 11, v{vt[1]}
    v_and_b32 v{vt[2]}, 31, v{vL}
    v_lshrrev_b32 v{vt[4]}, 2, v{vt[2]}
    v_lshl_add_u32 v{vt[1]}, v{vt[4]}, 7, v{vt[1]}
    v_and_b32 v{vt[4]}, 3, v{vt[2]}
    v_lshl_add_u32 v{vt[1]}, v{vt[4]}, 4, v{vt[1]}
    v_and_b32 v{vt[3]}, 7, v{vL}
    v_lshlrev_b32 v{vt[3]}, 3, v{vt[3]}
    s_lshl_b32 s42, s{sH}, 7
    s_add_u32 s41, s42, {WS_IDG}
    s_add_u32 s42, s42, {WS_ID}
    s_mov_b32 s43, {ntry}
    s_mov_b32 s46, 0
    L_ql:
    """)
    if not skipl:
        attempt(42, WS_M1L - WS_M1, "L_have")
    a(f"""
    s_cmp_lg_u32 s46, 0
    s_cbranch_scc1 L_tryg
    s_sub_u32 s43, s43, 1
    s_cmp_lg_u32 s43, 0
    s_cbranch_scc1 L_ql
    """)
    needg()
    a.label("L_tryg")
    attempt(41, 0, "L_have")
    a(f"""
    s_sub_u32 s{sTMO}, s{sTMO}, 1
    s_cbranch_scc1 L_exit
    s_branch L_ql
    L_have:
    v_cmp_ne_u32 vcc, s{sXCC}, v{vId+1}
    s_mov_b32 s47, 1
    s_cbranch_vccz L_idsame
    s_mov_b32 s47, 2
    L_idsame:
    {"s_mov_b32 s47, 2" if forceglobal else ""}
    s_cmp_eq_u32 s47, 1
    s_cbranch_scc1 L_setmode
    s_cmp_lg_u32 s46, 0
    s_cbranch_scc1 L_setmode
    """)
    needg()
    a(f"""
    L_setmode:
    v_mov_b32 v{vt[4]}, s47
    s_mov_b64 exec, 1
    ds_write_b32 v{vMisc}, v{vt[4]} offset:{FMODE}
    s_mov_b64 exec, -1
    """)
    stamp(5)
    for e in range(4):
        a(f"v_add_f32 v{vG4+e}, v{vG4+e}, v{vG4+4+e}")
        a(f"v_add_f32 v{vG4+8+e}, v{vG4+8+e}, v{vG4+12+e}")
    for e in range(4):
        a(f"v_add_f32 v{vG4+e}, v{vG4+e}, v{vG4+8+e}")
    for e in range(4):
        a(f"v_mov_b32 v{vG4+4+e}, v{vG4+e}")
    for e in range(4):
        a(f"v_permlane32_swap_b32 v{vG4+4+e}, v{vG4+e}")
    for e in range(4):
        a(f"v_add_f32 v{vG4+e}, v{vG4+e}, v{vG4+4+e}")
    a(f"""
    v_cvt_pk_bf16_f32 v{vG4+4}, v{vG4}, v{vG4+1}
    v_cvt_pk_bf16_f32 v{vG4+5}, v{vG4+2}, v{vG4+3}
    v_lshl_add_u32 v{vt[2]}, v{vt[2]}, 3, v{vMisc}
    s_mov_b32 exec_hi, 0
    ds_write_b64 v{vt[2]}, {vr(vG4+4,2)} offset:{QB}
    s_mov_b64 exec, 1
    ds_write_b32 v{vMisc}, v{vOne} offset:{QRDY}
    s_mov_b64 exec, -1
    """)
    a("s_branch L_waitq")
    a(f"""
    L_waitm:
    s_mov_b32 s46, 0
    L_wm:
    ds_read_b32 v{vt[6]}, v{vMisc} offset:{QRDY}
    ds_read_b32 v{vt[7]}, v{vMisc} offset:{NEEDG}
    s_waitcnt lgkmcnt(0)
    v_readfirstlane_b32 s47, v{vt[6]}
    v_readfirstlane_b32 s{sT0}, v{vt[7]}
    s_andn2_b32 s{sT0}, s{sT0}, s46
    s_cbranch_scc0 L_wm_nog
    """)
    gstores()
    a(f"""
    s_mov_b32 s46, 1
    L_wm_nog:
    s_cmp_lg_u32 s47, 0
    s_cbranch_scc1 L_qrdy
    """)
    spin_tail("L_wm")
    a.label("L_waitq")
    a.label("L_qrdy")
    a(f"""
    ds_read_b32 v{vt[7]}, v{vMisc} offset:{FMODE}
    s_waitcnt lgkmcnt(0)
    v_readfirstlane_b32 s{sMODE}, v{vt[7]}
    s_cmp_eq_u32 s{sMODE}, 1
    s_cselect_b32 s{sDL1}, {WS_M1L - WS_M1}, 0
    s_cselect_b32 s{sDL3}, {WS_M3L - WS_M3}, 0
    """)
    stamp(6)
    if exit_after == "q":
        a("s_endpgm")
    vFoff = R.alloc()
    vF4 = R.alloc(16, 4)
    a(f"""
    v_lshlrev_b32 v{vFoff}, 11, v{vKG}
    v_lshl_add_u32 v{vFoff}, v{vR4}, 7, v{vFoff}
    v_lshl_add_u32 v{vFoff}, v{vC}, 4, v{vFoff}
    s_sub_u32 s{sT0}, s{sCW}, 1
    s_and_b32 s{sT1}, s{sT0}, 1
    s_lshl_b32 s{sT1}, s{sT1}, 6
    s_mul_i32 s39, s{sH}, {8*2048}
    s_add_u32 s39, s39, s{sT1}
    s_add_u32 s39, s39, {WS_M1 + 1024}
    s_add_u32 s39, s39, s{sDL1}
    s_cmp_gt_u32 s{sT0}, 1
    s_cbranch_scc1 L_noffn1
    """)
    def ffn_loads():
        a(f"""
        v_cmp_gt_u32 vcc, 12, v{vN}
        s_and_b64 exec, exec, vcc
        s_add_u32 s{sT1}, s39, {4*2048}
        buffer_load_dwordx4 {vr(vF4,4)}, v{vFoff}, s[{rWS}:{rWS+3}], s39 offen sc1
        buffer_load_dwordx4 {vr(vF4+4,4)}, v{vFoff}, s[{rWS}:{rWS+3}], s{sT1} offen sc1
        buffer_load_dwordx4 {vr(vF4+8,4)}, v{vFoff}, s[{rWS}:{rWS+3}], s39 offen offset:512 sc1
        buffer_load_dwordx4 {vr(vF4+12,4)}, v{vFoff}, s[{rWS}:{rWS+3}], s{sT1} offen offset:512 sc1
        s_mov_b64 exec, -1
        """)
    ffn_loads()
    a.label("L_noffn1")
    if exit_after == "ffn":
        a("s_waitcnt vmcnt(0)")
        a("s_endpgm")
    vQ = R.alloc(16, 4)
    vKf = R.alloc(64, 4)
    vS = R.alloc(16, 4)
    a(f"""
    v_lshlrev_b32 v{vt[0]}, 4, v{vKG}
    v_add_u32 v{vt[0]}, v{vMisc}, v{vt[0]}
    """)
    for t in range(4):
        a(f"ds_read_b128 {vr(vQ+4*t,4)}, v{vt[0]} offset:{QB + 64*t}")
    a(f"s_lshl_b32 s{sT1}, s{sCW}, 4")
    a(f"s_add_u32 s{sT1}, s{sT1}, 48")
    wait_prog(f"s{sT1}", "L_wk")
    for T in range(4):
        for t in range(4):
            a(f"ds_read_b128 {vr(vKf + 16*T + 4*t, 4)}, v{vKA[t]} offset:{T*4096}")
    for T in range(4):
        a(f"s_waitcnt lgkmcnt({4*(3-T)})")
        for t in range(4):
            c = "0" if t == 0 else vr(vS + 4*T, 4)
            a(f"v_mfma_f32_16x16x32_bf16 {vr(vS+4*T,4)}, {vr(vKf+16*T+4*t,4)}, {vr(vQ+4*t,4)}, {c}")
    vSt = R.alloc(2, 2)
    vMc, vSum = vSt, vSt + 1
    a(f"""
    s_mov_b32 s{sT1}, {hex(f2u(CEXP))}
    s_nop 3
    v_max3_f32 v{vMc}, v{vS}, v{vS+1}, v{vS+2}
    """)
    for k in range(3, 11, 2):
        a(f"v_max3_f32 v{vMc}, v{vMc}, v{vS+k}, v{vS+k+1}")
    a(f"v_max_f32 v{vMc}, v{vMc}, v{vS+11}")
    a("s_nop 1")
    a(f"v_max3_f32 v{vMc}, v{vMc}, v{vS+12}, v{vS+13}")
    a(f"v_max3_f32 v{vMc}, v{vMc}, v{vS+14}, v{vS+15}")
    xrow([vMc], "v_max_f32")
    a(f"""
    v_mul_f32 v{vMc}, s{sT1}, v{vMc}
    v_and_b32 v{vMc}, 0xffffff00, v{vMc}
    """)
    for k in range(16):
        a(f"v_fma_f32 v{vS+k}, v{vS+k}, s{sT1}, -v{vMc}")
    for k in range(16):
        a(f"v_exp_f32 v{vS+k}, v{vS+k}")
    for T in range(4):
        a(f"v_cvt_pk_bf16_f32 v{vKf+2*T}, v{vS+4*T}, v{vS+4*T+1}")
        a(f"v_cvt_pk_bf16_f32 v{vKf+2*T+1}, v{vS+4*T+2}, v{vS+4*T+3}")
    a(f"""
    s_lshl_b32 s{sT0}, s{sCW}, 7
    v_lshl_add_u32 v{vt[1]}, v{vKG}, 3, v{vMisc}
    v_add_u32 v{vt[1]}, s{sT0}, v{vt[1]}
    s_mov_b32 exec_lo, 0x00010001
    s_mov_b32 exec_hi, 0x00010001
    """)
    for T in range(4):
        a(f"ds_write_b64 v{vt[1]}, {vr(vKf+2*T,2)} offset:{PB + 32*T}")
    a("s_mov_b64 exec, -1")
    for k in range(0, 16, 2):
        a(f"v_add_f32 v{vS+k}, v{vS+k}, v{vS+k+1}")
    for k in range(0, 16, 4):
        a(f"v_add_f32 v{vS+k}, v{vS+k}, v{vS+k+2}")
    a(f"v_add_f32 v{vS}, v{vS}, v{vS+4}")
    a(f"v_add_f32 v{vS+8}, v{vS+8}, v{vS+12}")
    a(f"v_add_f32 v{vSum}, v{vS}, v{vS+8}")
    xrow([vSum])
    a(f"""
    s_lshl_b32 s{sT0}, s{sCW}, 3
    v_add_u32 v{vt[0]}, s{sT0}, v{vMisc}
    s_mov_b64 exec, 1
    ds_write_b64 v{vt[0]}, {vr(vSt,2)} offset:{STATW}
    ds_add_u32 v{vMisc}, v{vOne} offset:{BAR}
    s_mov_b64 exec, -1
    """)
    wait_lds(BAR, 4, "L_bar1")
    stamp(7)
    if exit_after == "bar":
        a("s_waitcnt vmcnt(0)")
        a("s_endpgm")
    R.release(vKf, 64); R.release(vQ, 16); R.release(vS, 16)
    vP = R.alloc(32, 4)
    vFw = R.alloc(8, 4)
    a(f"""
    v_lshl_add_u32 v{vt[0]}, v{vKG}, 4, v{vMisc}
    ds_read_b128 {vr(vFw,4)}, v{vMisc} offset:{STATW}
    ds_read_b128 {vr(vFw+4,4)}, v{vMisc} offset:{STATW+16}
    """)
    for u in range(8):
        a(f"ds_read_b128 {vr(vP+4*u,4)}, v{vt[0]} offset:{PB + 64*u}")
    a(f"""
    s_waitcnt lgkmcnt(8)
    v_max3_f32 v{vt[4]}, v{vFw}, v{vFw+2}, v{vFw+4}
    v_max_f32 v{vt[4]}, v{vt[4]}, v{vFw+6}
    """)
    for w in range(4):
        a(f"v_sub_f32 v{vFw+2*w}, v{vFw+2*w}, v{vt[4]}")
    for w in range(4):
        a(f"v_exp_f32 v{vFw+2*w}, v{vFw+2*w}")
    a(f"""
    s_cmp_lg_u32 s{sCW}, 0
    s_cbranch_scc1 L_nostat
    v_mul_f32 v{vt[5]}, v{vFw}, v{vFw+1}
    v_fmac_f32 v{vt[5]}, v{vFw+2}, v{vFw+3}
    v_fmac_f32 v{vt[5]}, v{vFw+4}, v{vFw+5}
    v_fmac_f32 v{vt[5]}, v{vFw+6}, v{vFw+7}
    """)
    tag(vt[4])
    tag(vt[5])
    a(f"""
    v_mov_b32 v{vt[6]}, v{vt[4]}
    v_mov_b32 v{vt[7]}, v{vt[5]}
    v_lshlrev_b32 v{vt[0]}, 4, v{vL}
    s_mov_b64 exec, 0xff
    s_add_u32 s{sT0}, s{sM3}, {WS_M3L - WS_M3}
    buffer_store_dwordx4 v[{vt[4]}:{vt[7]}], v{vt[0]}, s[{rWS}:{rWS+3}], s{sT0} offen offset:512
    s_cmp_eq_u32 s{sMODE}, 1
    s_cbranch_scc1 L_g3s
    buffer_store_dwordx4 v[{vt[4]}:{vt[7]}], v{vt[0]}, s[{rWS}:{rWS+3}], s{sM3} offen offset:512 sc1
    L_g3s:
    s_mov_b64 exec, -1
    L_nostat:
    """)
    stamp(8)
    vO = R.alloc(32, 4)
    vVf = R.alloc(32, 4)
    def pv_batch(us, need, label):
        if need is None:
            a("s_barrier")
        else:
            wait_prog(need, label, tight=(need >= 152))
        for k, u in enumerate(us):
            f0 = vVf + 8*k
            for ti in range(2):
                a(f"ds_read_b64_tr_b16 {vr(f0+4*ti,2)}, v{vTR[ti]} offset:{u*8192}")
                a(f"ds_read_b64_tr_b16 {vr(f0+4*ti+2,2)}, v{vTR[ti]} offset:{u*8192+1024}")
        for k, u in enumerate(us):
            a(f"s_waitcnt lgkmcnt({4*(len(us)-1-k)})")
            f0 = vVf + 8*k
            w = u >> 1
            for ti in range(2):
                acc = vO + 8*w + 4*ti
                c = "0" if (u & 1) == 0 else vr(acc, 4)
                a(f"v_mfma_f32_16x16x32_bf16 {vr(acc,4)}, {vr(f0+4*ti,4)}, {vr(vP+4*u,4)}, {c}")
    pv_batch([0, 1, 2, 3], 128, "L_wvA")
    vM3 = R.alloc(); vX3 = R.alloc(); vSa = R.alloc(); vSg = R.alloc(2, 2); vSgG = R.alloc(2, 2)
    vWs = R.alloc(4, 4)
    sFB = 47
    def g3_base(delta):
        a(f"""
        s_and_b32 s{sT3}, s{sCW}, 1
        s_lshl_b32 s{sT3}, s{sT3}, 8
        s_add_u32 s41, s40, s{sT3}
        s_add_u32 s41, s41, {delta}
        s_add_u32 s42, s41, 640
        s_add_u32 s43, s41, 1280
        s_add_u32 s44, s41, 1920
        """)
    a(f"""
    v_and_b32 v{vt[0]}, 1, v{vN}
    v_lshlrev_b32 v{vt[1]}, 6, v{vt[0]}
    v_lshl_add_u32 v{vM3}, v{vKG}, 4, v{vt[1]}
    s_lshr_b32 s{sT1}, s{sCW}, 1
    s_lshl_b32 s{sT2}, s{sH}, 3
    s_lshl_b32 s{sT3}, s{sT1}, 2
    s_add_u32 s{sT2}, s{sT2}, s{sT3}
    s_mul_i32 s40, s{sT2}, 640
    s_add_u32 s40, s40, {WS_M3}
    v_lshlrev_b32 v{vX3}, 2, v{vL}
    v_and_b32 v{vSa}, 3, v{vL}
    v_mul_u32_u24 v{vSa}, 640, v{vSa}
    """)
    a(f"s_add_u32 s40, s40, s{sDL3}")
    g3_base(0)
    a(f"""
    s_sub_u32 s{sT0}, s{sCW}, 1
    s_cmp_gt_u32 s{sT0}, 1
    s_cbranch_scc1 L_noffn2
    s_waitcnt vmcnt(0)
    L_ffnchk:
    v_cmp_gt_u32 vcc, 12, v{vN}
    s_and_b64 exec, exec, vcc
    """)
    check_tags([vF4 + i for i in range(16)])
    a(f"""
    s_mov_b64 exec, -1
    s_cbranch_vccz L_ffn_ok
    s_sub_u32 s{sTMO}, s{sTMO}, 1
    s_cbranch_scc1 L_exit
    """)
    ffn_loads()
    a("s_waitcnt vmcnt(0)")
    a("s_branch L_ffnchk")
    a.label("L_ffn_ok")
    gsum = [vF4 + e for e in range(4)]; usum = [vF4 + 8 + e for e in range(4)]
    for e in range(4):
        a(f"v_add_f32 v{vF4+e}, v{vF4+e}, v{vF4+4+e}")
        a(f"v_add_f32 v{vF4+8+e}, v{vF4+8+e}, v{vF4+12+e}")
    xrow(gsum + usum)
    a(f"v_cmp_gt_u32 vcc, 12, v{vN}")
    for e in range(4):
        a(f"v_max_f32 v{gsum[e]}, 0, v{gsum[e]}")
        a(f"v_mul_f32 v{gsum[e]}, v{gsum[e]}, v{usum[e]}")
        a(f"v_cndmask_b32 v{gsum[e]}, 0, v{gsum[e]}, vcc")
    a(f"""
    v_cvt_pk_bf16_f32 v{vF4+4}, v{gsum[0]}, v{gsum[1]}
    v_cvt_pk_bf16_f32 v{vF4+5}, v{gsum[2]}, v{gsum[3]}
    s_lshl_b32 s{sT0}, s{sT0}, 7
    v_lshl_add_u32 v{vt[1]}, v{vN}, 3, v{vMisc}
    v_add_u32 v{vt[1]}, s{sT0}, v{vt[1]}
    s_mov_b64 exec, 0xffff
    ds_write_b64 v{vt[1]}, {vr(vF4+4,2)} offset:{HID}
    s_mov_b64 exec, -1
    L_noffn2:
    """)
    pv_batch([4, 5], 144, "L_wvB")
    a(f"buffer_load_dwordx2 {vr(vSg,2)}, v{vSa}, s[{rWS}:{rWS+3}], s40 offen offset:512 sc1")
    for i in range(8):
        a(f"v_mul_f32 v{vO+i}, v{vFw}, v{vO+i}")
    for i in range(8):
        a(f"v_fmac_f32 v{vO+i}, v{vFw+2}, v{vO+8+i}")
    pv_batch([6], 152, "L_wvC")
    for i in range(8):
        a(f"v_fmac_f32 v{vO+i}, v{vFw+4}, v{vO+16+i}")
    a(f"""
    v_cmp_eq_u32 vcc, 1, v{vt[0]}
    s_lshl_b32 s45, s{sCW}, 7
    s_add_u32 s45, s45, s{sM3}
    s_add_u32 s46, s45, {WS_M3L - WS_M3}
    """)
    for e in range(4):
        a(f"v_cndmask_b32 v{vO+e}, v{vO+e}, v{vO+4+e}, vcc")
    pv_batch([7], None, "L_wvD")
    a("s_nop 7")
    for e in range(4):
        a(f"v_cndmask_b32 v{vO+24+e}, v{vO+24+e}, v{vO+28+e}, vcc")
    for e in range(4):
        a(f"v_fmac_f32 v{vO+e}, v{vFw+6}, v{vO+24+e}")
    for e in range(4):
        tag(vO + e)
    exec_n_lt2()
    a(f"buffer_store_dwordx4 {vr(vO,4)}, v{vM3}, s[{rWS}:{rWS+3}], s46 offen")
    a(f"s_cmp_eq_u32 s{sMODE}, 1")
    a("s_cbranch_scc1 L_g3o")
    a(f"buffer_store_dwordx4 {vr(vO,4)}, v{vM3}, s[{rWS}:{rWS+3}], s45 offen sc1")
    a.label("L_g3o")
    a("s_mov_b64 exec, -1")
    stamp(9)
    R.release(vP, 32); R.release(vVf, 32); R.release(vFw, 8)
    vG3 = vG4
    vG3b = vG4 + 4
    def g3_loads(dst):
        for s_ in range(4):
            a(f"buffer_load_dword v{dst+s_}, v{vX3}, s[{rWS}:{rWS+3}], s{41+s_} offen sc1")
    a("s_waitcnt vmcnt(1)")
    a("L_sg:")
    check_tags([vSg, vSg + 1])
    a(f"""
    s_cbranch_vccz L_sg_ok
    s_sub_u32 s{sTMO}, s{sTMO}, 1
    s_cbranch_scc1 L_exit
    buffer_load_dwordx2 {vr(vSg,2)}, v{vSa}, s[{rWS}:{rWS+3}], s40 offen offset:512 sc1
    s_waitcnt vmcnt(0)
    s_branch L_sg
    L_sg_ok:
    v_mov_b32 v{vt[3]}, v{vSg}
    s_nop 1
    v_max_f32_dpp v{vt[3]}, v{vt[3]}, v{vt[3]} quad_perm:[1,0,3,2] row_mask:0xf bank_mask:0xf
    s_nop 1
    v_max_f32_dpp v{vt[3]}, v{vt[3]}, v{vt[3]} quad_perm:[2,3,0,1] row_mask:0xf bank_mask:0xf
    v_sub_f32 v{vt[3]}, v{vSg}, v{vt[3]}
    v_exp_f32 v{vt[3]}, v{vt[3]}
    s_nop 0
    v_mul_f32 v{vt[4]}, v{vt[3]}, v{vSg+1}
    s_nop 1
    v_add_f32_dpp v{vt[4]}, v{vt[4]}, v{vt[4]} quad_perm:[1,0,3,2] row_mask:0xf bank_mask:0xf
    s_nop 1
    v_add_f32_dpp v{vt[4]}, v{vt[4]}, v{vt[4]} quad_perm:[2,3,0,1] row_mask:0xf bank_mask:0xf
    v_rcp_f32 v{vt[4]}, v{vt[4]}
    s_nop 0
    v_mul_f32 v{vt[3]}, v{vt[3]}, v{vt[4]}
    s_nop 1
    """)
    for s_ in range(4):
        a(f"v_mov_b32_dpp v{vWs+s_}, v{vt[3]} quad_perm:[{s_},{s_},{s_},{s_}] row_mask:0xf bank_mask:0xf")
    vWf = R.alloc(16, 4); vDf = R.alloc(8, 4); vHf = R.alloc(8, 4)
    vYa = R.alloc(4, 4); vYf = R.alloc(4, 4); vGl = R.alloc()
    vAH = R.alloc(); vAG = R.alloc(); vAO = R.alloc(); vAW = R.alloc(); vM4 = R.alloc()
    a(f"""
    v_and_b32 v{vt[0]}, 1, v{vN}
    v_lshlrev_b32 v{vt[1]}, 7, v{vt[0]}
    v_add_u32 v{vt[1]}, v{vMisc}, v{vt[1]}
    v_lshl_add_u32 v{vAH}, v{vKG}, 4, v{vt[1]}
    v_lshl_add_u32 v{vAG}, v{vt[0]}, 2, v{vMisc}
    v_lshlrev_b32 v{vt[1]}, 8, v{vt[0]}
    v_lshl_add_u32 v{vt[1]}, v{vKG}, 4, v{vt[1]}
    v_add_u32 v{vAO}, v{vMisc}, v{vt[1]}
    v_lshlrev_b32 v{vt[1]}, 6, v{vt[0]}
    v_lshl_add_u32 v{vM4}, v{vKG}, 4, v{vt[1]}
    s_lshl_b32 s{sT0}, s{sCW}, 7
    v_lshl_add_u32 v{vAW}, v{vL}, 1, v{vMisc}
    v_add_u32 v{vAW}, s{sT0}, v{vAW}
    s_lshl_b32 s48, s{sCW}, 7
    s_add_u32 s48, s48, s{sM4}
    """)
    g3_loads(vG3)
    a("s_barrier")
    for u in range(4):
        a(f"ds_read_b64_tr_b16 {vr(vWf+4*u,2)}, v{vTRS} offset:{u*4096}")
        a(f"ds_read_b64_tr_b16 {vr(vWf+4*u+2,2)}, v{vTRS} offset:{u*4096+512}")
    a(f"""
    ds_read_b64_tr_b16 {vr(vDf,2)}, v{vTRS} offset:{4*4096}
    ds_read_b64_tr_b16 {vr(vDf+2,2)}, v{vTRS} offset:{4*4096+512}
    ds_read_b64_tr_b16 {vr(vDf+4,2)}, v{vTRS} offset:{5*4096}
    ds_read_b64_tr_b16 {vr(vDf+6,2)}, v{vTRS} offset:{5*4096+512}
    """)
    g3_loads(vG3b)
    stamp(11)
    a(f"""
    L_g3:
    s_waitcnt vmcnt(4)
    """)
    check_tags([vG3 + i for i in range(4)])
    a(f"""
    s_cbranch_vccz L_g3_ok
    s_sub_u32 s{sTMO}, s{sTMO}, 1
    s_cbranch_scc1 L_exit
    """)
    if stamps: a("s_add_u32 s71, s71, 1")
    g3_loads(vG3)
    a("s_waitcnt vmcnt(4)")
    check_tags([vG3b + i for i in range(4)])
    a("s_cbranch_vccz L_g3_okb")
    g3_loads(vG3b)
    vRes = R.alloc()
    def combine(src):
        a(f"v_mul_f32 v{vRes}, v{vWs}, v{src}")
        for k in range(1, 4):
            a(f"v_fmac_f32 v{vRes}, v{vWs+k}, v{src+k}")
    a("s_branch L_g3")
    a.label("L_g3_okb")
    combine(vG3b)
    a("s_branch L_g3_done")
    a.label("L_g3_ok")
    combine(vG3)
    a.label("L_g3_done")
    stamp(12)
    a(f"""
    v_cvt_pk_bf16_f32 v{vRes}, v{vRes}, v{vRes}
    ds_write_b16 v{vAW}, v{vRes} offset:{OB}
    s_waitcnt lgkmcnt(0)
    s_barrier
    ds_read_b128 {vr(vHf,4)}, v{vAH} offset:{HID}
    ds_read_b128 {vr(vHf+4,4)}, v{vAH} offset:{HID+64}
    ds_read_b32 v{vGl}, v{vAG} offset:{GV}
    """)
    vOf = R.alloc(16, 4)
    for u in range(4):
        a(f"ds_read_b128 {vr(vOf+4*u,4)}, v{vAO} offset:{OB + 64*u}")
    a("s_waitcnt lgkmcnt(4)")
    a(f"v_mfma_f32_16x16x32_bf16 {vr(vYf,4)}, {vr(vDf,4)}, {vr(vHf,4)}, 0")
    for u in range(4):
        a(f"s_waitcnt lgkmcnt({3-u})")
        c = "0" if u == 0 else vr(vYa, 4)
        a(f"v_mfma_f32_16x16x32_bf16 {vr(vYa,4)}, {vr(vWf+4*u,4)}, {vr(vOf+4*u,4)}, {c}")
    a(f"v_mfma_f32_16x16x32_bf16 {vr(vYf,4)}, {vr(vDf+4,4)}, {vr(vHf+4,4)}, {vr(vYf,4)}")
    a(f"""
    v_sub_f32 v{vt[0]}, 1.0, v{vGl}
    s_nop 6
    """)
    for e in range(4):
        a(f"v_mul_f32 v{vYa+e}, v{vGl}, v{vYa+e}")
    for e in range(4):
        a(f"v_fmac_f32 v{vYa+e}, v{vt[0]}, v{vYf+e}")
    for e in range(4):
        tag(vYa + e)
    exec_n_lt2()
    a(f"buffer_store_dwordx4 {vr(vYa,4)}, v{vM4}, s[{rWS}:{rWS+3}], s48 offen sc1")
    a("s_mov_b64 exec, -1")
    vFin = R.alloc(4, 4)
    a(f"""
    s_lshl_b32 s{sT0}, s{sJ}, 2
    s_cmp_lg_u32 s{sT0}, s{sH}
    s_cbranch_scc1 L_done
    s_lshl_b32 s{sT0}, s{sJ}, 14
    s_lshl_b32 s{sT1}, s{sCW}, 7
    s_add_u32 s{sT0}, s{sT0}, s{sT1}
    s_add_u32 s40, s{sT0}, {WS_M4}
    s_add_u32 s41, s40, 4096
    s_add_u32 s42, s40, 8192
    s_add_u32 s43, s40, 12288
    v_lshrrev_b32 v{vt[1]}, 3, v{vL}
    v_lshlrev_b32 v{vt[1]}, 9, v{vt[1]}
    v_and_b32 v{vt[2]}, 7, v{vL}
    v_lshl_add_u32 v{vt[1]}, v{vt[2]}, 4, v{vt[1]}
    s_lshl_b32 s{sT0}, s{sJ}, 7
    s_lshl_b32 s{sT1}, s{sCW}, 5
    s_add_u32 s{sT0}, s{sT0}, s{sT1}
    v_lshrrev_b32 v{vt[3]}, 2, v{vt[2]}
    v_lshlrev_b32 v{vt[3]}, 10, v{vt[3]}
    v_and_b32 v{vt[2]}, 3, v{vt[2]}
    v_lshl_add_u32 v{vt[2]}, v{vt[2]}, 3, v{vt[3]}
    v_lshl_add_u32 v{vt[2]}, v{vKG}, 1, v{vt[2]}
    v_add_u32 v{vt[2]}, s{sT0}, v{vt[2]}
    """)
    vG5 = vF4
    def g4_loads(dst):
        for i in range(4):
            a(f"buffer_load_dwordx4 {vr(dst+4*i,4)}, v{vt[1]}, s[{rWS}:{rWS+3}], s{40+i} offen sc1")
    if fin2:
        g4_loads(vG4)
        g4_loads(vG5)
        a("L_g4:")
        a("s_waitcnt vmcnt(4)")
        check_tags([vG4 + i for i in range(16)])
        a(f"""
        s_cbranch_vccz L_g4_ok
        s_sub_u32 s{sTMO}, s{sTMO}, 1
        s_cbranch_scc1 L_exit
        """)
        g4_loads(vG4)
        a("s_waitcnt vmcnt(4)")
        check_tags([vG5 + i for i in range(16)])
        a("s_cbranch_vccz L_g4_okb")
        g4_loads(vG5)
        a("s_branch L_g4")
        a("L_g4_okb:")
        for e in range(4):
            a(f"v_add_f32 v{vG5+e}, v{vG5+e}, v{vG5+4+e}")
            a(f"v_add_f32 v{vG5+8+e}, v{vG5+8+e}, v{vG5+12+e}")
        for e in range(4):
            a(f"v_add_f32 v{vFin+e}, v{vG5+e}, v{vG5+8+e}")
        a("s_branch L_g4_sum")
        a("L_g4_ok:")
    else:
        a("L_g4:")
        g4_loads(vG4)
        a("s_waitcnt vmcnt(0)")
        check_tags([vG4 + i for i in range(16)])
        retry("L_g4", "L_g4_ok")
    for e in range(4):
        a(f"v_add_f32 v{vG4+e}, v{vG4+e}, v{vG4+4+e}")
        a(f"v_add_f32 v{vG4+8+e}, v{vG4+8+e}, v{vG4+12+e}")
    for e in range(4):
        a(f"v_add_f32 v{vFin+e}, v{vG4+e}, v{vG4+8+e}")
    a("L_g4_sum:")
    a(f"""
    s_nop 0
    v_permlane32_swap_b32 v{vFin}, v{vFin+2}
    v_permlane32_swap_b32 v{vFin+1}, v{vFin+3}
    v_add_f32 v{vFin}, v{vFin}, v{vFin+2}
    v_add_f32 v{vFin+1}, v{vFin+1}, v{vFin+3}
    s_nop 1
    v_permlane16_swap_b32 v{vFin}, v{vFin+1}
    v_add_f32 v{vFin}, v{vFin}, v{vFin+1}
    s_nop 1
    v_add_f32_dpp v{vFin}, v{vFin}, v{vFin} row_ror:8 row_mask:0xf bank_mask:0xf
    v_cvt_pk_bf16_f32 v{vFin}, v{vFin}, v{vFin}
    s_mov_b32 exec_lo, 0x00ff00ff
    s_mov_b32 exec_hi, 0x00ff00ff
    global_store_short v{vt[2]}, v{vFin}, s[{pOUT}:{pOUT+1}]
    s_or_b32 s{sT0}, s{sJ}, s{sCW}
    s_cmp_lg_u32 s{sT0}, 0
    s_cbranch_scc1 L_done
    s_mov_b64 exec, 1
    v_mov_b32 v{vt[0]}, 0
    v_mov_b32 v{vt[1]}, s{sE1}
    global_store_dword v{vt[0]}, v{vt[1]}, s[{pWS}:{pWS+1}] sc1
    L_done:
    """)
    stamp(13)
    dump_stamps(vt[0], vt[1], [(6, 2), (7, 3), (8, 5), (9, 6), (10, 7), (11, 9), (12, 11), (13, 12), (14, 13)])
    a.label("L_exit")
    a("s_endpgm")
    a.label("L_codeend")
    nv = R.hi
    txt = (f"; @launch grid=(256,1,1) block=(320,1,1) lds={LDS_BYTES}\n" + HEAD + kernel_begin(KN) + a.text()
           + kernel_desc(KN, nv, sgpr=102))
    return txt

if __name__ == "__main__":
    import argparse
    ap = argparse.ArgumentParser()
    ap.add_argument("-o", default="main.s"); ap.add_argument("--stamps", action="store_true")
    ap.add_argument("-W", type=int, default=24)
    ap.add_argument("--nopf", action="store_true")
    ap.add_argument("--skipl", action="store_true")
    ap.add_argument("--xfl", default=""); ap.add_argument("--pffl", default="")
    ap.add_argument("--fin1", action="store_true")
    ap.add_argument("--gfl", default=None); ap.add_argument("--wfl", default=None); ap.add_argument("--kvfl", default=None)
    ap.add_argument("--forceglobal", action="store_true")
    ap.add_argument("--ntry", type=int, default=3)
    ap.add_argument("--m1st", default="sc1"); ap.add_argument("--m1ld", default="sc1")
    ap.add_argument("--table", default="6,5,6,5,6,5,5,5")
    ap.add_argument("--exit", default=None)
    ap.add_argument("--loaderonly", action="store_true")
    ap.add_argument("--rot", type=int, default=17)
    ap.add_argument("--vsplit", type=int, default=0)
    ap.add_argument("--cset", default=None); ap.add_argument("--lset", default=None)
    ap.add_argument("--W2", type=int, default=None)
    ap.add_argument("--dbg", action="store_true")
    ap.add_argument("--nont", action="store_true")
    ap.add_argument("--noxcd", action="store_true")
    x = ap.parse_args()
    fl = "" if x.nont else "nt"
    open(x.o, "w").write(gen(W=x.W, W2=x.W2, skipl=x.skipl, xfl=x.xfl, pffl=x.pffl, fin2=not x.fin1, forceglobal=x.forceglobal, ntry=x.ntry, m1st=x.m1st, m1ld=x.m1ld, table=tuple(int(c) for c in x.table.split(',')), exit_after=x.exit, loaderonly=x.loaderonly, rot=x.rot, vsplit=x.vsplit, cset=None if x.cset is None else [int(i) for i in x.cset.split(',')], lset=None if x.lset is None else [int(i) for i in x.lset.split(',')], stamps=x.stamps or x.dbg, dbgstamps=x.dbg, prefetch_code=not x.nopf,
                             wflags=fl if x.wfl is None else x.wfl, gflags=fl if x.gfl is None else x.gfl, kvflags=fl if x.kvfl is None else x.kvfl, xcdmap=not x.noxcd))
```

```python
import sys, math, struct
from asmgen import *

K_OFF = 0
V_OFF = 65536
WQ_OFF = V_OFF + 32768
WG_OFF = V_OFF + 49152
WU_OFF = V_OFF + 57344
S2_OFF = 131072
MISC = 155648
PROG, S1DONE, BAR, QRDY = 0, 4, 8, 12
NEEDG, FMODE = 56, 60
STATW, GV = 16, 48
QB, HID, PB, OB = 64, 320, 576, 1088
LDS_BYTES = 157696
WS_ID = 0x8000
WS_IDG = 0x9000
WS_M1 = 0x10000
WS_M3 = 0x100000
WS_M4 = 0x140000
WS_M3L = 0x180000
WS_M1L = 0x280000
WS_STAMP = 0x200000
WS_SIZE = 0x400000
CEXP = 1.4426950408889634 / math.sqrt(128.0)

def f2u(x):
    return struct.unpack("<I", struct.pack("<f", x))[0]

class Regs:
    def __init__(self, lo, hi):
        self.free = list(range(lo, hi))
        self.hi = lo
    def alloc(self, n=1, align=1):
        if n > 1 and align == 1:
            align = 2
        for s in self.free:
            if s % align == 0 and all((s + i) in self.free for i in range(n)):
                for i in range(n):
                    self.free.remove(s + i)
                self.hi = max(self.hi, s + n)
                return s
        raise RuntimeError("out of registers")
    def release(self, s, n=1):
        for i in range(n):
            assert (s + i) not in self.free
            self.free.append(s + i)
        self.free.sort()

def vr(b, n=1):
    return f"v{b}" if n == 1 else f"v[{b}:{b+n-1}]"

def gen(W=28, stamps=False, dbgstamps=False, wflags="nt", gflags="nt", kvflags="nt", prefetch_code=True, xcdmap=True,
        sleep=1, W2=None, vsplit=0, cset=None, lset=None, rot=17, loaderonly=False, exit_after=None, forceglobal=False, skipl=False, ntry=3, fin2=True, xfl='', pffl='', m1st='sc1', m1ld='sc1', table=(8, 8, 8, 8, 5, 1, 4, 1)):
    assert sum(table) == 43 and max(table) <= 6
    tabC = sum(c << (4*x) for x, c in enumerate(table))
    pre = [sum(table[:x]) for x in range(8)]
    tabP = sum(p << (8*x) for x, p in enumerate(pre))
    W2 = W2 or W
    a = Asm()
    KN = NAME + "_kernel"
    sWAVE, sH, sJ, sTAG, sE1 = 3, 4, 5, 6, 7
    pX, pK, pV, pWQ, pWO, pBX, pWG, pWU = 8, 10, 12, 14, 16, 18, 20, 22
    pWD, pGW, pOUT, pWS = 24, 26, 28, 30
    sU, sTMO, sT0, sT1, sT2, sT3 = 60, 61, 62, 63, 64, 65
    sCW, sB, sPG = 66, 67, 68
    sC = 58 + 12
    STAMP0 = 72
    role = ["entry"]
    def stamp(idx):
        sel = lset if role[0] == "loader" else cset
        if stamps and (sel is None or idx in sel):
            a(f"s_memrealtime s[{STAMP0+2*idx}:{STAMP0+2*idx+1}]")
            a("s_waitcnt lgkmcnt(0)")
    def dump_stamps(vtmp, vaddr, dbg_slots=None):
        if not stamps:
            return
        if dbgstamps:
            lab = a.newlabel("L_nodbg")
            a(f"""
            s_cmp_lg_u32 s2, 0
            s_cbranch_scc1 {lab}
            s_cmp_gt_u32 s{sWAVE}, 1
            s_cbranch_scc1 {lab}
            s_load_dwordx2 s[{sT2}:{sT3}], s[0:1], 88
            s_waitcnt lgkmcnt(0)
            s_mov_b64 exec, 1
            v_mov_b32 v{vaddr}, 0
            """)
            for slot, idx in dbg_slots:
                a(f"s_sub_u32 s{sT0}, s{STAMP0+2*idx}, s{STAMP0}")
                a(f"v_mov_b32 v{vtmp}, s{sT0}")
                a(f"global_store_dword v{vaddr}, v{vtmp}, s[{sT2}:{sT3}] offset:{4*slot}")
                a("s_nop 1")
            a("s_waitcnt vmcnt(0)")
            a.label(lab)
            return
        a(f"""
        s_mov_b64 exec, 1
        s_lshl_b32 s{sT0}, s2, 3
        s_add_u32 s{sT0}, s{sT0}, s{sWAVE}
        s_lshl_b32 s{sT0}, s{sT0}, 6
        s_add_u32 s{sT0}, s{sT0}, {WS_STAMP}
        s_add_u32 s{sT2}, s{pWS}, s{sT0}
        s_addc_u32 s{sT3}, s{pWS+1}, 0
        v_mov_b32 v{vaddr}, 0
        """)
        for i in range(14):
            a(f"v_mov_b32 v{vtmp}, s{STAMP0+2*i}")
            a(f"global_store_dword v{vaddr}, v{vtmp}, s[{sT2}:{sT3}] offset:{4*i}")
            a("s_nop 1")
        for i, r in ((14, 71), (15, 71)):
            a(f"v_mov_b32 v{vtmp}, s{r}")
            a(f"global_store_dword v{vaddr}, v{vtmp}, s[{sT2}:{sT3}] offset:{4*i}")
            a("s_nop 1")
        a("s_waitcnt vmcnt(0)")

    def ffn_range():
        a(f"""
        s_lshr_b32 s{sT0}, s{sH}, 2
        s_lshl_b32 s{sT1}, s{sT0}, 2
        s_lshr_b32 s{sC}, {hex(tabC)}, s{sT1}
        s_and_b32 s{sC}, s{sC}, 15
        s_lshl_b32 s{sT1}, s{sT0}, 3
        s_mov_b32 s{sT2}, {hex(tabP & 0xffffffff)}
        s_mov_b32 s{sT3}, {hex(tabP >> 32)}
        s_lshr_b64 s[{sT2}:{sT3}], s[{sT2}:{sT3}], s{sT1}
        s_and_b32 s{sU}, s{sT2}, 0xff
        s_lshl_b32 s{sU}, s{sU}, 2
        s_and_b32 s{sT0}, s{sH}, 3
        s_mul_i32 s{sT0}, s{sT0}, s{sC}
        s_add_u32 s{sU}, s{sU}, s{sT0}
        """)

    vRow4, vSl, vCb = 1, 2, 3
    vWQ = [8, 9]; vV = [10, 11]; vK = [12, 13, 14, 15]; vO = [16, 17]; vG = [18, 19]
    rK, rV, rWQ, rWO, rWG, rWU, rWD = 32, 36, 40, 44, 48, 52, 56
    sOff, sKV, sCnt, sN, sLast = 66, 67, 68, 69, 59 + 41
    a(f"""
    s_cmp_ge_u32 s2, 256
    s_cbranch_scc1 L_exit
    s_load_dwordx16 s[8:23], s[0:1], 0
    s_load_dwordx4 s[24:27], s[0:1], 64
    s_load_dwordx2 s[28:29], s[0:1], 80
    s_load_dwordx2 s[30:31], s[0:1], 96
    """)
    if stamps:
        for i in range(14):
            a(f"s_mov_b32 s{STAMP0+2*i}, 0")
        a("s_mov_b32 s71, 0")
        a(f"s_memrealtime s[{STAMP0}:{STAMP0+1}]")
    a(f"""
    v_lshrrev_b32 v1, 6, v0
    v_and_b32 v0, 63, v0
    s_and_b32 s{sT0}, s2, 7
    s_lshr_b32 s{sT1}, s2, 3
    v_readfirstlane_b32 s{sWAVE}, v1
    s_lshr_b32 s{sH}, s{sT1}, 3
    s_lshl_b32 s{sT0}, s{sT0}, 2
    s_add_u32 s{sH}, s{sH}, s{sT0}
    s_and_b32 s{sJ}, s{sT1}, 7
    {"" if xcdmap else f"s_lshr_b32 s{sH}, s2, 3"}
    {"" if xcdmap else f"s_and_b32 s{sJ}, s2, 7"}
    v_mov_b32 v4, 0
    v_mov_b32 v5, 0
    v_mov_b32 v6, 0
    v_mov_b32 v7, 0
    v_mov_b32 v26, {MISC}
    s_mov_b64 exec, 1
    ds_write_b128 v26, v[4:7]
    ds_write_b64 v26, v[4:5] offset:{NEEDG}
    s_mov_b64 exec, -1
    v_lshrrev_b32 v{vRow4}, 4, v0
    v_and_b32 v{vSl}, 15, v0
    v_lshrrev_b32 v{vCb}, 1, v{vSl}
    v_xor_b32 v{vCb}, v{vCb}, v{vRow4}
    v_and_b32 v5, 1, v0
    v_lshlrev_b32 v5, 4, v5
    v_lshl_or_b32 v6, v{vCb}, 5, v5
    v_xor_b32 v7, 0x80, v6
    v_lshl_add_u32 v{vWQ[0]}, v{vRow4}, 13, v6
    v_lshl_add_u32 v{vWQ[1]}, v{vRow4}, 13, v7
    s_lshl_b32 s{sOff}, s{sJ}, 19
    s_lshl_b32 s{sT0}, s{sH}, 8
    s_add_u32 s{sOff}, s{sOff}, s{sT0}
    s_mov_b32 s{sN}, {1 - W}
    s_mov_b32 s{sLast}, 0
    s_mov_b32 s{sTMO}, 1000000
    s_mov_b32 s{rWQ+2}, {512*4096*2}
    s_mov_b32 s{rWQ+3}, 0x20000
    s_cmp_lg_u32 s{sWAVE}, 0
    s_waitcnt lgkmcnt(0)
    s_barrier
    s_cbranch_scc1 L_compute
    s_mov_b32 s{rWQ}, s{pWQ}
    s_mov_b32 s{rWQ+1}, s{pWQ+1}
    s_setprio 3
    """)
    role[0] = "loader"
    stamp(1)
    NL = 184
    def srd(r, p, size):
        a(f"""
        s_mov_b32 s{r}, s{p}
        s_mov_b32 s{r+1}, s{p+1}
        s_mov_b32 s{r+2}, {size}
        s_mov_b32 s{r+3}, 0x20000
        """)
    sRel = 101
    def stream(name, cnt, unr, srdr, voffs, lds0, step, fl, pre=None, wait=None, rotate=False):
        Wc = wait or W
        a(f"s_mov_b32 m0, {lds0}")
        if pre:
            pre()
        a(f"s_mov_b32 s{sCnt}, {cnt // unr}")
        a.label(f"L_ld_{name}")
        for i in range(unr):
            a(f"buffer_load_dwordx4 v{voffs[i]}, s[{srdr}:{srdr+3}], s{sOff} offen {fl} lds")
            a(f"s_add_u32 m0, m0, 1024")
            if rotate:
                a(f"s_add_u32 s{sRel}, s{sRel}, 1024")
                a(f"s_and_b32 s{sRel}, s{sRel}, 0xffff")
                a(f"s_add_u32 s{sOff}, s{sKV}, s{sRel}")
            else:
                a(f"s_add_u32 s{sOff}, s{sOff}, {step}")
            a(f"s_waitcnt vmcnt({Wc-1})")
        a(f"""
        s_add_i32 s{sN}, s{sN}, {unr}
        s_max_i32 s{sLast}, s{sN}, s{sLast}
        v_mov_b32 v27, s{sLast}
        s_mov_b64 exec, 1
        ds_write_b32 v26, v27 offset:{PROG}
        s_mov_b64 exec, -1
        s_sub_u32 s{sCnt}, s{sCnt}, 1
        s_cmp_lg_u32 s{sCnt}, 0
        s_cbranch_scc1 L_ld_{name}
        """)
    stream("wq", 16, 4, rWQ, [vWQ[0], vWQ[0], vWQ[1], vWQ[1]], WQ_OFF, 4*8192, wflags)
    stamp(2)
    a(f"""
    v_lshl_add_u32 v{vV[0]}, v{vRow4}, 8, v6
    v_lshl_add_u32 v{vV[1]}, v{vRow4}, 8, v7
    v_lshrrev_b32 v20, 3, v0
    v_and_b32 v21, 7, v0
    v_lshrrev_b32 v21, 1, v21
    v_and_b32 v22, 1, v{vRow4}
    v_xor_b32 v21, v21, v22
    v_mul_u32_u24 v23, 2752, v20
    v_mov_b32 v24, 0x7fff0000
    """)
    ffn_range()
    for var in range(2):
        a(f"""
        v_xor_b32 v22, {2*var}, v21
        v_lshl_or_b32 v25, v22, 5, v5
        v_lshrrev_b32 v22, 4, v25
        v_cmp_le_u32 vcc, s{sC}, v22
        v_lshl_add_u32 v{vO[var]}, v20, 10, v25
        v_add_u32 v{vG[var]}, v23, v25
        v_cndmask_b32 v{vG[var]}, v{vG[var]}, v24, vcc
        """)
    srd(rWG, pWG, 512*1376*2); srd(rWU, pWU, 512*1376*2)
    def pre_g():
        a(f"s_mul_i32 s{sOff}, s{sJ}, {64*2752}")
        a(f"s_lshl_b32 s{sT0}, s{sU}, 4")
        a(f"s_add_u32 s{sOff}, s{sOff}, s{sT0}")
    stream("wg", 8, 4, rWG, [vG[0], vG[1], vG[0], vG[1]], WG_OFF, 8*2752, gflags, pre_g)
    stream("wu", 8, 4, rWU, [vG[0], vG[1], vG[0], vG[1]], WU_OFF, 8*2752, gflags, pre_g)
    stamp(7)
    a(f"v_xor_b32 v6, v{vSl}, v{vRow4}")
    for v in range(4):
        a(f"v_xor_b32 v7, {4*v}, v6")
        a(f"v_lshlrev_b32 v7, 4, v7")
        a(f"v_lshl_add_u32 v{vK[v]}, v{vRow4}, 8, v7")
    a(f"""
    s_lshr_b32 s{sT0}, s{sJ}, 2
    s_lshl_b32 s{sT0}, s{sT0}, 5
    s_add_u32 s{sT0}, s{sT0}, s{sH}
    s_lshl_b32 s{sKV}, s{sT0}, 20
    s_and_b32 s{sT0}, s{sJ}, 3
    s_lshl_b32 s{sT0}, s{sT0}, 16
    s_add_u32 s{sKV}, s{sKV}, s{sT0}
    s_add_u32 s{sKV}, s{sKV}, 0xC0000
    """)
    srd(rK, pK, 1 << 26); srd(rV, pV, 1 << 26)
    def pre_kv():
        a(f"s_mul_i32 s{sRel}, s2, {rot}")
        a(f"s_and_b32 s{sRel}, s{sRel}, 63")
        a(f"s_lshl_b32 s{sRel}, s{sRel}, 10")
        a(f"s_add_u32 s{sOff}, s{sKV}, s{sRel}")
    stream("k", 64, 4, rK, vK, K_OFF, 1024, kvflags, pre_kv, rotate=True)
    stamp(3)
    srd(rWO, pWO, 4096*512*2); srd(rWD, pWD, 1376*512*2)
    stream("v0", 32, 4, rV, [vV[0], vV[0], vV[1], vV[1]], V_OFF, 1024, kvflags, pre_kv, rotate=True)
    a(f"""
    L_ld_s1:
    ds_read_b32 v27, v26 offset:{S1DONE}
    s_waitcnt lgkmcnt(0)
    v_readfirstlane_b32 s{sT0}, v27
    s_cmp_ge_u32 s{sT0}, {0 if loaderonly else 4}
    s_cbranch_scc1 L_ld_s1_ok
    s_sub_u32 s{sTMO}, s{sTMO}, 1
    s_cbranch_scc1 L_exit
    s_sleep 1
    s_branch L_ld_s1
    L_ld_s1_ok:
    s_add_i32 s{sN}, s{sN}, {W - W2}
    """)
    stream("v", 32, 4, rV, [vV[0], vV[0], vV[1], vV[1]], V_OFF + 32*1024, 1024, kvflags, lambda: a("s_nop 0"), wait=W2, rotate=True)
    stamp(4)
    def pre_o():
        a(f"s_lshl_b32 s{sOff}, s{sH}, 17")
        a(f"s_lshl_b32 s{sT0}, s{sJ}, 7")
        a(f"s_add_u32 s{sOff}, s{sOff}, s{sT0}")
    def pre_d():
        a(f"s_lshl_b32 s{sOff}, s{sU}, 13")
        a(f"s_lshl_b32 s{sT0}, s{sJ}, 7")
        a(f"s_add_u32 s{sOff}, s{sOff}, s{sT0}")
    stream("wo", 16, 4, rWO, [vO[0], vO[1], vO[0], vO[1]], S2_OFF, 8192, wflags, pre_o, wait=W2)
    a(f"s_mov_b32 m0, {S2_OFF + 16*1024}")
    pre_d()
    a(f"s_mov_b32 s{sCnt}, 0x7fff0000")
    for i in range(8):
        a(f"s_cmp_lt_u32 {i}, s{sC}")
        a(f"s_cselect_b32 s{sT0}, s{sOff}, s{sCnt}")
        a(f"buffer_load_dwordx4 v{vO[i & 1]}, s[{rWD}:{rWD+3}], s{sT0} offen {wflags} lds")
        a(f"s_add_u32 m0, m0, 1024")
        a(f"s_add_u32 s{sOff}, s{sOff}, 8192")
        if 176 + i + 1 + 1 - W2 <= 160:
            a(f"s_waitcnt vmcnt({W2-1})")
        if (i & 1) and 176 + i + 1 + 1 - W2 <= 160:
            a(f"""
            s_add_i32 s{sN}, s{sN}, 2
            s_max_i32 s{sLast}, s{sN}, s{sLast}
            v_mov_b32 v27, s{sLast}
            s_mov_b64 exec, 1
            ds_write_b32 v26, v27 offset:{PROG}
            s_mov_b64 exec, -1
            """)
    landed = NL + 1 - W2
    for m in [x for x in (128, 136, 144, 152) if x > landed]:
        a(f"s_waitcnt vmcnt({NL - m})")
        a(f"v_mov_b32 v27, {m}")
        a("s_mov_b64 exec, 1")
        a(f"ds_write_b32 v26, v27 offset:{PROG}")
        a("s_mov_b64 exec, -1")
    a(f"s_waitcnt vmcnt({NL - 160})")
    stamp(5)
    a("s_barrier")
    a("s_waitcnt vmcnt(0)")
    a("s_barrier")
    stamp(6)
    a("s_waitcnt lgkmcnt(0)")
    dump_stamps(27, 28, [(0, 1), (1, 2), (2, 3), (3, 4), (4, 5), (5, 6)])
    a("s_endpgm")

    role[0] = "compute"
    a.label("L_compute")
    if loaderonly:
        a("s_endpgm")
    R = Regs(1, 256)
    vL = R.alloc(); vN = R.alloc(); vKG = R.alloc(); vR4 = R.alloc(); vC = R.alloc()
    vFF = R.alloc(); vMisc = R.alloc(); vOne = R.alloc()
    vt0 = R.alloc(8, 4); vt = [vt0 + i for i in range(8)]
    vx0 = R.alloc(4, 4); vxt = [vx0 + i for i in range(4)]
    vTR = [R.alloc(), R.alloc()]
    vTRG = R.alloc(); vTRS = R.alloc()
    vKA = [R.alloc() for _ in range(4)]
    vXB = [R.alloc(4, 4), R.alloc(4, 4)]
    vJunk = R.alloc(4, 4)
    vGx = R.alloc(12, 4)
    rWS = 32
    sM1, sM3, sM4 = 36, 37, 38
    def spin_tail(label, tight=False):
        a(f"""
        s_sub_u32 s{sTMO}, s{sTMO}, 1
        s_cbranch_scc1 L_exit
        {"" if tight else f"s_sleep {sleep}"}
        s_branch {label}
        """)
    def wait_lds(off, n, label):
        a(f"""
        {label}:
        ds_read_b32 v{vt[7]}, v{vMisc} offset:{off}
        s_waitcnt lgkmcnt(0)
        v_readfirstlane_b32 s{sT0}, v{vt[7]}
        s_cmp_ge_u32 s{sT0}, {n}
        s_cbranch_scc1 {label}_ok
        """)
        spin_tail(label)
        a.label(f"{label}_ok")
    def wait_prog(n, label, tight=False):
        a(f"""
        s_cmp_ge_u32 s{sPG}, {n}
        s_cbranch_scc1 {label}_ok
        {label}:
        ds_read_b32 v{vt[7]}, v{vMisc} offset:{PROG}
        s_waitcnt lgkmcnt(0)
        v_readfirstlane_b32 s{sPG}, v{vt[7]}
        s_cmp_ge_u32 s{sPG}, {n}
        s_cbranch_scc1 {label}_ok
        """)
        spin_tail(label, tight)
        a.label(f"{label}_ok")
    def signal(off):
        a(f"""
        s_mov_b64 exec, 1
        ds_add_u32 v{vMisc}, v{vOne} offset:{off}
        s_mov_b64 exec, -1
        """)
    def tag(v):
        a(f"v_bfi_b32 v{v}, v{vFF}, s{sTAG}, v{v}")
    def exec_n_lt2():
        a("s_mov_b32 exec_lo, 0x00030003")
        a("s_mov_b32 exec_hi, 0x00030003")
    def xrow(regs, op="v_add_f32"):
        for ins in ("v_permlane16_swap_b32", "v_permlane32_swap_b32"):
            for k0 in range(0, len(regs), 4):
                grp = regs[k0:k0+4]
                for r, t in zip(grp, vxt):
                    a(f"v_mov_b32 v{t}, v{r}")
                if len(grp) < 2:
                    a("s_nop 1")
                elif len(grp) < 3:
                    a("s_nop 0")
                for r, t in zip(grp, vxt):
                    a(f"{ins} v{t}, v{r}")
                for r, t in zip(grp, vxt):
                    a(f"{op} v{r}, v{t}, v{r}")
    vBad = R.alloc()
    def check_tags(regs):
        for r in regs:
            a(f"v_xor_b32 v{r}, s{sTAG}, v{r}")
        a(f"v_or_b32 v{vBad}, v{regs[0]}, v{regs[1]}")
        for k in range(2, len(regs), 2):
            a(f"v_or3_b32 v{vBad}, v{vBad}, v{regs[k]}, v{regs[k+1]}")
        a(f"v_and_b32 v{vBad}, v{vFF}, v{vBad}")
        a(f"v_cmp_ne_u32 vcc, 0, v{vBad}")
    def retry(label_again, label_ok):
        a(f"""
        s_cbranch_vccz {label_ok}
        s_sub_u32 s{sTMO}, s{sTMO}, 1
        s_cbranch_scc1 L_exit
        s_branch {label_again}
        {label_ok}:
        """)

    a(f"""
    v_mov_b32 v{vL}, v0
    s_sub_u32 s{sCW}, s{sWAVE}, 1
    s_lshr_b32 s{sB}, s{sJ}, 2
    s_load_dword s{sE1}, s[{pWS}:{pWS+1}], 0
    v_and_b32 v{vN}, 15, v{vL}
    v_lshrrev_b32 v{vKG}, 4, v{vL}
    v_and_b32 v{vt[0]}, 1, v{vN}
    v_lshlrev_b32 v{vt[0]}, 10, v{vt[0]}
    v_lshl_add_u32 v{vt[0]}, v{vKG}, 4, v{vt[0]}
    s_lshl_b32 s{sT0}, s{sJ}, 7
    v_add_u32 v{vt[0]}, s{sT0}, v{vt[0]}
    v_lshlrev_b32 v{vt[1]}, 4, v{vL}
    global_load_dwordx4 {vr(vXB[0],4)}, v{vt[0]}, s[{pX}:{pX+1}] {xfl}
    global_load_dwordx4 {vr(vXB[1],4)}, v{vt[0]}, s[{pX}:{pX+1}] offset:64 {xfl}
    s_mov_b32 s{sPG}, 0
    v_lshrrev_b32 v{vR4}, 2, v{vN}
    v_and_b32 v{vC}, 3, v{vN}
    v_mov_b32 v{vFF}, 0xff
    v_mov_b32 v{vMisc}, {MISC}
    v_mov_b32 v{vOne}, 1
    s_cmp_lg_u32 s{sCW}, 3
    s_cbranch_scc1 L_nopf
    global_load_dwordx4 {vr(vGx,4)}, v{vt[1]}, s[{pX}:{pX+1}] {xfl}
    global_load_dwordx4 {vr(vGx+4,4)}, v{vt[1]}, s[{pX}:{pX+1}] offset:1024 {xfl}
    global_load_dwordx4 {vr(vGx+8,4)}, v{vt[1]}, s[{pGW}:{pGW+1}] {xfl}
    """)
    if prefetch_code:
        a(f"""
        s_getpc_b64 s[{sT2}:{sT3}]
        L_pc:
        s_lshr_b32 s{sT0}, s2, 3
        s_and_b32 s{sT0}, s{sT0}, 15
        s_lshl_b32 s{sT0}, s{sT0}, 10
        s_sub_u32 s{sT2}, s{sT2}, L_pc-{KN}
        s_subb_u32 s{sT3}, s{sT3}, 0
        s_min_u32 s{sT0}, s{sT0}, L_codeend-{KN}-1024
        s_add_u32 s{sT2}, s{sT2}, s{sT0}
        s_addc_u32 s{sT3}, s{sT3}, 0
        global_load_dwordx4 {vr(vJunk,4)}, v{vt[1]}, s[{sT2}:{sT3}] {pffl}
        """)
    a.label("L_nopf")
    a(f"""
    s_mov_b32 s{rWS}, s{pWS}
    s_mov_b32 s{rWS+1}, s{pWS+1}
    s_mov_b32 s{rWS+2}, {WS_SIZE}
    s_mov_b32 s{rWS+3}, 0x20000
    s_lshl_b32 s{sT0}, s{sH}, 3
    s_add_u32 s{sT0}, s{sT0}, s{sJ}
    s_mul_i32 s{sM1}, s{sT0}, 2048
    s_add_u32 s{sM1}, s{sM1}, {WS_M1}
    s_mul_i32 s{sM3}, s{sT0}, 640
    s_add_u32 s{sM3}, s{sM3}, {WS_M3}
    s_lshl_b32 s{sM4}, s{sJ}, 14
    s_lshl_b32 s{sT0}, s{sH}, 9
    s_add_u32 s{sM4}, s{sM4}, s{sT0}
    s_add_u32 s{sM4}, s{sM4}, {WS_M4}
    v_lshl_add_u32 v{vt[0]}, v{vKG}, 3, v{vR4}          ; 8kg + r4
    v_and_b32 v{vt[1]}, 1, v{vKG}
    v_lshl_or_b32 v{vt[2]}, v{vt[1]}, 2, v{vR4}         ; f = r4 | (kg&1)<<2
    v_lshlrev_b32 v{vt[3]}, 8, v{vt[0]}
    v_lshl_add_u32 v{vt[3]}, v{vC}, 3, v{vt[3]}
    v_add_u32 v{vt[3]}, {V_OFF}, v{vt[3]}
    s_lshl_b32 s{sT0}, s{sCW}, 1
    v_xor_b32 v{vTR[0]}, s{sT0}, v{vt[2]}
    v_lshl_add_u32 v{vTR[0]}, v{vTR[0]}, 5, v{vt[3]}
    s_add_u32 s{sT0}, s{sT0}, 1
    v_xor_b32 v{vTR[1]}, s{sT0}, v{vt[2]}
    v_lshl_add_u32 v{vTR[1]}, v{vTR[1]}, 5, v{vt[3]}
    v_lshrrev_b32 v{vt[2]}, 1, v{vR4}
    v_lshl_or_b32 v{vt[3]}, v{vt[1]}, 1, v{vt[2]}
    v_xor_b32 v{vt[3]}, s{sCW}, v{vt[3]}
    v_lshlrev_b32 v{vt[3]}, 5, v{vt[3]}
    v_lshl_add_u32 v{vt[3]}, v{vt[0]}, 7, v{vt[3]}
    v_lshl_add_u32 v{vt[3]}, v{vC}, 3, v{vt[3]}
    v_add_u32 v{vTRG}, {WG_OFF}, v{vt[3]}
    v_add_u32 v{vTRS}, {S2_OFF}, v{vt[3]}
    s_lshl_b32 s{sT0}, s{sCW}, 14
    v_lshlrev_b32 v{vt[0]}, 8, v{vN}
    v_add_u32 v{vt[0]}, s{sT0}, v{vt[0]}
    v_xor_b32 v{vt[1]}, v{vKG}, v{vN}
    """)
    for t in range(4):
        a(f"v_xor_b32 v{vt[2]}, {4*t}, v{vt[1]}")
        a(f"v_lshl_add_u32 v{vKA[t]}, v{vt[2]}, 4, v{vt[0]}")
    stamp(1)

    vA = R.alloc(16, 4)
    vAcc = R.alloc(8, 4)
    vM1 = R.alloc()
    a(f"""
    v_lshlrev_b32 v{vM1}, 6, v{vN}
    v_lshl_add_u32 v{vM1}, v{vKG}, 4, v{vM1}
    """)
    wait_prog(16, "L_w16")
    stamp(2)
    for ti in range(2):
        for u in range(2):
            f = vA + (ti*2 + u) * 4
            a(f"ds_read_b64_tr_b16 {vr(f,2)}, v{vTR[ti]} offset:{WQ_OFF - V_OFF + u*8192}")
            a(f"ds_read_b64_tr_b16 {vr(f+2,2)}, v{vTR[ti]} offset:{WQ_OFF - V_OFF + u*8192+1024}")
    a(f"""
    s_add_u32 s{sE1}, s{sE1}, 1
    s_and_b32 s{sTAG}, s{sE1}, 0xff
    s_waitcnt vmcnt(0) lgkmcnt(0)
    """)
    for u in range(2):
        for ti in range(2):
            f = vA + (ti*2 + u) * 4
            c = "0" if u == 0 else vr(vAcc + 4*ti, 4)
            a(f"v_mfma_f32_16x16x32_bf16 {vr(vAcc+4*ti,4)}, {vr(f,4)}, {vr(vXB[u],4)}, {c}")
    a(f"""
    s_lshl_b32 s{sT0}, s{sCW}, 8
    s_add_u32 s{sT0}, s{sT0}, s{sM1}
    s_nop 6
    """)
    for i in range(8):
        tag(vAcc + i)
    exec_n_lt2()
    a(f"s_add_u32 s{sT1}, s{sT0}, {WS_M1L - WS_M1}")
    a(f"buffer_store_dwordx4 {vr(vAcc,4)}, v{vM1}, s[{rWS}:{rWS+3}], s{sT1} offen")
    a(f"buffer_store_dwordx4 {vr(vAcc+4,4)}, v{vM1}, s[{rWS}:{rWS+3}], s{sT1} offen offset:128")
    sMODE, sDL1, sDL3, sIDW, sXCC = 60, 69, 70, 100, 101
    a(f"""
    s_getreg_b32 s{sXCC}, hwreg(HW_REG_XCC_ID)
    s_add_u32 s{sIDW}, s{sE1}, 0x5bd1e995
    s_cmp_lg_u32 s{sCW}, 0
    s_cbranch_scc1 L_noid
    s_lshl_b32 s{sT1}, s{sH}, 7
    s_lshl_b32 s{sT2}, s{sJ}, 3
    s_add_u32 s{sT1}, s{sT1}, s{sT2}
    s_add_u32 s{sT1}, s{sT1}, {WS_ID}
    v_mov_b32 v{vt[2]}, s{sIDW}
    v_mov_b32 v{vt[3]}, s{sXCC}
    v_mov_b32 v{vt[0]}, 0
    s_mov_b64 exec, 1
    buffer_store_dwordx2 v[{vt[2]}:{vt[3]}], v{vt[0]}, s[{rWS}:{rWS+3}], s{sT1} offen
    L_noid:
    s_mov_b64 exec, -1
    """)
    stamp(3)
    vAcc2 = R.alloc(8, 4)
    a(f"""
    s_cmp_eq_u32 s{sCW}, 3
    s_cbranch_scc1 L_gate
    """)
    wait_prog(32, "L_w32")
    for mi_, off in enumerate((0, 8192)):
        for u in range(2):
            f = vA + (mi_*2 + u) * 4
            a(f"ds_read_b64_tr_b16 {vr(f,2)}, v{vTRG} offset:{off + u*4096}")
            a(f"ds_read_b64_tr_b16 {vr(f+2,2)}, v{vTRG} offset:{off + u*4096 + 512}")
    a("s_waitcnt lgkmcnt(0)")
    for u in range(2):
        for mi_ in range(2):
            f = vA + (mi_*2 + u) * 4
            c = "0" if u == 0 else vr(vAcc2 + 4*mi_, 4)
            a(f"v_mfma_f32_16x16x32_bf16 {vr(vAcc2+4*mi_,4)}, {vr(f,4)}, {vr(vXB[u],4)}, {c}")
    signal(S1DONE)
    a(f"""
    s_lshl_b32 s{sT0}, s{sCW}, 7
    s_add_u32 s{sT0}, s{sT0}, s{sM1}
    s_nop 5
    """)
    for i in range(8):
        tag(vAcc2 + i)
    exec_n_lt2()
    a(f"s_add_u32 s{sT1}, s{sT0}, {WS_M1L - WS_M1}")
    a(f"buffer_store_dwordx4 {vr(vAcc2,4)}, v{vM1}, s[{rWS}:{rWS+3}], s{sT1} offen offset:1024")
    a(f"buffer_store_dwordx4 {vr(vAcc2+4,4)}, v{vM1}, s[{rWS}:{rWS+3}], s{sT1} offen offset:1536")
    a("s_mov_b64 exec, -1")
    a("s_branch L_p3")
    a.label("L_gate")
    signal(S1DONE)
    gx0, gx1, gw = vGx, vGx + 4, vGx + 8
    z = [vt[2], vt[3]]
    a(f"v_mov_b32 v{z[0]}, 0")
    a(f"v_mov_b32 v{z[1]}, 0")
    for i in range(4):
        a(f"v_lshlrev_b32 v{vt[4]}, 16, v{gw+i}")
        a(f"v_and_b32 v{vt[5]}, 0xffff0000, v{gw+i}")
        for bi, gx in enumerate((gx0, gx1)):
            a(f"v_lshlrev_b32 v{vt[6]}, 16, v{gx+i}")
            a(f"v_fmac_f32 v{z[bi]}, v{vt[6]}, v{vt[4]}")
            a(f"v_and_b32 v{vt[6]}, 0xffff0000, v{gx+i}")
            a(f"v_fmac_f32 v{z[bi]}, v{vt[6]}, v{vt[5]}")
    for rot in (8, 4, 2, 1):
        a("s_nop 1")
        for bi in range(2):
            a(f"v_add_f32_dpp v{z[bi]}, v{z[bi]}, v{z[bi]} row_ror:{rot} row_mask:0xf bank_mask:0xf")
    xrow(z)
    a(f"""
    v_mul_f32 v{z[0]}, {hex(f2u(-1.4426950408889634))}, v{z[0]}
    v_mul_f32 v{z[1]}, {hex(f2u(-1.4426950408889634))}, v{z[1]}
    v_exp_f32 v{z[0]}, v{z[0]}
    v_exp_f32 v{z[1]}, v{z[1]}
    s_nop 0
    v_add_f32 v{z[0]}, 1.0, v{z[0]}
    v_add_f32 v{z[1]}, 1.0, v{z[1]}
    v_rcp_f32 v{z[0]}, v{z[0]}
    v_rcp_f32 v{z[1]}, v{z[1]}
    s_nop 0
    s_mov_b64 exec, 1
    ds_write_b64 v{vMisc}, v[{z[0]}:{z[1]}] offset:{GV}
    s_mov_b64 exec, -1
    """)
    a.label("L_p3")
    stamp(4)
    if exit_after == "p2":
        a("s_endpgm")
    R.release(vGx, 12)
    vG4 = R.alloc(16, 4)
    vId = R.alloc(2, 2)
    def gstores():
        lab = a.newlabel("L_gs")
        a(f"""
        s_lshl_b32 s{sT1}, s{sCW}, 8
        s_add_u32 s{sT1}, s{sT1}, s{sM1}
        s_lshl_b32 s{sT2}, s{sCW}, 7
        s_add_u32 s{sT2}, s{sT2}, s{sM1}
        """)
        exec_n_lt2()
        a(f"""
        buffer_store_dwordx4 {vr(vAcc,4)}, v{vM1}, s[{rWS}:{rWS+3}], s{sT1} offen sc1
        buffer_store_dwordx4 {vr(vAcc+4,4)}, v{vM1}, s[{rWS}:{rWS+3}], s{sT1} offen offset:128 sc1
        s_cmp_eq_u32 s{sCW}, 3
        s_cbranch_scc1 {lab}
        buffer_store_dwordx4 {vr(vAcc2,4)}, v{vM1}, s[{rWS}:{rWS+3}], s{sT2} offen offset:1024 sc1
        buffer_store_dwordx4 {vr(vAcc2+4,4)}, v{vM1}, s[{rWS}:{rWS+3}], s{sT2} offen offset:1536 sc1
        {lab}:
        s_mov_b64 exec, -1
        """)
    def needg():
        a(f"""
        s_mov_b64 exec, 1
        ds_write_b32 v{vMisc}, v{vOne} offset:{NEEDG}
        s_mov_b64 exec, -1
        """)
        gstores()
        a(f"""
        s_lshl_b32 s{sT1}, s{sH}, 7
        s_lshl_b32 s{sT2}, s{sJ}, 3
        s_add_u32 s{sT1}, s{sT1}, s{sT2}
        s_add_u32 s{sT1}, s{sT1}, {WS_IDG}
        v_mov_b32 v{vId}, s{sIDW}
        v_mov_b32 v{vId+1}, s{sXCC}
        v_mov_b32 v{vt[4]}, 0
        s_mov_b64 exec, 1
        buffer_store_dwordx2 {vr(vId,2)}, v{vt[4]}, s[{rWS}:{rWS+3}], s{sT1} offen sc1
        s_mov_b64 exec, -1
        s_mov_b32 s46, 1
        """)
    def attempt(idbase, delta, ok_label):
        a(f"buffer_load_dwordx2 {vr(vId,2)}, v{vt[3]}, s[{rWS}:{rWS+3}], s{idbase} offen sc1")
        a(f"s_add_u32 s{sT1}, s{sT0}, {delta}")
        for i in range(4):
            a(f"buffer_load_dwordx4 {vr(vG4+4*i,4)}, v{vt[1]}, s[{rWS}:{rWS+3}], s{sT1} offen sc1")
            if i < 3:
                a(f"s_add_u32 s{sT1}, s{sT1}, 4096")
        a("s_waitcnt vmcnt(0)")
        check_tags([vG4 + i for i in range(16)])
        a(f"""
        s_mov_b64 s[44:45], vcc
        v_cmp_ne_u32 vcc, s{sIDW}, v{vId}
        s_or_b64 s[44:45], s[44:45], vcc
        s_cmp_eq_u64 s[44:45], 0
        s_cbranch_scc1 {ok_label}
        """)
    a(f"""
    s_cmp_lg_u32 s{sCW}, 0
    s_cbranch_scc1 L_waitm
    s_mul_i32 s{sT0}, s{sH}, {8*2048}
    s_lshl_b32 s{sT1}, s{sB}, 6
    s_add_u32 s{sT0}, s{sT0}, s{sT1}
    s_add_u32 s{sT0}, s{sT0}, {WS_M1}
    v_lshrrev_b32 v{vt[1]}, 5, v{vL}
    v_lshlrev_b32 v{vt[1]}, 11, v{vt[1]}
    v_and_b32 v{vt[2]}, 31, v{vL}
    v_lshrrev_b32 v{vt[4]}, 2, v{vt[2]}
    v_lshl_add_u32 v{vt[1]}, v{vt[4]}, 7, v{vt[1]}
    v_and_b32 v{vt[4]}, 3, v{vt[2]}
    v_lshl_add_u32 v{vt[1]}, v{vt[4]}, 4, v{vt[1]}
    v_and_b32 v{vt[3]}, 7, v{vL}
    v_lshlrev_b32 v{vt[3]}, 3, v{vt[3]}
    s_lshl_b32 s42, s{sH}, 7
    s_add_u32 s41, s42, {WS_IDG}
    s_add_u32 s42, s42, {WS_ID}
    s_mov_b32 s43, {ntry}
    s_mov_b32 s46, 0
    L_ql:
    """)
    if not skipl:
        attempt(42, WS_M1L - WS_M1, "L_have")
    a(f"""
    s_cmp_lg_u32 s46, 0
    s_cbranch_scc1 L_tryg
    s_sub_u32 s43, s43, 1
    s_cmp_lg_u32 s43, 0
    s_cbranch_scc1 L_ql
    """)
    needg()
    a.label("L_tryg")
    attempt(41, 0, "L_have")
    a(f"""
    s_sub_u32 s{sTMO}, s{sTMO}, 1
    s_cbranch_scc1 L_exit
    s_branch L_ql
    L_have:
    v_cmp_ne_u32 vcc, s{sXCC}, v{vId+1}
    s_mov_b32 s47, 1
    s_cbranch_vccz L_idsame
    s_mov_b32 s47, 2
    L_idsame:
    {"s_mov_b32 s47, 2" if forceglobal else ""}
    s_cmp_eq_u32 s47, 1
    s_cbranch_scc1 L_setmode
    s_cmp_lg_u32 s46, 0
    s_cbranch_scc1 L_setmode
    """)
    needg()
    a(f"""
    L_setmode:
    v_mov_b32 v{vt[4]}, s47
    s_mov_b64 exec, 1
    ds_write_b32 v{vMisc}, v{vt[4]} offset:{FMODE}
    s_mov_b64 exec, -1
    """)
    stamp(5)
    for e in range(4):
        a(f"v_add_f32 v{vG4+e}, v{vG4+e}, v{vG4+4+e}")
        a(f"v_add_f32 v{vG4+8+e}, v{vG4+8+e}, v{vG4+12+e}")
    for e in range(4):
        a(f"v_add_f32 v{vG4+e}, v{vG4+e}, v{vG4+8+e}")
    for e in range(4):
        a(f"v_mov_b32 v{vG4+4+e}, v{vG4+e}")
    for e in range(4):
        a(f"v_permlane32_swap_b32 v{vG4+4+e}, v{vG4+e}")
    for e in range(4):
        a(f"v_add_f32 v{vG4+e}, v{vG4+e}, v{vG4+4+e}")
    a(f"""
    v_cvt_pk_bf16_f32 v{vG4+4}, v{vG4}, v{vG4+1}
    v_cvt_pk_bf16_f32 v{vG4+5}, v{vG4+2}, v{vG4+3}
    v_lshl_add_u32 v{vt[2]}, v{vt[2]}, 3, v{vMisc}
    s_mov_b32 exec_hi, 0
    ds_write_b64 v{vt[2]}, {vr(vG4+4,2)} offset:{QB}
    s_mov_b64 exec, 1
    ds_write_b32 v{vMisc}, v{vOne} offset:{QRDY}
    s_mov_b64 exec, -1
    """)
    a("s_branch L_waitq")
    a(f"""
    L_waitm:
    s_mov_b32 s46, 0
    L_wm:
    ds_read_b32 v{vt[6]}, v{vMisc} offset:{QRDY}
    ds_read_b32 v{vt[7]}, v{vMisc} offset:{NEEDG}
    s_waitcnt lgkmcnt(0)
    v_readfirstlane_b32 s47, v{vt[6]}
    v_readfirstlane_b32 s{sT0}, v{vt[7]}
    s_andn2_b32 s{sT0}, s{sT0}, s46
    s_cbranch_scc0 L_wm_nog
    """)
    gstores()
    a(f"""
    s_mov_b32 s46, 1
    L_wm_nog:
    s_cmp_lg_u32 s47, 0
    s_cbranch_scc1 L_qrdy
    """)
    spin_tail("L_wm")
    a.label("L_waitq")
    a.label("L_qrdy")
    a(f"""
    ds_read_b32 v{vt[7]}, v{vMisc} offset:{FMODE}
    s_waitcnt lgkmcnt(0)
    v_readfirstlane_b32 s{sMODE}, v{vt[7]}
    s_cmp_eq_u32 s{sMODE}, 1
    s_cselect_b32 s{sDL1}, {WS_M1L - WS_M1}, 0
    s_cselect_b32 s{sDL3}, {WS_M3L - WS_M3}, 0
    """)
    stamp(6)
    if exit_after == "q":
        a("s_endpgm")
    vFoff = R.alloc()
    vF4 = R.alloc(16, 4)
    a(f"""
    v_lshlrev_b32 v{vFoff}, 11, v{vKG}
    v_lshl_add_u32 v{vFoff}, v{vR4}, 7, v{vFoff}
    v_lshl_add_u32 v{vFoff}, v{vC}, 4, v{vFoff}
    s_sub_u32 s{sT0}, s{sCW}, 1
    s_and_b32 s{sT1}, s{sT0}, 1
    s_lshl_b32 s{sT1}, s{sT1}, 6
    s_mul_i32 s39, s{sH}, {8*2048}
    s_add_u32 s39, s39, s{sT1}
    s_add_u32 s39, s39, {WS_M1 + 1024}
    s_add_u32 s39, s39, s{sDL1}
    s_cmp_gt_u32 s{sT0}, 1
    s_cbranch_scc1 L_noffn1
    """)
    def ffn_loads():
        a(f"""
        v_cmp_gt_u32 vcc, 12, v{vN}
        s_and_b64 exec, exec, vcc
        s_add_u32 s{sT1}, s39, {4*2048}
        buffer_load_dwordx4 {vr(vF4,4)}, v{vFoff}, s[{rWS}:{rWS+3}], s39 offen sc1
        buffer_load_dwordx4 {vr(vF4+4,4)}, v{vFoff}, s[{rWS}:{rWS+3}], s{sT1} offen sc1
        buffer_load_dwordx4 {vr(vF4+8,4)}, v{vFoff}, s[{rWS}:{rWS+3}], s39 offen offset:512 sc1
        buffer_load_dwordx4 {vr(vF4+12,4)}, v{vFoff}, s[{rWS}:{rWS+3}], s{sT1} offen offset:512 sc1
        s_mov_b64 exec, -1
        """)
    ffn_loads()
    a.label("L_noffn1")
    if exit_after == "ffn":
        a("s_waitcnt vmcnt(0)")
        a("s_endpgm")
    vQ = R.alloc(16, 4)
    vKf = R.alloc(64, 4)
    vS = R.alloc(16, 4)
    a(f"""
    v_lshlrev_b32 v{vt[0]}, 4, v{vKG}
    v_add_u32 v{vt[0]}, v{vMisc}, v{vt[0]}
    """)
    for t in range(4):
        a(f"ds_read_b128 {vr(vQ+4*t,4)}, v{vt[0]} offset:{QB + 64*t}")
    a(f"s_lshl_b32 s{sT1}, s{sCW}, 4")
    a(f"s_add_u32 s{sT1}, s{sT1}, 48")
    wait_prog(f"s{sT1}", "L_wk")
    for T in range(4):
        for t in range(4):
            a(f"ds_read_b128 {vr(vKf + 16*T + 4*t, 4)}, v{vKA[t]} offset:{T*4096}")
    for T in range(4):
        a(f"s_waitcnt lgkmcnt({4*(3-T)})")
        for t in range(4):
            c = "0" if t == 0 else vr(vS + 4*T, 4)
            a(f"v_mfma_f32_16x16x32_bf16 {vr(vS+4*T,4)}, {vr(vKf+16*T+4*t,4)}, {vr(vQ+4*t,4)}, {c}")
    vSt = R.alloc(2, 2)
    vMc, vSum = vSt, vSt + 1
    a(f"""
    s_mov_b32 s{sT1}, {hex(f2u(CEXP))}
    s_nop 3
    v_max3_f32 v{vMc}, v{vS}, v{vS+1}, v{vS+2}
    """)
    for k in range(3, 11, 2):
        a(f"v_max3_f32 v{vMc}, v{vMc}, v{vS+k}, v{vS+k+1}")
    a(f"v_max_f32 v{vMc}, v{vMc}, v{vS+11}")
    a("s_nop 1")
    a(f"v_max3_f32 v{vMc}, v{vMc}, v{vS+12}, v{vS+13}")
    a(f"v_max3_f32 v{vMc}, v{vMc}, v{vS+14}, v{vS+15}")
    xrow([vMc], "v_max_f32")
    a(f"""
    v_mul_f32 v{vMc}, s{sT1}, v{vMc}
    v_and_b32 v{vMc}, 0xffffff00, v{vMc}
    """)
    for k in range(16):
        a(f"v_fma_f32 v{vS+k}, v{vS+k}, s{sT1}, -v{vMc}")
    for k in range(16):
        a(f"v_exp_f32 v{vS+k}, v{vS+k}")
    for T in range(4):
        a(f"v_cvt_pk_bf16_f32 v{vKf+2*T}, v{vS+4*T}, v{vS+4*T+1}")
        a(f"v_cvt_pk_bf16_f32 v{vKf+2*T+1}, v{vS+4*T+2}, v{vS+4*T+3}")
    a(f"""
    s_lshl_b32 s{sT0}, s{sCW}, 7
    v_lshl_add_u32 v{vt[1]}, v{vKG}, 3, v{vMisc}
    v_add_u32 v{vt[1]}, s{sT0}, v{vt[1]}
    s_mov_b32 exec_lo, 0x00010001
    s_mov_b32 exec_hi, 0x00010001
    """)
    for T in range(4):
        a(f"ds_write_b64 v{vt[1]}, {vr(vKf+2*T,2)} offset:{PB + 32*T}")
    a("s_mov_b64 exec, -1")
    for k in range(0, 16, 2):
        a(f"v_add_f32 v{vS+k}, v{vS+k}, v{vS+k+1}")
    for k in range(0, 16, 4):
        a(f"v_add_f32 v{vS+k}, v{vS+k}, v{vS+k+2}")
    a(f"v_add_f32 v{vS}, v{vS}, v{vS+4}")
    a(f"v_add_f32 v{vS+8}, v{vS+8}, v{vS+12}")
    a(f"v_add_f32 v{vSum}, v{vS}, v{vS+8}")
    xrow([vSum])
    a(f"""
    s_lshl_b32 s{sT0}, s{sCW}, 3
    v_add_u32 v{vt[0]}, s{sT0}, v{vMisc}
    s_mov_b64 exec, 1
    ds_write_b64 v{vt[0]}, {vr(vSt,2)} offset:{STATW}
    ds_add_u32 v{vMisc}, v{vOne} offset:{BAR}
    s_mov_b64 exec, -1
    """)
    wait_lds(BAR, 4, "L_bar1")
    stamp(7)
    if exit_after == "bar":
        a("s_waitcnt vmcnt(0)")
        a("s_endpgm")
    R.release(vKf, 64); R.release(vQ, 16); R.release(vS, 16)
    vP = R.alloc(32, 4)
    vFw = R.alloc(8, 4)
    a(f"""
    v_lshl_add_u32 v{vt[0]}, v{vKG}, 4, v{vMisc}
    ds_read_b128 {vr(vFw,4)}, v{vMisc} offset:{STATW}
    ds_read_b128 {vr(vFw+4,4)}, v{vMisc} offset:{STATW+16}
    """)
    for u in range(8):
        a(f"ds_read_b128 {vr(vP+4*u,4)}, v{vt[0]} offset:{PB + 64*u}")
    a(f"""
    s_waitcnt lgkmcnt(8)
    v_max3_f32 v{vt[4]}, v{vFw}, v{vFw+2}, v{vFw+4}
    v_max_f32 v{vt[4]}, v{vt[4]}, v{vFw+6}
    """)
    for w in range(4):
        a(f"v_sub_f32 v{vFw+2*w}, v{vFw+2*w}, v{vt[4]}")
    for w in range(4):
        a(f"v_exp_f32 v{vFw+2*w}, v{vFw+2*w}")
    a(f"""
    s_cmp_lg_u32 s{sCW}, 0
    s_cbranch_scc1 L_nostat
    v_mul_f32 v{vt[5]}, v{vFw}, v{vFw+1}
    v_fmac_f32 v{vt[5]}, v{vFw+2}, v{vFw+3}
    v_fmac_f32 v{vt[5]}, v{vFw+4}, v{vFw+5}
    v_fmac_f32 v{vt[5]}, v{vFw+6}, v{vFw+7}
    """)
    tag(vt[4])
    tag(vt[5])
    a(f"""
    v_mov_b32 v{vt[6]}, v{vt[4]}
    v_mov_b32 v{vt[7]}, v{vt[5]}
    v_lshlrev_b32 v{vt[0]}, 4, v{vL}
    s_mov_b64 exec, 0xff
    s_add_u32 s{sT0}, s{sM3}, {WS_M3L - WS_M3}
    buffer_store_dwordx4 v[{vt[4]}:{vt[7]}], v{vt[0]}, s[{rWS}:{rWS+3}], s{sT0} offen offset:512
    s_cmp_eq_u32 s{sMODE}, 1
    s_cbranch_scc1 L_g3s
    buffer_store_dwordx4 v[{vt[4]}:{vt[7]}], v{vt[0]}, s[{rWS}:{rWS+3}], s{sM3} offen offset:512 sc1
    L_g3s:
    s_mov_b64 exec, -1
    L_nostat:
    """)
    stamp(8)
    vO = R.alloc(32, 4)
    vVf = R.alloc(32, 4)
    def pv_batch(us, need, label):
        if need is None:
            a("s_barrier")
        else:
            wait_prog(need, label, tight=(need >= 152))
        for k, u in enumerate(us):
            f0 = vVf + 8*k
            for ti in range(2):
                a(f"ds_read_b64_tr_b16 {vr(f0+4*ti,2)}, v{vTR[ti]} offset:{u*8192}")
                a(f"ds_read_b64_tr_b16 {vr(f0+4*ti+2,2)}, v{vTR[ti]} offset:{u*8192+1024}")
        for k, u in enumerate(us):
            a(f"s_waitcnt lgkmcnt({4*(len(us)-1-k)})")
            f0 = vVf + 8*k
            w = u >> 1
            for ti in range(2):
                acc = vO + 8*w + 4*ti
                c = "0" if (u & 1) == 0 else vr(acc, 4)
                a(f"v_mfma_f32_16x16x32_bf16 {vr(acc,4)}, {vr(f0+4*ti,4)}, {vr(vP+4*u,4)}, {c}")
    pv_batch([0, 1, 2, 3], 128, "L_wvA")
    vM3 = R.alloc(); vX3 = R.alloc(); vSa = R.alloc(); vSg = R.alloc(2, 2); vSgG = R.alloc(2, 2)
    vWs = R.alloc(4, 4)
    sFB = 47
    def g3_base(delta):
        a(f"""
        s_and_b32 s{sT3}, s{sCW}, 1
        s_lshl_b32 s{sT3}, s{sT3}, 8
        s_add_u32 s41, s40, s{sT3}
        s_add_u32 s41, s41, {delta}
        s_add_u32 s42, s41, 640
        s_add_u32 s43, s41, 1280
        s_add_u32 s44, s41, 1920
        """)
    a(f"""
    v_and_b32 v{vt[0]}, 1, v{vN}
    v_lshlrev_b32 v{vt[1]}, 6, v{vt[0]}
    v_lshl_add_u32 v{vM3}, v{vKG}, 4, v{vt[1]}
    s_lshr_b32 s{sT1}, s{sCW}, 1
    s_lshl_b32 s{sT2}, s{sH}, 3
    s_lshl_b32 s{sT3}, s{sT1}, 2
    s_add_u32 s{sT2}, s{sT2}, s{sT3}
    s_mul_i32 s40, s{sT2}, 640
    s_add_u32 s40, s40, {WS_M3}
    v_lshlrev_b32 v{vX3}, 2, v{vL}
    v_and_b32 v{vSa}, 3, v{vL}
    v_mul_u32_u24 v{vSa}, 640, v{vSa}
    """)
    a(f"s_add_u32 s40, s40, s{sDL3}")
    g3_base(0)
    a(f"""
    s_sub_u32 s{sT0}, s{sCW}, 1
    s_cmp_gt_u32 s{sT0}, 1
    s_cbranch_scc1 L_noffn2
    s_waitcnt vmcnt(0)
    L_ffnchk:
    v_cmp_gt_u32 vcc, 12, v{vN}
    s_and_b64 exec, exec, vcc
    """)
    check_tags([vF4 + i for i in range(16)])
    a(f"""
    s_mov_b64 exec, -1
    s_cbranch_vccz L_ffn_ok
    s_sub_u32 s{sTMO}, s{sTMO}, 1
    s_cbranch_scc1 L_exit
    """)
    ffn_loads()
    a("s_waitcnt vmcnt(0)")
    a("s_branch L_ffnchk")
    a.label("L_ffn_ok")
    gsum = [vF4 + e for e in range(4)]; usum = [vF4 + 8 + e for e in range(4)]
    for e in range(4):
        a(f"v_add_f32 v{vF4+e}, v{vF4+e}, v{vF4+4+e}")
        a(f"v_add_f32 v{vF4+8+e}, v{vF4+8+e}, v{vF4+12+e}")
    xrow(gsum + usum)
    a(f"v_cmp_gt_u32 vcc, 12, v{vN}")
    for e in range(4):
        a(f"v_max_f32 v{gsum[e]}, 0, v{gsum[e]}")
        a(f"v_mul_f32 v{gsum[e]}, v{gsum[e]}, v{usum[e]}")
        a(f"v_cndmask_b32 v{gsum[e]}, 0, v{gsum[e]}, vcc")
    a(f"""
    v_cvt_pk_bf16_f32 v{vF4+4}, v{gsum[0]}, v{gsum[1]}
    v_cvt_pk_bf16_f32 v{vF4+5}, v{gsum[2]}, v{gsum[3]}
    s_lshl_b32 s{sT0}, s{sT0}, 7
    v_lshl_add_u32 v{vt[1]}, v{vN}, 3, v{vMisc}
    v_add_u32 v{vt[1]}, s{sT0}, v{vt[1]}
    s_mov_b64 exec, 0xffff
    ds_write_b64 v{vt[1]}, {vr(vF4+4,2)} offset:{HID}
    s_mov_b64 exec, -1
    L_noffn2:
    """)
    pv_batch([4, 5], 144, "L_wvB")
    a(f"buffer_load_dwordx2 {vr(vSg,2)}, v{vSa}, s[{rWS}:{rWS+3}], s40 offen offset:512 sc1")
    for i in range(8):
        a(f"v_mul_f32 v{vO+i}, v{vFw}, v{vO+i}")
    for i in range(8):
        a(f"v_fmac_f32 v{vO+i}, v{vFw+2}, v{vO+8+i}")
    pv_batch([6], 152, "L_wvC")
    for i in range(8):
        a(f"v_fmac_f32 v{vO+i}, v{vFw+4}, v{vO+16+i}")
    a(f"""
    v_cmp_eq_u32 vcc, 1, v{vt[0]}
    s_lshl_b32 s45, s{sCW}, 7
    s_add_u32 s45, s45, s{sM3}
    s_add_u32 s46, s45, {WS_M3L - WS_M3}
    """)
    for e in range(4):
        a(f"v_cndmask_b32 v{vO+e}, v{vO+e}, v{vO+4+e}, vcc")
    pv_batch([7], None, "L_wvD")
    a("s_nop 7")
    for e in range(4):
        a(f"v_cndmask_b32 v{vO+24+e}, v{vO+24+e}, v{vO+28+e}, vcc")
    for e in range(4):
        a(f"v_fmac_f32 v{vO+e}, v{vFw+6}, v{vO+24+e}")
    for e in range(4):
        tag(vO + e)
    exec_n_lt2()
    a(f"buffer_store_dwordx4 {vr(vO,4)}, v{vM3}, s[{rWS}:{rWS+3}], s46 offen")
    a(f"s_cmp_eq_u32 s{sMODE}, 1")
    a("s_cbranch_scc1 L_g3o")
    a(f"buffer_store_dwordx4 {vr(vO,4)}, v{vM3}, s[{rWS}:{rWS+3}], s45 offen sc1")
    a.label("L_g3o")
    a("s_mov_b64 exec, -1")
    stamp(9)
    R.release(vP, 32); R.release(vVf, 32); R.release(vFw, 8)
    vG3 = vG4
    vG3b = vG4 + 4
    def g3_loads(dst):
        for s_ in range(4):
            a(f"buffer_load_dword v{dst+s_}, v{vX3}, s[{rWS}:{rWS+3}], s{41+s_} offen sc1")
    a("s_waitcnt vmcnt(1)")
    a("L_sg:")
    check_tags([vSg, vSg + 1])
    a(f"""
    s_cbranch_vccz L_sg_ok
    s_sub_u32 s{sTMO}, s{sTMO}, 1
    s_cbranch_scc1 L_exit
    buffer_load_dwordx2 {vr(vSg,2)}, v{vSa}, s[{rWS}:{rWS+3}], s40 offen offset:512 sc1
    s_waitcnt vmcnt(0)
    s_branch L_sg
    L_sg_ok:
    v_mov_b32 v{vt[3]}, v{vSg}
    s_nop 1
    v_max_f32_dpp v{vt[3]}, v{vt[3]}, v{vt[3]} quad_perm:[1,0,3,2] row_mask:0xf bank_mask:0xf
    s_nop 1
    v_max_f32_dpp v{vt[3]}, v{vt[3]}, v{vt[3]} quad_perm:[2,3,0,1] row_mask:0xf bank_mask:0xf
    v_sub_f32 v{vt[3]}, v{vSg}, v{vt[3]}
    v_exp_f32 v{vt[3]}, v{vt[3]}
    s_nop 0
    v_mul_f32 v{vt[4]}, v{vt[3]}, v{vSg+1}
    s_nop 1
    v_add_f32_dpp v{vt[4]}, v{vt[4]}, v{vt[4]} quad_perm:[1,0,3,2] row_mask:0xf bank_mask:0xf
    s_nop 1
    v_add_f32_dpp v{vt[4]}, v{vt[4]}, v{vt[4]} quad_perm:[2,3,0,1] row_mask:0xf bank_mask:0xf
    v_rcp_f32 v{vt[4]}, v{vt[4]}
    s_nop 0
    v_mul_f32 v{vt[3]}, v{vt[3]}, v{vt[4]}
    s_nop 1
    """)
    for s_ in range(4):
        a(f"v_mov_b32_dpp v{vWs+s_}, v{vt[3]} quad_perm:[{s_},{s_},{s_},{s_}] row_mask:0xf bank_mask:0xf")
    vWf = R.alloc(16, 4); vDf = R.alloc(8, 4); vHf = R.alloc(8, 4)
    vYa = R.alloc(4, 4); vYf = R.alloc(4, 4); vGl = R.alloc()
    vAH = R.alloc(); vAG = R.alloc(); vAO = R.alloc(); vAW = R.alloc(); vM4 = R.alloc()
    a(f"""
    v_and_b32 v{vt[0]}, 1, v{vN}
    v_lshlrev_b32 v{vt[1]}, 7, v{vt[0]}
    v_add_u32 v{vt[1]}, v{vMisc}, v{vt[1]}
    v_lshl_add_u32 v{vAH}, v{vKG}, 4, v{vt[1]}
    v_lshl_add_u32 v{vAG}, v{vt[0]}, 2, v{vMisc}
    v_lshlrev_b32 v{vt[1]}, 8, v{vt[0]}
    v_lshl_add_u32 v{vt[1]}, v{vKG}, 4, v{vt[1]}
    v_add_u32 v{vAO}, v{vMisc}, v{vt[1]}
    v_lshlrev_b32 v{vt[1]}, 6, v{vt[0]}
    v_lshl_add_u32 v{vM4}, v{vKG}, 4, v{vt[1]}
    s_lshl_b32 s{sT0}, s{sCW}, 7
    v_lshl_add_u32 v{vAW}, v{vL}, 1, v{vMisc}
    v_add_u32 v{vAW}, s{sT0}, v{vAW}
    s_lshl_b32 s48, s{sCW}, 7
    s_add_u32 s48, s48, s{sM4}
    """)
    vFa = R.alloc(); vFo = R.alloc()
    a(f"""
    s_lshl_b32 s{sT0}, s{sJ}, 14
    s_lshl_b32 s{sT1}, s{sCW}, 7
    s_add_u32 s{sT0}, s{sT0}, s{sT1}
    s_add_u32 s50, s{sT0}, {WS_M4}
    s_add_u32 s51, s50, 4096
    s_add_u32 s52, s50, 8192
    s_add_u32 s53, s50, 12288
    v_lshrrev_b32 v{vFa}, 3, v{vL}
    v_lshlrev_b32 v{vFa}, 9, v{vFa}
    v_and_b32 v{vFo}, 7, v{vL}
    v_lshl_add_u32 v{vFa}, v{vFo}, 4, v{vFa}
    s_lshl_b32 s{sT0}, s{sJ}, 7
    s_lshl_b32 s{sT1}, s{sCW}, 5
    s_add_u32 s{sT0}, s{sT0}, s{sT1}
    v_lshrrev_b32 v{vt[3]}, 2, v{vFo}
    v_lshlrev_b32 v{vt[3]}, 10, v{vt[3]}
    v_and_b32 v{vFo}, 3, v{vFo}
    v_lshl_add_u32 v{vFo}, v{vFo}, 3, v{vt[3]}
    v_lshl_add_u32 v{vFo}, v{vKG}, 1, v{vFo}
    v_add_u32 v{vFo}, s{sT0}, v{vFo}
    """)
    g3_loads(vG3)
    a("s_barrier")
    for u in range(4):
        a(f"ds_read_b64_tr_b16 {vr(vWf+4*u,2)}, v{vTRS} offset:{u*4096}")
        a(f"ds_read_b64_tr_b16 {vr(vWf+4*u+2,2)}, v{vTRS} offset:{u*4096+512}")
    a(f"""
    ds_read_b64_tr_b16 {vr(vDf,2)}, v{vTRS} offset:{4*4096}
    ds_read_b64_tr_b16 {vr(vDf+2,2)}, v{vTRS} offset:{4*4096+512}
    ds_read_b64_tr_b16 {vr(vDf+4,2)}, v{vTRS} offset:{5*4096}
    ds_read_b64_tr_b16 {vr(vDf+6,2)}, v{vTRS} offset:{5*4096+512}
    """)
    g3_loads(vG3b)
    stamp(11)
    a(f"""
    L_g3:
    s_waitcnt vmcnt(4)
    """)
    check_tags([vG3 + i for i in range(4)])
    a(f"""
    s_cbranch_vccz L_g3_ok
    s_sub_u32 s{sTMO}, s{sTMO}, 1
    s_cbranch_scc1 L_exit
    """)
    if stamps: a("s_add_u32 s71, s71, 1")
    g3_loads(vG3)
    a("s_waitcnt vmcnt(4)")
    check_tags([vG3b + i for i in range(4)])
    a("s_cbranch_vccz L_g3_okb")
    g3_loads(vG3b)
    vRes = R.alloc()
    def combine(src):
        a(f"v_mul_f32 v{vRes}, v{vWs}, v{src}")
        for k in range(1, 4):
            a(f"v_fmac_f32 v{vRes}, v{vWs+k}, v{src+k}")
    a("s_branch L_g3")
    a.label("L_g3_okb")
    combine(vG3b)
    a("s_branch L_g3_done")
    a.label("L_g3_ok")
    combine(vG3)
    a.label("L_g3_done")
    stamp(12)
    a(f"""
    v_cvt_pk_bf16_f32 v{vRes}, v{vRes}, v{vRes}
    ds_write_b16 v{vAW}, v{vRes} offset:{OB}
    ds_read_b128 {vr(vHf,4)}, v{vAH} offset:{HID}
    ds_read_b128 {vr(vHf+4,4)}, v{vAH} offset:{HID+64}
    ds_read_b32 v{vGl}, v{vAG} offset:{GV}
    s_waitcnt lgkmcnt(0)
    s_barrier
    """)
    vOf = R.alloc(16, 4)
    for u in range(4):
        a(f"ds_read_b128 {vr(vOf+4*u,4)}, v{vAO} offset:{OB + 64*u}")
    a(f"v_mfma_f32_16x16x32_bf16 {vr(vYf,4)}, {vr(vDf,4)}, {vr(vHf,4)}, 0")
    a(f"v_mfma_f32_16x16x32_bf16 {vr(vYf,4)}, {vr(vDf+4,4)}, {vr(vHf+4,4)}, {vr(vYf,4)}")
    a(f"v_sub_f32 v{vt[0]}, 1.0, v{vGl}")
    for u in range(4):
        a(f"s_waitcnt lgkmcnt({3-u})")
        c = "0" if u == 0 else vr(vYa, 4)
        a(f"v_mfma_f32_16x16x32_bf16 {vr(vYa,4)}, {vr(vWf+4*u,4)}, {vr(vOf+4*u,4)}, {c}")
    for e in range(4):
        a(f"v_mul_f32 v{vYf+e}, v{vt[0]}, v{vYf+e}")
    a("s_nop 3")
    for e in range(4):
        a(f"v_fma_f32 v{vYa+e}, v{vGl}, v{vYa+e}, v{vYf+e}")
    for e in range(4):
        tag(vYa + e)
    exec_n_lt2()
    a(f"buffer_store_dwordx4 {vr(vYa,4)}, v{vM4}, s[{rWS}:{rWS+3}], s48 offen sc1")
    a("s_mov_b64 exec, -1")
    vFin = R.alloc(4, 4)
    a(f"""
    s_lshl_b32 s{sT0}, s{sJ}, 2
    s_cmp_lg_u32 s{sT0}, s{sH}
    s_cbranch_scc1 L_done
    """)
    vG5 = vF4
    def g4_loads(dst):
        for i in range(4):
            a(f"buffer_load_dwordx4 {vr(dst+4*i,4)}, v{vFa}, s[{rWS}:{rWS+3}], s{50+i} offen sc1")
    if fin2:
        g4_loads(vG4)
        g4_loads(vG5)
        a("L_g4:")
        a("s_waitcnt vmcnt(4)")
        check_tags([vG4 + i for i in range(16)])
        a(f"""
        s_cbranch_vccz L_g4_ok
        s_sub_u32 s{sTMO}, s{sTMO}, 1
        s_cbranch_scc1 L_exit
        """)
        g4_loads(vG4)
        a("s_waitcnt vmcnt(4)")
        check_tags([vG5 + i for i in range(16)])
        a("s_cbranch_vccz L_g4_okb")
        g4_loads(vG5)
        a("s_branch L_g4")
        a("L_g4_okb:")
        for e in range(4):
            a(f"v_add_f32 v{vG5+e}, v{vG5+e}, v{vG5+4+e}")
            a(f"v_add_f32 v{vG5+8+e}, v{vG5+8+e}, v{vG5+12+e}")
        for e in range(4):
            a(f"v_add_f32 v{vFin+e}, v{vG5+e}, v{vG5+8+e}")
        a("s_branch L_g4_sum")
        a("L_g4_ok:")
    else:
        a("L_g4:")
        g4_loads(vG4)
        a("s_waitcnt vmcnt(0)")
        check_tags([vG4 + i for i in range(16)])
        retry("L_g4", "L_g4_ok")
    for e in range(4):
        a(f"v_add_f32 v{vG4+e}, v{vG4+e}, v{vG4+4+e}")
        a(f"v_add_f32 v{vG4+8+e}, v{vG4+8+e}, v{vG4+12+e}")
    for e in range(4):
        a(f"v_add_f32 v{vFin+e}, v{vG4+e}, v{vG4+8+e}")
    a("L_g4_sum:")
    a(f"""
    s_nop 0
    v_permlane32_swap_b32 v{vFin}, v{vFin+2}
    v_permlane32_swap_b32 v{vFin+1}, v{vFin+3}
    v_add_f32 v{vFin}, v{vFin}, v{vFin+2}
    v_add_f32 v{vFin+1}, v{vFin+1}, v{vFin+3}
    s_nop 1
    v_permlane16_swap_b32 v{vFin}, v{vFin+1}
    v_add_f32 v{vFin}, v{vFin}, v{vFin+1}
    s_nop 1
    v_add_f32_dpp v{vFin}, v{vFin}, v{vFin} row_ror:8 row_mask:0xf bank_mask:0xf
    v_cvt_pk_bf16_f32 v{vFin}, v{vFin}, v{vFin}
    s_mov_b32 exec_lo, 0x00ff00ff
    s_mov_b32 exec_hi, 0x00ff00ff
    global_store_short v{vFo}, v{vFin}, s[{pOUT}:{pOUT+1}]
    s_or_b32 s{sT0}, s{sJ}, s{sCW}
    s_cmp_lg_u32 s{sT0}, 0
    s_cbranch_scc1 L_done
    s_mov_b64 exec, 1
    v_mov_b32 v{vt[0]}, 0
    v_mov_b32 v{vt[1]}, s{sE1}
    global_store_dword v{vt[0]}, v{vt[1]}, s[{pWS}:{pWS+1}] sc1
    L_done:
    """)
    stamp(13)
    dump_stamps(vt[0], vt[1], [(6, 2), (7, 3), (8, 5), (9, 6), (10, 7), (11, 9), (12, 11), (13, 12), (14, 13)])
    a.label("L_exit")
    a("s_endpgm")
    a.label("L_codeend")
    nv = R.hi
    txt = (f"; @launch grid=(256,1,1) block=(320,1,1) lds={LDS_BYTES}\n" + HEAD + kernel_begin(KN) + a.text()
           + kernel_desc(KN, nv, sgpr=102))
    return txt

if __name__ == "__main__":
    import argparse
    ap = argparse.ArgumentParser()
    ap.add_argument("-o", default="main.s"); ap.add_argument("--stamps", action="store_true")
    ap.add_argument("-W", type=int, default=24)
    ap.add_argument("--nopf", action="store_true")
    ap.add_argument("--sleep", type=int, default=3)
    ap.add_argument("--skipl", action="store_true")
    ap.add_argument("--xfl", default=""); ap.add_argument("--pffl", default="")
    ap.add_argument("--fin1", action="store_true")
    ap.add_argument("--gfl", default=None); ap.add_argument("--wfl", default=None); ap.add_argument("--kvfl", default=None)
    ap.add_argument("--forceglobal", action="store_true")
    ap.add_argument("--ntry", type=int, default=3)
    ap.add_argument("--m1st", default="sc1"); ap.add_argument("--m1ld", default="sc1")
    ap.add_argument("--table", default="6,5,6,5,6,5,5,5")
    ap.add_argument("--exit", default=None)
    ap.add_argument("--loaderonly", action="store_true")
    ap.add_argument("--rot", type=int, default=17)
    ap.add_argument("--vsplit", type=int, default=0)
    ap.add_argument("--cset", default=None); ap.add_argument("--lset", default=None)
    ap.add_argument("--W2", type=int, default=None)
    ap.add_argument("--dbg", action="store_true")
    ap.add_argument("--nont", action="store_true")
    ap.add_argument("--noxcd", action="store_true")
    x = ap.parse_args()
    fl = "" if x.nont else "nt"
    open(x.o, "w").write(gen(W=x.W, W2=x.W2, sleep=x.sleep, skipl=x.skipl, xfl=x.xfl, pffl=x.pffl, fin2=not x.fin1, forceglobal=x.forceglobal, ntry=x.ntry, m1st=x.m1st, m1ld=x.m1ld, table=tuple(int(c) for c in x.table.split(',')), exit_after=x.exit, loaderonly=x.loaderonly, rot=x.rot, vsplit=x.vsplit, cset=None if x.cset is None else [int(i) for i in x.cset.split(',')], lset=None if x.lset is None else [int(i) for i in x.lset.split(',')], stamps=x.stamps or x.dbg, dbgstamps=x.dbg, prefetch_code=not x.nopf,
                             wflags=fl if x.wfl is None else x.wfl, gflags=fl if x.gfl is None else x.gfl, kvflags=fl if x.kvfl is None else x.kvfl, xcdmap=not x.noxcd))
```

```python
import sys, math, struct
from asmgen import *

K_OFF = 0
V_OFF = 65536
WQ_OFF = V_OFF + 32768
WG_OFF = V_OFF + 49152
WU_OFF = V_OFF + 57344
S2_OFF = 131072
MISC = 155648
PROG, S1DONE, BAR, QRDY = 0, 4, 8, 12
NEEDG, FMODE = 56, 60
STATW, GV = 16, 48
QB, HID, PB, OB = 64, 320, 576, 1088
LDS_BYTES = 157696
WS_ID = 0x8000
WS_IDG = 0x9000
WS_M1 = 0x10000
WS_M3 = 0x100000
WS_M4 = 0x140000
WS_M3L = 0x180000
WS_M1L = 0x280000
WS_STAMP = 0x200000
WS_SIZE = 0x400000
CEXP = 1.4426950408889634 / math.sqrt(128.0)


HEADER_DOC = """; Fused decode step: sigmoid-gated mix of sliding-window attention (last 1024 keys) and a ReGLU FFN.
"""

def f2u(x):
    return struct.unpack("<I", struct.pack("<f", x))[0]

class Regs:
    def __init__(self, lo, hi):
        self.free = list(range(lo, hi))
        self.hi = lo
    def alloc(self, n=1, align=1):
        if n > 1 and align == 1:
            align = 2
        for s in self.free:
            if s % align == 0 and all((s + i) in self.free for i in range(n)):
                for i in range(n):
                    self.free.remove(s + i)
                self.hi = max(self.hi, s + n)
                return s
        raise RuntimeError("out of registers")
    def release(self, s, n=1):
        for i in range(n):
            assert (s + i) not in self.free
            self.free.append(s + i)
        self.free.sort()

def vr(b, n=1):
    return f"v{b}" if n == 1 else f"v[{b}:{b+n-1}]"

def gen(W=28, stamps=False, dbgstamps=False, wflags="nt", gflags="nt", kvflags="nt", prefetch_code=True, xcdmap=True,
        sleep=1, W2=None, vsplit=0, cset=None, lset=None, rot=17, loaderonly=False, exit_after=None, forceglobal=False, skipl=False, qdelay=0, qcount=False, ntry=3, fin2=True, xfl='', pffl='', m1st='sc1', m1ld='sc1', table=(8, 8, 8, 8, 5, 1, 4, 1)):
    assert sum(table) == 43 and max(table) <= 6
    tabC = sum(c << (4*x) for x, c in enumerate(table))
    pre = [sum(table[:x]) for x in range(8)]
    tabP = sum(p << (8*x) for x, p in enumerate(pre))
    W2 = W2 or W
    a = Asm()
    KN = NAME + "_kernel"
    sWAVE, sH, sJ, sTAG, sE1 = 3, 4, 5, 6, 7
    pX, pK, pV, pWQ, pWO, pBX, pWG, pWU = 8, 10, 12, 14, 16, 18, 20, 22
    pWD, pGW, pOUT, pWS = 24, 26, 28, 30
    sU, sTMO, sT0, sT1, sT2, sT3 = 60, 61, 62, 63, 64, 65
    sCW, sB, sPG = 66, 67, 68
    sC = 58 + 12
    STAMP0 = 72
    role = ["entry"]
    def stamp(idx):
        sel = lset if role[0] == "loader" else cset
        if stamps and (sel is None or idx in sel):
            a(f"s_memrealtime s[{STAMP0+2*idx}:{STAMP0+2*idx+1}]")
            a("s_waitcnt lgkmcnt(0)")
    def dump_stamps(vtmp, vaddr, dbg_slots=None):
        if not stamps:
            return
        if dbgstamps:
            lab = a.newlabel("L_nodbg")
            a(f"""
            s_cmp_lg_u32 s2, 0
            s_cbranch_scc1 {lab}
            s_cmp_gt_u32 s{sWAVE}, 1
            s_cbranch_scc1 {lab}
            s_load_dwordx2 s[{sT2}:{sT3}], s[0:1], 88
            s_waitcnt lgkmcnt(0)
            s_mov_b64 exec, 1
            v_mov_b32 v{vaddr}, 0
            """)
            for slot, idx in dbg_slots:
                a(f"s_sub_u32 s{sT0}, s{STAMP0+2*idx}, s{STAMP0}")
                a(f"v_mov_b32 v{vtmp}, s{sT0}")
                a(f"global_store_dword v{vaddr}, v{vtmp}, s[{sT2}:{sT3}] offset:{4*slot}")
                a("s_nop 1")
            a("s_waitcnt vmcnt(0)")
            a.label(lab)
            return
        a(f"""
        s_mov_b64 exec, 1
        s_lshl_b32 s{sT0}, s2, 3
        s_add_u32 s{sT0}, s{sT0}, s{sWAVE}
        s_lshl_b32 s{sT0}, s{sT0}, 6
        s_add_u32 s{sT0}, s{sT0}, {WS_STAMP}
        s_add_u32 s{sT2}, s{pWS}, s{sT0}
        s_addc_u32 s{sT3}, s{pWS+1}, 0
        v_mov_b32 v{vaddr}, 0
        """)
        for i in range(14):
            a(f"v_mov_b32 v{vtmp}, s{STAMP0+2*i}")
            a(f"global_store_dword v{vaddr}, v{vtmp}, s[{sT2}:{sT3}] offset:{4*i}")
            a("s_nop 1")
        for i, r in ((14, 71), (15, 71)):
            a(f"v_mov_b32 v{vtmp}, s{r}")
            a(f"global_store_dword v{vaddr}, v{vtmp}, s[{sT2}:{sT3}] offset:{4*i}")
            a("s_nop 1")
        a("s_waitcnt vmcnt(0)")

    def ffn_range():
        a(f"""
        s_lshr_b32 s{sT0}, s{sH}, 2
        s_lshl_b32 s{sT1}, s{sT0}, 2
        s_lshr_b32 s{sC}, {hex(tabC)}, s{sT1}
        s_and_b32 s{sC}, s{sC}, 15
        s_lshl_b32 s{sT1}, s{sT0}, 3
        s_mov_b32 s{sT2}, {hex(tabP & 0xffffffff)}
        s_mov_b32 s{sT3}, {hex(tabP >> 32)}
        s_lshr_b64 s[{sT2}:{sT3}], s[{sT2}:{sT3}], s{sT1}
        s_and_b32 s{sU}, s{sT2}, 0xff
        s_lshl_b32 s{sU}, s{sU}, 2
        s_and_b32 s{sT0}, s{sH}, 3
        s_mul_i32 s{sT0}, s{sT0}, s{sC}
        s_add_u32 s{sU}, s{sU}, s{sT0}
        """)

    vRow4, vSl, vCb = 1, 2, 3
    vWQ = [8, 9]; vV = [10, 11]; vK = [12, 13, 14, 15]; vO = [16, 17]; vG = [18, 19]
    rK, rV, rWQ, rWO, rWG, rWU, rWD = 32, 36, 40, 44, 48, 52, 56
    sOff, sKV, sCnt, sN, sLast = 66, 67, 68, 69, 59 + 41
    a(f"""
    s_cmp_ge_u32 s2, 256
    s_cbranch_scc1 L_exit
    s_load_dwordx16 s[8:23], s[0:1], 0
    s_load_dwordx4 s[24:27], s[0:1], 64
    s_load_dwordx2 s[28:29], s[0:1], 80
    s_load_dwordx2 s[30:31], s[0:1], 96
    """)
    if stamps:
        for i in range(14):
            a(f"s_mov_b32 s{STAMP0+2*i}, 0")
        a("s_mov_b32 s71, 0")
        a(f"s_memrealtime s[{STAMP0}:{STAMP0+1}]")
    a(f"""
    v_lshrrev_b32 v1, 6, v0
    v_and_b32 v0, 63, v0
    s_and_b32 s{sT0}, s2, 7
    s_lshr_b32 s{sT1}, s2, 3
    v_readfirstlane_b32 s{sWAVE}, v1
    s_lshr_b32 s{sH}, s{sT1}, 3
    s_lshl_b32 s{sT0}, s{sT0}, 2
    s_add_u32 s{sH}, s{sH}, s{sT0}
    s_and_b32 s{sJ}, s{sT1}, 7
    {"" if xcdmap else f"s_lshr_b32 s{sH}, s2, 3"}
    {"" if xcdmap else f"s_and_b32 s{sJ}, s2, 7"}
    v_mov_b32 v4, 0
    v_mov_b32 v5, 0
    v_mov_b32 v6, 0
    v_mov_b32 v7, 0
    v_mov_b32 v26, {MISC}
    s_mov_b64 exec, 1
    ds_write_b128 v26, v[4:7]
    ds_write_b64 v26, v[4:5] offset:{NEEDG}
    s_mov_b64 exec, -1
    v_lshrrev_b32 v{vRow4}, 4, v0
    v_and_b32 v{vSl}, 15, v0
    v_lshrrev_b32 v{vCb}, 1, v{vSl}
    v_xor_b32 v{vCb}, v{vCb}, v{vRow4}
    v_and_b32 v5, 1, v0
    v_lshlrev_b32 v5, 4, v5
    v_lshl_or_b32 v6, v{vCb}, 5, v5
    v_xor_b32 v7, 0x80, v6
    v_lshl_add_u32 v{vWQ[0]}, v{vRow4}, 13, v6
    v_lshl_add_u32 v{vWQ[1]}, v{vRow4}, 13, v7
    s_lshl_b32 s{sOff}, s{sJ}, 19
    s_lshl_b32 s{sT0}, s{sH}, 8
    s_add_u32 s{sOff}, s{sOff}, s{sT0}
    s_mov_b32 s{sN}, {1 - W}
    s_mov_b32 s{sLast}, 0
    s_mov_b32 s{sTMO}, 1000000
    s_mov_b32 s{rWQ+2}, {512*4096*2}
    s_mov_b32 s{rWQ+3}, 0x20000
    s_cmp_lg_u32 s{sWAVE}, 0
    s_waitcnt lgkmcnt(0)
    s_barrier
    s_cbranch_scc1 L_compute
    s_mov_b32 s{rWQ}, s{pWQ}
    s_mov_b32 s{rWQ+1}, s{pWQ+1}
    s_setprio 3
    """)
    role[0] = "loader"
    stamp(1)
    NL = 184
    def srd(r, p, size):
        a(f"""
        s_mov_b32 s{r}, s{p}
        s_mov_b32 s{r+1}, s{p+1}
        s_mov_b32 s{r+2}, {size}
        s_mov_b32 s{r+3}, 0x20000
        """)
    sRel = 101
    def stream(name, cnt, unr, srdr, voffs, lds0, step, fl, pre=None, wait=None, rotate=False):
        Wc = wait or W
        a(f"s_mov_b32 m0, {lds0}")
        if pre:
            pre()
        a(f"s_mov_b32 s{sCnt}, {cnt // unr}")
        a.label(f"L_ld_{name}")
        for i in range(unr):
            a(f"buffer_load_dwordx4 v{voffs[i]}, s[{srdr}:{srdr+3}], s{sOff} offen {fl} lds")
            a(f"s_add_u32 m0, m0, 1024")
            if rotate:
                a(f"s_add_u32 s{sRel}, s{sRel}, 1024")
                a(f"s_and_b32 s{sRel}, s{sRel}, 0xffff")
                a(f"s_add_u32 s{sOff}, s{sKV}, s{sRel}")
            else:
                a(f"s_add_u32 s{sOff}, s{sOff}, {step}")
            a(f"s_waitcnt vmcnt({Wc-1})")
        a(f"""
        s_add_i32 s{sN}, s{sN}, {unr}
        s_max_i32 s{sLast}, s{sN}, s{sLast}
        v_mov_b32 v27, s{sLast}
        s_mov_b64 exec, 1
        ds_write_b32 v26, v27 offset:{PROG}
        s_mov_b64 exec, -1
        s_sub_u32 s{sCnt}, s{sCnt}, 1
        s_cmp_lg_u32 s{sCnt}, 0
        s_cbranch_scc1 L_ld_{name}
        """)
    stream("wq", 16, 4, rWQ, [vWQ[0], vWQ[0], vWQ[1], vWQ[1]], WQ_OFF, 4*8192, wflags)
    stamp(2)
    a(f"""
    v_lshl_add_u32 v{vV[0]}, v{vRow4}, 8, v6
    v_lshl_add_u32 v{vV[1]}, v{vRow4}, 8, v7
    v_lshrrev_b32 v20, 3, v0
    v_and_b32 v21, 7, v0
    v_lshrrev_b32 v21, 1, v21
    v_and_b32 v22, 1, v{vRow4}
    v_xor_b32 v21, v21, v22
    v_mul_u32_u24 v23, 2752, v20
    v_mov_b32 v24, 0x7fff0000
    """)
    ffn_range()
    for var in range(2):
        a(f"""
        v_xor_b32 v22, {2*var}, v21
        v_lshl_or_b32 v25, v22, 5, v5
        v_lshrrev_b32 v22, 4, v25
        v_cmp_le_u32 vcc, s{sC}, v22
        v_lshl_add_u32 v{vO[var]}, v20, 10, v25
        v_add_u32 v{vG[var]}, v23, v25
        v_cndmask_b32 v{vG[var]}, v{vG[var]}, v24, vcc
        """)
    srd(rWG, pWG, 512*1376*2); srd(rWU, pWU, 512*1376*2)
    def pre_g():
        a(f"s_mul_i32 s{sOff}, s{sJ}, {64*2752}")
        a(f"s_lshl_b32 s{sT0}, s{sU}, 4")
        a(f"s_add_u32 s{sOff}, s{sOff}, s{sT0}")
    stream("wg", 8, 4, rWG, [vG[0], vG[1], vG[0], vG[1]], WG_OFF, 8*2752, gflags, pre_g)
    stream("wu", 8, 4, rWU, [vG[0], vG[1], vG[0], vG[1]], WU_OFF, 8*2752, gflags, pre_g)
    stamp(7)
    a(f"v_xor_b32 v6, v{vSl}, v{vRow4}")
    for v in range(4):
        a(f"v_xor_b32 v7, {4*v}, v6")
        a(f"v_lshlrev_b32 v7, 4, v7")
        a(f"v_lshl_add_u32 v{vK[v]}, v{vRow4}, 8, v7")
    a(f"""
    s_lshr_b32 s{sT0}, s{sJ}, 2
    s_lshl_b32 s{sT0}, s{sT0}, 5
    s_add_u32 s{sT0}, s{sT0}, s{sH}
    s_lshl_b32 s{sKV}, s{sT0}, 20
    s_and_b32 s{sT0}, s{sJ}, 3
    s_lshl_b32 s{sT0}, s{sT0}, 16
    s_add_u32 s{sKV}, s{sKV}, s{sT0}
    s_add_u32 s{sKV}, s{sKV}, 0xC0000
    """)
    srd(rK, pK, 1 << 26); srd(rV, pV, 1 << 26)
    def pre_kv():
        a(f"s_mul_i32 s{sRel}, s2, {rot}")
        a(f"s_and_b32 s{sRel}, s{sRel}, 63")
        a(f"s_lshl_b32 s{sRel}, s{sRel}, 10")
        a(f"s_add_u32 s{sOff}, s{sKV}, s{sRel}")
    stream("k", 64, 4, rK, vK, K_OFF, 1024, kvflags, pre_kv, rotate=True)
    stamp(3)
    srd(rWO, pWO, 4096*512*2); srd(rWD, pWD, 1376*512*2)
    stream("v0", 32, 4, rV, [vV[0], vV[0], vV[1], vV[1]], V_OFF, 1024, kvflags, pre_kv, rotate=True)
    a(f"""
    L_ld_s1:
    ds_read_b32 v27, v26 offset:{S1DONE}
    s_waitcnt lgkmcnt(0)
    v_readfirstlane_b32 s{sT0}, v27
    s_cmp_ge_u32 s{sT0}, {0 if loaderonly else 4}
    s_cbranch_scc1 L_ld_s1_ok
    s_sub_u32 s{sTMO}, s{sTMO}, 1
    s_cbranch_scc1 L_exit
    s_sleep 1
    s_branch L_ld_s1
    L_ld_s1_ok:
    s_add_i32 s{sN}, s{sN}, {W - W2}
    """)
    stream("v", 32, 4, rV, [vV[0], vV[0], vV[1], vV[1]], V_OFF + 32*1024, 1024, kvflags, lambda: a("s_nop 0"), wait=W2, rotate=True)
    stamp(4)
    def pre_o():
        a(f"s_lshl_b32 s{sOff}, s{sH}, 17")
        a(f"s_lshl_b32 s{sT0}, s{sJ}, 7")
        a(f"s_add_u32 s{sOff}, s{sOff}, s{sT0}")
    def pre_d():
        a(f"s_lshl_b32 s{sOff}, s{sU}, 13")
        a(f"s_lshl_b32 s{sT0}, s{sJ}, 7")
        a(f"s_add_u32 s{sOff}, s{sOff}, s{sT0}")
    stream("wo", 16, 4, rWO, [vO[0], vO[1], vO[0], vO[1]], S2_OFF, 8192, wflags, pre_o, wait=W2)
    a(f"s_mov_b32 m0, {S2_OFF + 16*1024}")
    pre_d()
    a(f"s_mov_b32 s{sCnt}, 0x7fff0000")
    for i in range(8):
        a(f"s_cmp_lt_u32 {i}, s{sC}")
        a(f"s_cselect_b32 s{sT0}, s{sOff}, s{sCnt}")
        a(f"buffer_load_dwordx4 v{vO[i & 1]}, s[{rWD}:{rWD+3}], s{sT0} offen {wflags} lds")
        a(f"s_add_u32 m0, m0, 1024")
        a(f"s_add_u32 s{sOff}, s{sOff}, 8192")
        if 176 + i + 1 + 1 - W2 <= 160:
            a(f"s_waitcnt vmcnt({W2-1})")
        if (i & 1) and 176 + i + 1 + 1 - W2 <= 160:
            a(f"""
            s_add_i32 s{sN}, s{sN}, 2
            s_max_i32 s{sLast}, s{sN}, s{sLast}
            v_mov_b32 v27, s{sLast}
            s_mov_b64 exec, 1
            ds_write_b32 v26, v27 offset:{PROG}
            s_mov_b64 exec, -1
            """)
    landed = NL + 1 - W2
    for m in [x for x in (128, 136, 144, 152) if x > landed]:
        a(f"s_waitcnt vmcnt({NL - m})")
        a(f"v_mov_b32 v27, {m}")
        a("s_mov_b64 exec, 1")
        a(f"ds_write_b32 v26, v27 offset:{PROG}")
        a("s_mov_b64 exec, -1")
    a(f"s_waitcnt vmcnt({NL - 160})")
    stamp(5)
    a("s_barrier")
    a("s_waitcnt vmcnt(0)")
    a("s_barrier")
    stamp(6)
    a("s_waitcnt lgkmcnt(0)")
    dump_stamps(27, 28, [(0, 1), (1, 2), (2, 3), (3, 4), (4, 5), (5, 6)])
    a("s_endpgm")

    role[0] = "compute"
    a.label("L_compute")
    if loaderonly:
        a("s_endpgm")
    R = Regs(1, 256)
    vL = R.alloc(); vN = R.alloc(); vKG = R.alloc(); vR4 = R.alloc(); vC = R.alloc()
    vFF = R.alloc(); vMisc = R.alloc(); vOne = R.alloc()
    vt0 = R.alloc(8, 4); vt = [vt0 + i for i in range(8)]
    vx0 = R.alloc(4, 4); vxt = [vx0 + i for i in range(4)]
    vTR = [R.alloc(), R.alloc()]
    vTRG = R.alloc(); vTRS = R.alloc()
    vKA = [R.alloc() for _ in range(4)]
    vXB = [R.alloc(4, 4), R.alloc(4, 4)]
    vJunk = R.alloc(4, 4)
    vGx = R.alloc(12, 4)
    rWS = 32
    sM1, sM3, sM4 = 36, 37, 38
    def spin_tail(label, tight=False):
        a(f"""
        s_sub_u32 s{sTMO}, s{sTMO}, 1
        s_cbranch_scc1 L_exit
        {"" if tight else f"s_sleep {sleep}"}
        s_branch {label}
        """)
    def wait_lds(off, n, label):
        a(f"""
        {label}:
        ds_read_b32 v{vt[7]}, v{vMisc} offset:{off}
        s_waitcnt lgkmcnt(0)
        v_readfirstlane_b32 s{sT0}, v{vt[7]}
        s_cmp_ge_u32 s{sT0}, {n}
        s_cbranch_scc1 {label}_ok
        """)
        spin_tail(label)
        a.label(f"{label}_ok")
    def wait_prog(n, label, tight=False):
        a(f"""
        s_cmp_ge_u32 s{sPG}, {n}
        s_cbranch_scc1 {label}_ok
        {label}:
        ds_read_b32 v{vt[7]}, v{vMisc} offset:{PROG}
        s_waitcnt lgkmcnt(0)
        v_readfirstlane_b32 s{sPG}, v{vt[7]}
        s_cmp_ge_u32 s{sPG}, {n}
        s_cbranch_scc1 {label}_ok
        """)
        spin_tail(label, tight)
        a.label(f"{label}_ok")
    def signal(off):
        a(f"""
        s_mov_b64 exec, 1
        ds_add_u32 v{vMisc}, v{vOne} offset:{off}
        s_mov_b64 exec, -1
        """)
    def tag(v):
        a(f"v_bfi_b32 v{v}, v{vFF}, s{sTAG}, v{v}")
    def exec_n_lt2():
        a("s_mov_b32 exec_lo, 0x00030003")
        a("s_mov_b32 exec_hi, 0x00030003")
    def xrow(regs, op="v_add_f32"):
        for ins in ("v_permlane16_swap_b32", "v_permlane32_swap_b32"):
            for k0 in range(0, len(regs), 4):
                grp = regs[k0:k0+4]
                for r, t in zip(grp, vxt):
                    a(f"v_mov_b32 v{t}, v{r}")
                if len(grp) < 2:
                    a("s_nop 1")
                elif len(grp) < 3:
                    a("s_nop 0")
                for r, t in zip(grp, vxt):
                    a(f"{ins} v{t}, v{r}")
                for r, t in zip(grp, vxt):
                    a(f"{op} v{r}, v{t}, v{r}")
    vBad = R.alloc()
    def check_tags(regs):
        for r in regs:
            a(f"v_xor_b32 v{r}, s{sTAG}, v{r}")
        a(f"v_or_b32 v{vBad}, v{regs[0]}, v{regs[1]}")
        for k in range(2, len(regs), 2):
            a(f"v_or3_b32 v{vBad}, v{vBad}, v{regs[k]}, v{regs[k+1]}")
        a(f"v_and_b32 v{vBad}, v{vFF}, v{vBad}")
        a(f"v_cmp_ne_u32 vcc, 0, v{vBad}")
    def retry(label_again, label_ok):
        a(f"""
        s_cbranch_vccz {label_ok}
        s_sub_u32 s{sTMO}, s{sTMO}, 1
        s_cbranch_scc1 L_exit
        s_branch {label_again}
        {label_ok}:
        """)

    a(f"""
    v_mov_b32 v{vL}, v0
    s_sub_u32 s{sCW}, s{sWAVE}, 1
    s_lshr_b32 s{sB}, s{sJ}, 2
    s_load_dword s{sE1}, s[{pWS}:{pWS+1}], 0
    v_and_b32 v{vN}, 15, v{vL}
    v_lshrrev_b32 v{vKG}, 4, v{vL}
    v_and_b32 v{vt[0]}, 1, v{vN}
    v_lshlrev_b32 v{vt[0]}, 10, v{vt[0]}
    v_lshl_add_u32 v{vt[0]}, v{vKG}, 4, v{vt[0]}
    s_lshl_b32 s{sT0}, s{sJ}, 7
    v_add_u32 v{vt[0]}, s{sT0}, v{vt[0]}
    v_lshlrev_b32 v{vt[1]}, 4, v{vL}
    global_load_dwordx4 {vr(vXB[0],4)}, v{vt[0]}, s[{pX}:{pX+1}] {xfl}
    global_load_dwordx4 {vr(vXB[1],4)}, v{vt[0]}, s[{pX}:{pX+1}] offset:64 {xfl}
    s_mov_b32 s{sPG}, 0
    v_lshrrev_b32 v{vR4}, 2, v{vN}
    v_and_b32 v{vC}, 3, v{vN}
    v_mov_b32 v{vFF}, 0xff
    v_mov_b32 v{vMisc}, {MISC}
    v_mov_b32 v{vOne}, 1
    s_cmp_lg_u32 s{sCW}, 3
    s_cbranch_scc1 L_nopf
    global_load_dwordx4 {vr(vGx,4)}, v{vt[1]}, s[{pX}:{pX+1}] {xfl}
    global_load_dwordx4 {vr(vGx+4,4)}, v{vt[1]}, s[{pX}:{pX+1}] offset:1024 {xfl}
    global_load_dwordx4 {vr(vGx+8,4)}, v{vt[1]}, s[{pGW}:{pGW+1}] {xfl}
    """)
    if prefetch_code:
        a(f"""
        s_getpc_b64 s[{sT2}:{sT3}]
        L_pc:
        s_lshr_b32 s{sT0}, s2, 3
        s_and_b32 s{sT0}, s{sT0}, 15
        s_lshl_b32 s{sT0}, s{sT0}, 10
        s_sub_u32 s{sT2}, s{sT2}, L_pc-{KN}
        s_subb_u32 s{sT3}, s{sT3}, 0
        s_min_u32 s{sT0}, s{sT0}, L_codeend-{KN}-1024
        s_add_u32 s{sT2}, s{sT2}, s{sT0}
        s_addc_u32 s{sT3}, s{sT3}, 0
        global_load_dwordx4 {vr(vJunk,4)}, v{vt[1]}, s[{sT2}:{sT3}] {pffl}
        """)
    a.label("L_nopf")
    a(f"""
    s_mov_b32 s{rWS}, s{pWS}
    s_mov_b32 s{rWS+1}, s{pWS+1}
    s_mov_b32 s{rWS+2}, {WS_SIZE}
    s_mov_b32 s{rWS+3}, 0x20000
    s_lshl_b32 s{sT0}, s{sH}, 3
    s_add_u32 s{sT0}, s{sT0}, s{sJ}
    s_mul_i32 s{sM1}, s{sT0}, 2048
    s_add_u32 s{sM1}, s{sM1}, {WS_M1}
    s_mul_i32 s{sM3}, s{sT0}, 640
    s_add_u32 s{sM3}, s{sM3}, {WS_M3}
    s_lshl_b32 s{sM4}, s{sJ}, 14
    s_lshl_b32 s{sT0}, s{sH}, 9
    s_add_u32 s{sM4}, s{sM4}, s{sT0}
    s_add_u32 s{sM4}, s{sM4}, {WS_M4}
    v_lshl_add_u32 v{vt[0]}, v{vKG}, 3, v{vR4}          ; 8kg + r4
    v_and_b32 v{vt[1]}, 1, v{vKG}
    v_lshl_or_b32 v{vt[2]}, v{vt[1]}, 2, v{vR4}         ; f = r4 | (kg&1)<<2
    v_lshlrev_b32 v{vt[3]}, 8, v{vt[0]}
    v_lshl_add_u32 v{vt[3]}, v{vC}, 3, v{vt[3]}
    v_add_u32 v{vt[3]}, {V_OFF}, v{vt[3]}
    s_lshl_b32 s{sT0}, s{sCW}, 1
    v_xor_b32 v{vTR[0]}, s{sT0}, v{vt[2]}
    v_lshl_add_u32 v{vTR[0]}, v{vTR[0]}, 5, v{vt[3]}
    s_add_u32 s{sT0}, s{sT0}, 1
    v_xor_b32 v{vTR[1]}, s{sT0}, v{vt[2]}
    v_lshl_add_u32 v{vTR[1]}, v{vTR[1]}, 5, v{vt[3]}
    v_lshrrev_b32 v{vt[2]}, 1, v{vR4}
    v_lshl_or_b32 v{vt[3]}, v{vt[1]}, 1, v{vt[2]}
    v_xor_b32 v{vt[3]}, s{sCW}, v{vt[3]}
    v_lshlrev_b32 v{vt[3]}, 5, v{vt[3]}
    v_lshl_add_u32 v{vt[3]}, v{vt[0]}, 7, v{vt[3]}
    v_lshl_add_u32 v{vt[3]}, v{vC}, 3, v{vt[3]}
    v_add_u32 v{vTRG}, {WG_OFF}, v{vt[3]}
    v_add_u32 v{vTRS}, {S2_OFF}, v{vt[3]}
    s_lshl_b32 s{sT0}, s{sCW}, 14
    v_lshlrev_b32 v{vt[0]}, 8, v{vN}
    v_add_u32 v{vt[0]}, s{sT0}, v{vt[0]}
    v_xor_b32 v{vt[1]}, v{vKG}, v{vN}
    """)
    for t in range(4):
        a(f"v_xor_b32 v{vt[2]}, {4*t}, v{vt[1]}")
        a(f"v_lshl_add_u32 v{vKA[t]}, v{vt[2]}, 4, v{vt[0]}")
    stamp(1)

    vA = R.alloc(16, 4)
    vAcc = R.alloc(8, 4)
    vM1 = R.alloc()
    a(f"""
    v_lshlrev_b32 v{vM1}, 6, v{vN}
    v_lshl_add_u32 v{vM1}, v{vKG}, 4, v{vM1}
    """)
    wait_prog(16, "L_w16")
    stamp(2)
    for ti in range(2):
        for u in range(2):
            f = vA + (ti*2 + u) * 4
            a(f"ds_read_b64_tr_b16 {vr(f,2)}, v{vTR[ti]} offset:{WQ_OFF - V_OFF + u*8192}")
            a(f"ds_read_b64_tr_b16 {vr(f+2,2)}, v{vTR[ti]} offset:{WQ_OFF - V_OFF + u*8192+1024}")
    a(f"""
    s_add_u32 s{sE1}, s{sE1}, 1
    s_and_b32 s{sTAG}, s{sE1}, 0xff
    s_waitcnt vmcnt(0) lgkmcnt(0)
    """)
    for u in range(2):
        for ti in range(2):
            f = vA + (ti*2 + u) * 4
            c = "0" if u == 0 else vr(vAcc + 4*ti, 4)
            a(f"v_mfma_f32_16x16x32_bf16 {vr(vAcc+4*ti,4)}, {vr(f,4)}, {vr(vXB[u],4)}, {c}")
    a(f"""
    s_lshl_b32 s{sT0}, s{sCW}, 8
    s_add_u32 s{sT0}, s{sT0}, s{sM1}
    s_nop 6
    """)
    for i in range(8):
        tag(vAcc + i)
    exec_n_lt2()
    a(f"s_add_u32 s{sT1}, s{sT0}, {WS_M1L - WS_M1}")
    a(f"buffer_store_dwordx4 {vr(vAcc,4)}, v{vM1}, s[{rWS}:{rWS+3}], s{sT1} offen")
    a(f"buffer_store_dwordx4 {vr(vAcc+4,4)}, v{vM1}, s[{rWS}:{rWS+3}], s{sT1} offen offset:128")
    sMODE, sDL1, sDL3, sIDW, sXCC = 60, 69, 70, 100, 101
    a(f"""
    s_getreg_b32 s{sXCC}, hwreg(HW_REG_XCC_ID)
    s_add_u32 s{sIDW}, s{sE1}, 0x5bd1e995
    s_cmp_lg_u32 s{sCW}, 0
    s_cbranch_scc1 L_noid
    s_lshl_b32 s{sT1}, s{sH}, 7
    s_lshl_b32 s{sT2}, s{sJ}, 3
    s_add_u32 s{sT1}, s{sT1}, s{sT2}
    s_add_u32 s{sT1}, s{sT1}, {WS_ID}
    v_mov_b32 v{vt[2]}, s{sIDW}
    v_mov_b32 v{vt[3]}, s{sXCC}
    v_mov_b32 v{vt[0]}, 0
    s_mov_b64 exec, 1
    buffer_store_dwordx2 v[{vt[2]}:{vt[3]}], v{vt[0]}, s[{rWS}:{rWS+3}], s{sT1} offen
    L_noid:
    s_mov_b64 exec, -1
    """)
    stamp(3)
    vAcc2 = R.alloc(8, 4)
    a(f"""
    s_cmp_eq_u32 s{sCW}, 3
    s_cbranch_scc1 L_gate
    """)
    wait_prog(32, "L_w32")
    for mi_, off in enumerate((0, 8192)):
        for u in range(2):
            f = vA + (mi_*2 + u) * 4
            a(f"ds_read_b64_tr_b16 {vr(f,2)}, v{vTRG} offset:{off + u*4096}")
            a(f"ds_read_b64_tr_b16 {vr(f+2,2)}, v{vTRG} offset:{off + u*4096 + 512}")
    a("s_waitcnt lgkmcnt(0)")
    for u in range(2):
        for mi_ in range(2):
            f = vA + (mi_*2 + u) * 4
            c = "0" if u == 0 else vr(vAcc2 + 4*mi_, 4)
            a(f"v_mfma_f32_16x16x32_bf16 {vr(vAcc2+4*mi_,4)}, {vr(f,4)}, {vr(vXB[u],4)}, {c}")
    signal(S1DONE)
    a(f"""
    s_lshl_b32 s{sT0}, s{sCW}, 7
    s_add_u32 s{sT0}, s{sT0}, s{sM1}
    s_nop 5
    """)
    for i in range(8):
        tag(vAcc2 + i)
    exec_n_lt2()
    a(f"s_add_u32 s{sT1}, s{sT0}, {WS_M1L - WS_M1}")
    a(f"buffer_store_dwordx4 {vr(vAcc2,4)}, v{vM1}, s[{rWS}:{rWS+3}], s{sT1} offen offset:1024")
    a(f"buffer_store_dwordx4 {vr(vAcc2+4,4)}, v{vM1}, s[{rWS}:{rWS+3}], s{sT1} offen offset:1536")
    a("s_mov_b64 exec, -1")
    a("s_branch L_p3")
    a.label("L_gate")
    signal(S1DONE)
    gx0, gx1, gw = vGx, vGx + 4, vGx + 8
    z = [vt[2], vt[3]]
    a(f"v_mov_b32 v{z[0]}, 0")
    a(f"v_mov_b32 v{z[1]}, 0")
    for i in range(4):
        a(f"v_lshlrev_b32 v{vt[4]}, 16, v{gw+i}")
        a(f"v_and_b32 v{vt[5]}, 0xffff0000, v{gw+i}")
        for bi, gx in enumerate((gx0, gx1)):
            a(f"v_lshlrev_b32 v{vt[6]}, 16, v{gx+i}")
            a(f"v_fmac_f32 v{z[bi]}, v{vt[6]}, v{vt[4]}")
            a(f"v_and_b32 v{vt[6]}, 0xffff0000, v{gx+i}")
            a(f"v_fmac_f32 v{z[bi]}, v{vt[6]}, v{vt[5]}")
    for rot in (8, 4, 2, 1):
        a("s_nop 1")
        for bi in range(2):
            a(f"v_add_f32_dpp v{z[bi]}, v{z[bi]}, v{z[bi]} row_ror:{rot} row_mask:0xf bank_mask:0xf")
    xrow(z)
    a(f"""
    v_mul_f32 v{z[0]}, {hex(f2u(-1.4426950408889634))}, v{z[0]}
    v_mul_f32 v{z[1]}, {hex(f2u(-1.4426950408889634))}, v{z[1]}
    v_exp_f32 v{z[0]}, v{z[0]}
    v_exp_f32 v{z[1]}, v{z[1]}
    s_nop 0
    v_add_f32 v{z[0]}, 1.0, v{z[0]}
    v_add_f32 v{z[1]}, 1.0, v{z[1]}
    v_rcp_f32 v{z[0]}, v{z[0]}
    v_rcp_f32 v{z[1]}, v{z[1]}
    s_nop 0
    s_mov_b64 exec, 1
    ds_write_b64 v{vMisc}, v[{z[0]}:{z[1]}] offset:{GV}
    s_mov_b64 exec, -1
    """)
    a.label("L_p3")
    stamp(4)
    if exit_after == "p2":
        a("s_endpgm")
    R.release(vGx, 12)
    vG4 = R.alloc(16, 4)
    vId = R.alloc(2, 2)
    def gstores():
        lab = a.newlabel("L_gs")
        a(f"""
        s_lshl_b32 s{sT1}, s{sCW}, 8
        s_add_u32 s{sT1}, s{sT1}, s{sM1}
        s_lshl_b32 s{sT2}, s{sCW}, 7
        s_add_u32 s{sT2}, s{sT2}, s{sM1}
        """)
        exec_n_lt2()
        a(f"""
        buffer_store_dwordx4 {vr(vAcc,4)}, v{vM1}, s[{rWS}:{rWS+3}], s{sT1} offen sc1
        buffer_store_dwordx4 {vr(vAcc+4,4)}, v{vM1}, s[{rWS}:{rWS+3}], s{sT1} offen offset:128 sc1
        s_cmp_eq_u32 s{sCW}, 3
        s_cbranch_scc1 {lab}
        buffer_store_dwordx4 {vr(vAcc2,4)}, v{vM1}, s[{rWS}:{rWS+3}], s{sT2} offen offset:1024 sc1
        buffer_store_dwordx4 {vr(vAcc2+4,4)}, v{vM1}, s[{rWS}:{rWS+3}], s{sT2} offen offset:1536 sc1
        {lab}:
        s_mov_b64 exec, -1
        """)
    def needg():
        a(f"""
        s_mov_b64 exec, 1
        ds_write_b32 v{vMisc}, v{vOne} offset:{NEEDG}
        s_mov_b64 exec, -1
        """)
        gstores()
        a(f"""
        s_lshl_b32 s{sT1}, s{sH}, 7
        s_lshl_b32 s{sT2}, s{sJ}, 3
        s_add_u32 s{sT1}, s{sT1}, s{sT2}
        s_add_u32 s{sT1}, s{sT1}, {WS_IDG}
        v_mov_b32 v{vId}, s{sIDW}
        v_mov_b32 v{vId+1}, s{sXCC}
        v_mov_b32 v{vt[4]}, 0
        s_mov_b64 exec, 1
        buffer_store_dwordx2 {vr(vId,2)}, v{vt[4]}, s[{rWS}:{rWS+3}], s{sT1} offen sc1
        s_mov_b64 exec, -1
        s_mov_b32 s46, 1
        """)
    def attempt(idbase, delta, ok_label):
        a(f"buffer_load_dwordx2 {vr(vId,2)}, v{vt[3]}, s[{rWS}:{rWS+3}], s{idbase} offen sc1")
        a(f"s_add_u32 s{sT1}, s{sT0}, {delta}")
        for i in range(4):
            a(f"buffer_load_dwordx4 {vr(vG4+4*i,4)}, v{vt[1]}, s[{rWS}:{rWS+3}], s{sT1} offen sc1")
            if i < 3:
                a(f"s_add_u32 s{sT1}, s{sT1}, 4096")
        a("s_waitcnt vmcnt(0)")
        check_tags([vG4 + i for i in range(16)])
        a(f"""
        s_mov_b64 s[44:45], vcc
        v_cmp_ne_u32 vcc, s{sIDW}, v{vId}
        s_or_b64 s[44:45], s[44:45], vcc
        s_cmp_eq_u64 s[44:45], 0
        s_cbranch_scc1 {ok_label}
        """)
    a(f"""
    s_cmp_lg_u32 s{sCW}, 0
    s_cbranch_scc1 L_waitm
    s_mul_i32 s{sT0}, s{sH}, {8*2048}
    s_lshl_b32 s{sT1}, s{sB}, 6
    s_add_u32 s{sT0}, s{sT0}, s{sT1}
    s_add_u32 s{sT0}, s{sT0}, {WS_M1}
    v_lshrrev_b32 v{vt[1]}, 5, v{vL}
    v_lshlrev_b32 v{vt[1]}, 11, v{vt[1]}
    v_and_b32 v{vt[2]}, 31, v{vL}
    v_lshrrev_b32 v{vt[4]}, 2, v{vt[2]}
    v_lshl_add_u32 v{vt[1]}, v{vt[4]}, 7, v{vt[1]}
    v_and_b32 v{vt[4]}, 3, v{vt[2]}
    v_lshl_add_u32 v{vt[1]}, v{vt[4]}, 4, v{vt[1]}
    v_and_b32 v{vt[3]}, 7, v{vL}
    v_lshlrev_b32 v{vt[3]}, 3, v{vt[3]}
    s_lshl_b32 s42, s{sH}, 7
    s_add_u32 s41, s42, {WS_IDG}
    s_add_u32 s42, s42, {WS_ID}
    s_mov_b32 s43, {ntry}
    s_mov_b32 s46, 0
    """)
    if qdelay:
        wait_prog(qdelay, "L_wqd")
    a("L_ql:")
    if not skipl:
        attempt(42, WS_M1L - WS_M1, "L_have")
    a(f"""
    {"s_add_u32 s71, s71, 1" if (stamps and qcount) else ""}
    s_cmp_lg_u32 s46, 0
    s_cbranch_scc1 L_tryg
    s_sub_u32 s43, s43, 1
    s_cmp_lg_u32 s43, 0
    s_cbranch_scc1 L_ql
    """)
    needg()
    a.label("L_tryg")
    attempt(41, 0, "L_have")
    a(f"""
    s_sub_u32 s{sTMO}, s{sTMO}, 1
    s_cbranch_scc1 L_exit
    s_branch L_ql
    L_have:
    v_cmp_ne_u32 vcc, s{sXCC}, v{vId+1}
    s_mov_b32 s47, 1
    s_cbranch_vccz L_idsame
    s_mov_b32 s47, 2
    L_idsame:
    {"s_mov_b32 s47, 2" if forceglobal else ""}
    s_cmp_eq_u32 s47, 1
    s_cbranch_scc1 L_setmode
    s_cmp_lg_u32 s46, 0
    s_cbranch_scc1 L_setmode
    """)
    needg()
    a(f"""
    L_setmode:
    v_mov_b32 v{vt[4]}, s47
    s_mov_b64 exec, 1
    ds_write_b32 v{vMisc}, v{vt[4]} offset:{FMODE}
    s_mov_b64 exec, -1
    """)
    stamp(5)
    for e in range(4):
        a(f"v_add_f32 v{vG4+e}, v{vG4+e}, v{vG4+4+e}")
        a(f"v_add_f32 v{vG4+8+e}, v{vG4+8+e}, v{vG4+12+e}")
    for e in range(4):
        a(f"v_add_f32 v{vG4+e}, v{vG4+e}, v{vG4+8+e}")
    for e in range(4):
        a(f"v_mov_b32 v{vG4+4+e}, v{vG4+e}")
    for e in range(4):
        a(f"v_permlane32_swap_b32 v{vG4+4+e}, v{vG4+e}")
    for e in range(4):
        a(f"v_add_f32 v{vG4+e}, v{vG4+e}, v{vG4+4+e}")
    a(f"""
    v_cvt_pk_bf16_f32 v{vG4+4}, v{vG4}, v{vG4+1}
    v_cvt_pk_bf16_f32 v{vG4+5}, v{vG4+2}, v{vG4+3}
    v_lshl_add_u32 v{vt[2]}, v{vt[2]}, 3, v{vMisc}
    s_mov_b32 exec_hi, 0
    ds_write_b64 v{vt[2]}, {vr(vG4+4,2)} offset:{QB}
    s_mov_b64 exec, 1
    ds_write_b32 v{vMisc}, v{vOne} offset:{QRDY}
    s_mov_b64 exec, -1
    """)
    a("s_branch L_waitq")
    a(f"""
    L_waitm:
    s_mov_b32 s46, 0
    L_wm:
    ds_read_b32 v{vt[6]}, v{vMisc} offset:{QRDY}
    ds_read_b32 v{vt[7]}, v{vMisc} offset:{NEEDG}
    s_waitcnt lgkmcnt(0)
    v_readfirstlane_b32 s47, v{vt[6]}
    v_readfirstlane_b32 s{sT0}, v{vt[7]}
    s_andn2_b32 s{sT0}, s{sT0}, s46
    s_cbranch_scc0 L_wm_nog
    """)
    gstores()
    a(f"""
    s_mov_b32 s46, 1
    L_wm_nog:
    s_cmp_lg_u32 s47, 0
    s_cbranch_scc1 L_qrdy
    """)
    spin_tail("L_wm")
    a.label("L_waitq")
    a.label("L_qrdy")
    a(f"""
    ds_read_b32 v{vt[7]}, v{vMisc} offset:{FMODE}
    s_waitcnt lgkmcnt(0)
    v_readfirstlane_b32 s{sMODE}, v{vt[7]}
    s_cmp_eq_u32 s{sMODE}, 1
    s_cselect_b32 s{sDL1}, {WS_M1L - WS_M1}, 0
    s_cselect_b32 s{sDL3}, {WS_M3L - WS_M3}, 0
    """)
    stamp(6)
    if exit_after == "q":
        a("s_endpgm")
    vFoff = R.alloc()
    vF4 = R.alloc(16, 4)
    a(f"""
    v_lshlrev_b32 v{vFoff}, 11, v{vKG}
    v_lshl_add_u32 v{vFoff}, v{vR4}, 7, v{vFoff}
    v_lshl_add_u32 v{vFoff}, v{vC}, 4, v{vFoff}
    s_sub_u32 s{sT0}, s{sCW}, 1
    s_and_b32 s{sT1}, s{sT0}, 1
    s_lshl_b32 s{sT1}, s{sT1}, 6
    s_mul_i32 s39, s{sH}, {8*2048}
    s_add_u32 s39, s39, s{sT1}
    s_add_u32 s39, s39, {WS_M1 + 1024}
    s_add_u32 s39, s39, s{sDL1}
    s_cmp_gt_u32 s{sT0}, 1
    s_cbranch_scc1 L_noffn1
    """)
    def ffn_loads():
        a(f"""
        v_cmp_gt_u32 vcc, 12, v{vN}
        s_and_b64 exec, exec, vcc
        s_add_u32 s{sT1}, s39, {4*2048}
        buffer_load_dwordx4 {vr(vF4,4)}, v{vFoff}, s[{rWS}:{rWS+3}], s39 offen sc1
        buffer_load_dwordx4 {vr(vF4+4,4)}, v{vFoff}, s[{rWS}:{rWS+3}], s{sT1} offen sc1
        buffer_load_dwordx4 {vr(vF4+8,4)}, v{vFoff}, s[{rWS}:{rWS+3}], s39 offen offset:512 sc1
        buffer_load_dwordx4 {vr(vF4+12,4)}, v{vFoff}, s[{rWS}:{rWS+3}], s{sT1} offen offset:512 sc1
        s_mov_b64 exec, -1
        """)
    ffn_loads()
    a.label("L_noffn1")
    if exit_after == "ffn":
        a("s_waitcnt vmcnt(0)")
        a("s_endpgm")
    vQ = R.alloc(16, 4)
    vKf = R.alloc(64, 4)
    vS = R.alloc(16, 4)
    a(f"""
    v_lshlrev_b32 v{vt[0]}, 4, v{vKG}
    v_add_u32 v{vt[0]}, v{vMisc}, v{vt[0]}
    """)
    for t in range(4):
        a(f"ds_read_b128 {vr(vQ+4*t,4)}, v{vt[0]} offset:{QB + 64*t}")
    a(f"s_lshl_b32 s{sT1}, s{sCW}, 4")
    a(f"s_add_u32 s{sT1}, s{sT1}, 48")
    wait_prog(f"s{sT1}", "L_wk")
    for T in range(4):
        for t in range(4):
            a(f"ds_read_b128 {vr(vKf + 16*T + 4*t, 4)}, v{vKA[t]} offset:{T*4096}")
    for T in range(4):
        a(f"s_waitcnt lgkmcnt({4*(3-T)})")
        for t in range(4):
            c = "0" if t == 0 else vr(vS + 4*T, 4)
            a(f"v_mfma_f32_16x16x32_bf16 {vr(vS+4*T,4)}, {vr(vKf+16*T+4*t,4)}, {vr(vQ+4*t,4)}, {c}")
    vSt = R.alloc(2, 2)
    vMc, vSum = vSt, vSt + 1
    a(f"""
    s_mov_b32 s{sT1}, {hex(f2u(CEXP))}
    s_nop 3
    v_max3_f32 v{vMc}, v{vS}, v{vS+1}, v{vS+2}
    """)
    for k in range(3, 11, 2):
        a(f"v_max3_f32 v{vMc}, v{vMc}, v{vS+k}, v{vS+k+1}")
    a(f"v_max_f32 v{vMc}, v{vMc}, v{vS+11}")
    a("s_nop 1")
    a(f"v_max3_f32 v{vMc}, v{vMc}, v{vS+12}, v{vS+13}")
    a(f"v_max3_f32 v{vMc}, v{vMc}, v{vS+14}, v{vS+15}")
    xrow([vMc], "v_max_f32")
    a(f"""
    v_mul_f32 v{vMc}, s{sT1}, v{vMc}
    v_and_b32 v{vMc}, 0xffffff00, v{vMc}
    """)
    for k in range(16):
        a(f"v_fma_f32 v{vS+k}, v{vS+k}, s{sT1}, -v{vMc}")
    for k in range(16):
        a(f"v_exp_f32 v{vS+k}, v{vS+k}")
    for T in range(4):
        a(f"v_cvt_pk_bf16_f32 v{vKf+2*T}, v{vS+4*T}, v{vS+4*T+1}")
        a(f"v_cvt_pk_bf16_f32 v{vKf+2*T+1}, v{vS+4*T+2}, v{vS+4*T+3}")
    a(f"""
    s_lshl_b32 s{sT0}, s{sCW}, 7
    v_lshl_add_u32 v{vt[1]}, v{vKG}, 3, v{vMisc}
    v_add_u32 v{vt[1]}, s{sT0}, v{vt[1]}
    s_mov_b32 exec_lo, 0x00010001
    s_mov_b32 exec_hi, 0x00010001
    """)
    for T in range(4):
        a(f"ds_write_b64 v{vt[1]}, {vr(vKf+2*T,2)} offset:{PB + 32*T}")
    a("s_mov_b64 exec, -1")
    for k in range(0, 16, 2):
        a(f"v_add_f32 v{vS+k}, v{vS+k}, v{vS+k+1}")
    for k in range(0, 16, 4):
        a(f"v_add_f32 v{vS+k}, v{vS+k}, v{vS+k+2}")
    a(f"v_add_f32 v{vS}, v{vS}, v{vS+4}")
    a(f"v_add_f32 v{vS+8}, v{vS+8}, v{vS+12}")
    a(f"v_add_f32 v{vSum}, v{vS}, v{vS+8}")
    xrow([vSum])
    a(f"""
    s_lshl_b32 s{sT0}, s{sCW}, 3
    v_add_u32 v{vt[0]}, s{sT0}, v{vMisc}
    s_mov_b64 exec, 1
    ds_write_b64 v{vt[0]}, {vr(vSt,2)} offset:{STATW}
    ds_add_u32 v{vMisc}, v{vOne} offset:{BAR}
    s_mov_b64 exec, -1
    """)
    wait_lds(BAR, 4, "L_bar1")
    stamp(7)
    if exit_after == "bar":
        a("s_waitcnt vmcnt(0)")
        a("s_endpgm")
    R.release(vKf, 64); R.release(vQ, 16); R.release(vS, 16)
    vP = R.alloc(32, 4)
    vFw = R.alloc(8, 4)
    a(f"""
    v_lshl_add_u32 v{vt[0]}, v{vKG}, 4, v{vMisc}
    ds_read_b128 {vr(vFw,4)}, v{vMisc} offset:{STATW}
    ds_read_b128 {vr(vFw+4,4)}, v{vMisc} offset:{STATW+16}
    """)
    for u in range(8):
        a(f"ds_read_b128 {vr(vP+4*u,4)}, v{vt[0]} offset:{PB + 64*u}")
    a(f"""
    s_waitcnt lgkmcnt(8)
    v_max3_f32 v{vt[4]}, v{vFw}, v{vFw+2}, v{vFw+4}
    v_max_f32 v{vt[4]}, v{vt[4]}, v{vFw+6}
    """)
    for w in range(4):
        a(f"v_sub_f32 v{vFw+2*w}, v{vFw+2*w}, v{vt[4]}")
    for w in range(4):
        a(f"v_exp_f32 v{vFw+2*w}, v{vFw+2*w}")
    a(f"""
    s_cmp_lg_u32 s{sCW}, 0
    s_cbranch_scc1 L_nostat
    v_mul_f32 v{vt[5]}, v{vFw}, v{vFw+1}
    v_fmac_f32 v{vt[5]}, v{vFw+2}, v{vFw+3}
    v_fmac_f32 v{vt[5]}, v{vFw+4}, v{vFw+5}
    v_fmac_f32 v{vt[5]}, v{vFw+6}, v{vFw+7}
    """)
    tag(vt[4])
    tag(vt[5])
    a(f"""
    v_mov_b32 v{vt[6]}, v{vt[4]}
    v_mov_b32 v{vt[7]}, v{vt[5]}
    v_lshlrev_b32 v{vt[0]}, 4, v{vL}
    s_mov_b64 exec, 0xff
    s_add_u32 s{sT0}, s{sM3}, {WS_M3L - WS_M3}
    buffer_store_dwordx4 v[{vt[4]}:{vt[7]}], v{vt[0]}, s[{rWS}:{rWS+3}], s{sT0} offen offset:512
    s_cmp_eq_u32 s{sMODE}, 1
    s_cbranch_scc1 L_g3s
    buffer_store_dwordx4 v[{vt[4]}:{vt[7]}], v{vt[0]}, s[{rWS}:{rWS+3}], s{sM3} offen offset:512 sc1
    L_g3s:
    s_mov_b64 exec, -1
    L_nostat:
    """)
    stamp(8)
    vO = R.alloc(32, 4)
    vVf = R.alloc(32, 4)
    def pv_batch(us, need, label):
        if need is None:
            a("s_barrier")
        else:
            wait_prog(need, label, tight=(need >= 152))
        for k, u in enumerate(us):
            f0 = vVf + 8*k
            for ti in range(2):
                a(f"ds_read_b64_tr_b16 {vr(f0+4*ti,2)}, v{vTR[ti]} offset:{u*8192}")
                a(f"ds_read_b64_tr_b16 {vr(f0+4*ti+2,2)}, v{vTR[ti]} offset:{u*8192+1024}")
        for k, u in enumerate(us):
            a(f"s_waitcnt lgkmcnt({4*(len(us)-1-k)})")
            f0 = vVf + 8*k
            w = u >> 1
            for ti in range(2):
                acc = vO + 8*w + 4*ti
                c = "0" if (u & 1) == 0 else vr(acc, 4)
                a(f"v_mfma_f32_16x16x32_bf16 {vr(acc,4)}, {vr(f0+4*ti,4)}, {vr(vP+4*u,4)}, {c}")
    pv_batch([0, 1, 2, 3], 128, "L_wvA")
    vM3 = R.alloc(); vX3 = R.alloc(); vSa = R.alloc(); vSg = R.alloc(2, 2); vSgG = R.alloc(2, 2)
    vWs = R.alloc(4, 4)
    sFB = 47
    def g3_base(delta):
        a(f"""
        s_and_b32 s{sT3}, s{sCW}, 1
        s_lshl_b32 s{sT3}, s{sT3}, 8
        s_add_u32 s41, s40, s{sT3}
        s_add_u32 s41, s41, {delta}
        s_add_u32 s42, s41, 640
        s_add_u32 s43, s41, 1280
        s_add_u32 s44, s41, 1920
        """)
    a(f"""
    v_and_b32 v{vt[0]}, 1, v{vN}
    v_lshlrev_b32 v{vt[1]}, 6, v{vt[0]}
    v_lshl_add_u32 v{vM3}, v{vKG}, 4, v{vt[1]}
    s_lshr_b32 s{sT1}, s{sCW}, 1
    s_lshl_b32 s{sT2}, s{sH}, 3
    s_lshl_b32 s{sT3}, s{sT1}, 2
    s_add_u32 s{sT2}, s{sT2}, s{sT3}
    s_mul_i32 s40, s{sT2}, 640
    s_add_u32 s40, s40, {WS_M3}
    v_lshlrev_b32 v{vX3}, 2, v{vL}
    v_and_b32 v{vSa}, 3, v{vL}
    v_mul_u32_u24 v{vSa}, 640, v{vSa}
    """)
    a(f"s_add_u32 s40, s40, s{sDL3}")
    g3_base(0)
    a(f"""
    s_sub_u32 s{sT0}, s{sCW}, 1
    s_cmp_gt_u32 s{sT0}, 1
    s_cbranch_scc1 L_noffn2
    s_waitcnt vmcnt(0)
    L_ffnchk:
    v_cmp_gt_u32 vcc, 12, v{vN}
    s_and_b64 exec, exec, vcc
    """)
    check_tags([vF4 + i for i in range(16)])
    a(f"""
    s_mov_b64 exec, -1
    s_cbranch_vccz L_ffn_ok
    s_sub_u32 s{sTMO}, s{sTMO}, 1
    s_cbranch_scc1 L_exit
    """)
    ffn_loads()
    a("s_waitcnt vmcnt(0)")
    a("s_branch L_ffnchk")
    a.label("L_ffn_ok")
    gsum = [vF4 + e for e in range(4)]; usum = [vF4 + 8 + e for e in range(4)]
    for e in range(4):
        a(f"v_add_f32 v{vF4+e}, v{vF4+e}, v{vF4+4+e}")
        a(f"v_add_f32 v{vF4+8+e}, v{vF4+8+e}, v{vF4+12+e}")
    xrow(gsum + usum)
    a(f"v_cmp_gt_u32 vcc, 12, v{vN}")
    for e in range(4):
        a(f"v_max_f32 v{gsum[e]}, 0, v{gsum[e]}")
        a(f"v_mul_f32 v{gsum[e]}, v{gsum[e]}, v{usum[e]}")
        a(f"v_cndmask_b32 v{gsum[e]}, 0, v{gsum[e]}, vcc")
    a(f"""
    v_cvt_pk_bf16_f32 v{vF4+4}, v{gsum[0]}, v{gsum[1]}
    v_cvt_pk_bf16_f32 v{vF4+5}, v{gsum[2]}, v{gsum[3]}
    s_lshl_b32 s{sT0}, s{sT0}, 7
    v_lshl_add_u32 v{vt[1]}, v{vN}, 3, v{vMisc}
    v_add_u32 v{vt[1]}, s{sT0}, v{vt[1]}
    s_mov_b64 exec, 0xffff
    ds_write_b64 v{vt[1]}, {vr(vF4+4,2)} offset:{HID}
    s_mov_b64 exec, -1
    L_noffn2:
    """)
    pv_batch([4, 5], 144, "L_wvB")
    a(f"buffer_load_dwordx2 {vr(vSg,2)}, v{vSa}, s[{rWS}:{rWS+3}], s40 offen offset:512 sc1")
    for i in range(8):
        a(f"v_mul_f32 v{vO+i}, v{vFw}, v{vO+i}")
    for i in range(8):
        a(f"v_fmac_f32 v{vO+i}, v{vFw+2}, v{vO+8+i}")
    pv_batch([6], 152, "L_wvC")
    for i in range(8):
        a(f"v_fmac_f32 v{vO+i}, v{vFw+4}, v{vO+16+i}")
    a(f"""
    v_cmp_eq_u32 vcc, 1, v{vt[0]}
    s_lshl_b32 s45, s{sCW}, 7
    s_add_u32 s45, s45, s{sM3}
    s_add_u32 s46, s45, {WS_M3L - WS_M3}
    """)
    for e in range(4):
        a(f"v_cndmask_b32 v{vO+e}, v{vO+e}, v{vO+4+e}, vcc")
    pv_batch([7], None, "L_wvD")
    a("s_nop 7")
    for e in range(4):
        a(f"v_cndmask_b32 v{vO+24+e}, v{vO+24+e}, v{vO+28+e}, vcc")
    for e in range(4):
        a(f"v_fmac_f32 v{vO+e}, v{vFw+6}, v{vO+24+e}")
    for e in range(4):
        tag(vO + e)
    exec_n_lt2()
    a(f"buffer_store_dwordx4 {vr(vO,4)}, v{vM3}, s[{rWS}:{rWS+3}], s46 offen")
    a(f"s_cmp_eq_u32 s{sMODE}, 1")
    a("s_cbranch_scc1 L_g3o")
    a(f"buffer_store_dwordx4 {vr(vO,4)}, v{vM3}, s[{rWS}:{rWS+3}], s45 offen sc1")
    a.label("L_g3o")
    a("s_mov_b64 exec, -1")
    stamp(9)
    R.release(vP, 32); R.release(vVf, 32); R.release(vFw, 8)
    vG3 = vG4
    vG3b = vG4 + 4
    def g3_loads(dst):
        for s_ in range(4):
            a(f"buffer_load_dword v{dst+s_}, v{vX3}, s[{rWS}:{rWS+3}], s{41+s_} offen sc1")
    a("s_waitcnt vmcnt(1)")
    a("L_sg:")
    check_tags([vSg, vSg + 1])
    a(f"""
    s_cbranch_vccz L_sg_ok
    s_sub_u32 s{sTMO}, s{sTMO}, 1
    s_cbranch_scc1 L_exit
    buffer_load_dwordx2 {vr(vSg,2)}, v{vSa}, s[{rWS}:{rWS+3}], s40 offen offset:512 sc1
    s_waitcnt vmcnt(0)
    s_branch L_sg
    L_sg_ok:
    v_mov_b32 v{vt[3]}, v{vSg}
    s_nop 1
    v_max_f32_dpp v{vt[3]}, v{vt[3]}, v{vt[3]} quad_perm:[1,0,3,2] row_mask:0xf bank_mask:0xf
    s_nop 1
    v_max_f32_dpp v{vt[3]}, v{vt[3]}, v{vt[3]} quad_perm:[2,3,0,1] row_mask:0xf bank_mask:0xf
    v_sub_f32 v{vt[3]}, v{vSg}, v{vt[3]}
    v_exp_f32 v{vt[3]}, v{vt[3]}
    s_nop 0
    v_mul_f32 v{vt[4]}, v{vt[3]}, v{vSg+1}
    s_nop 1
    v_add_f32_dpp v{vt[4]}, v{vt[4]}, v{vt[4]} quad_perm:[1,0,3,2] row_mask:0xf bank_mask:0xf
    s_nop 1
    v_add_f32_dpp v{vt[4]}, v{vt[4]}, v{vt[4]} quad_perm:[2,3,0,1] row_mask:0xf bank_mask:0xf
    v_rcp_f32 v{vt[4]}, v{vt[4]}
    s_nop 0
    v_mul_f32 v{vt[3]}, v{vt[3]}, v{vt[4]}
    s_nop 1
    """)
    for s_ in range(4):
        a(f"v_mov_b32_dpp v{vWs+s_}, v{vt[3]} quad_perm:[{s_},{s_},{s_},{s_}] row_mask:0xf bank_mask:0xf")
    vWf = R.alloc(16, 4); vDf = R.alloc(8, 4); vHf = R.alloc(8, 4)
    vYa = R.alloc(4, 4); vYf = R.alloc(4, 4); vGl = R.alloc()
    vAH = R.alloc(); vAG = R.alloc(); vAO = R.alloc(); vAW = R.alloc(); vM4 = R.alloc()
    a(f"""
    v_and_b32 v{vt[0]}, 1, v{vN}
    v_lshlrev_b32 v{vt[1]}, 7, v{vt[0]}
    v_add_u32 v{vt[1]}, v{vMisc}, v{vt[1]}
    v_lshl_add_u32 v{vAH}, v{vKG}, 4, v{vt[1]}
    v_lshl_add_u32 v{vAG}, v{vt[0]}, 2, v{vMisc}
    v_lshlrev_b32 v{vt[1]}, 8, v{vt[0]}
    v_lshl_add_u32 v{vt[1]}, v{vKG}, 4, v{vt[1]}
    v_add_u32 v{vAO}, v{vMisc}, v{vt[1]}
    v_lshlrev_b32 v{vt[1]}, 6, v{vt[0]}
    v_lshl_add_u32 v{vM4}, v{vKG}, 4, v{vt[1]}
    s_lshl_b32 s{sT0}, s{sCW}, 7
    v_lshl_add_u32 v{vAW}, v{vL}, 1, v{vMisc}
    v_add_u32 v{vAW}, s{sT0}, v{vAW}
    s_lshl_b32 s48, s{sCW}, 7
    s_add_u32 s48, s48, s{sM4}
    """)
    vFa = R.alloc(); vFo = R.alloc()
    a(f"""
    s_lshl_b32 s{sT0}, s{sJ}, 14
    s_lshl_b32 s{sT1}, s{sCW}, 7
    s_add_u32 s{sT0}, s{sT0}, s{sT1}
    s_add_u32 s50, s{sT0}, {WS_M4}
    s_add_u32 s51, s50, 4096
    s_add_u32 s52, s50, 8192
    s_add_u32 s53, s50, 12288
    v_lshrrev_b32 v{vFa}, 3, v{vL}
    v_lshlrev_b32 v{vFa}, 9, v{vFa}
    v_and_b32 v{vFo}, 7, v{vL}
    v_lshl_add_u32 v{vFa}, v{vFo}, 4, v{vFa}
    s_lshl_b32 s{sT0}, s{sJ}, 7
    s_lshl_b32 s{sT1}, s{sCW}, 5
    s_add_u32 s{sT0}, s{sT0}, s{sT1}
    v_lshrrev_b32 v{vt[3]}, 2, v{vFo}
    v_lshlrev_b32 v{vt[3]}, 10, v{vt[3]}
    v_and_b32 v{vFo}, 3, v{vFo}
    v_lshl_add_u32 v{vFo}, v{vFo}, 3, v{vt[3]}
    v_lshl_add_u32 v{vFo}, v{vKG}, 1, v{vFo}
    v_add_u32 v{vFo}, s{sT0}, v{vFo}
    """)
    g3_loads(vG3)
    a("s_barrier")
    for u in range(4):
        a(f"ds_read_b64_tr_b16 {vr(vWf+4*u,2)}, v{vTRS} offset:{u*4096}")
        a(f"ds_read_b64_tr_b16 {vr(vWf+4*u+2,2)}, v{vTRS} offset:{u*4096+512}")
    a(f"""
    ds_read_b64_tr_b16 {vr(vDf,2)}, v{vTRS} offset:{4*4096}
    ds_read_b64_tr_b16 {vr(vDf+2,2)}, v{vTRS} offset:{4*4096+512}
    ds_read_b64_tr_b16 {vr(vDf+4,2)}, v{vTRS} offset:{5*4096}
    ds_read_b64_tr_b16 {vr(vDf+6,2)}, v{vTRS} offset:{5*4096+512}
    """)
    g3_loads(vG3b)
    stamp(11)
    a(f"""
    L_g3:
    s_waitcnt vmcnt(4)
    """)
    check_tags([vG3 + i for i in range(4)])
    a(f"""
    s_cbranch_vccz L_g3_ok
    s_sub_u32 s{sTMO}, s{sTMO}, 1
    s_cbranch_scc1 L_exit
    """)
    if stamps and not qcount: a("s_add_u32 s71, s71, 1")
    g3_loads(vG3)
    a("s_waitcnt vmcnt(4)")
    check_tags([vG3b + i for i in range(4)])
    a("s_cbranch_vccz L_g3_okb")
    g3_loads(vG3b)
    vRes = R.alloc()
    def combine(src):
        a(f"v_mul_f32 v{vRes}, v{vWs}, v{src}")
        for k in range(1, 4):
            a(f"v_fmac_f32 v{vRes}, v{vWs+k}, v{src+k}")
    a("s_branch L_g3")
    a.label("L_g3_okb")
    combine(vG3b)
    a("s_branch L_g3_done")
    a.label("L_g3_ok")
    combine(vG3)
    a.label("L_g3_done")
    stamp(12)
    a(f"""
    v_cvt_pk_bf16_f32 v{vRes}, v{vRes}, v{vRes}
    ds_write_b16 v{vAW}, v{vRes} offset:{OB}
    ds_read_b128 {vr(vHf,4)}, v{vAH} offset:{HID}
    ds_read_b128 {vr(vHf+4,4)}, v{vAH} offset:{HID+64}
    ds_read_b32 v{vGl}, v{vAG} offset:{GV}
    s_waitcnt lgkmcnt(0)
    s_barrier
    """)
    vOf = R.alloc(16, 4)
    for u in range(4):
        a(f"ds_read_b128 {vr(vOf+4*u,4)}, v{vAO} offset:{OB + 64*u}")
    a(f"v_mfma_f32_16x16x32_bf16 {vr(vYf,4)}, {vr(vDf,4)}, {vr(vHf,4)}, 0")
    a(f"v_mfma_f32_16x16x32_bf16 {vr(vYf,4)}, {vr(vDf+4,4)}, {vr(vHf+4,4)}, {vr(vYf,4)}")
    a(f"v_sub_f32 v{vt[0]}, 1.0, v{vGl}")
    for u in range(4):
        a(f"s_waitcnt lgkmcnt({3-u})")
        c = "0" if u == 0 else vr(vYa, 4)
        a(f"v_mfma_f32_16x16x32_bf16 {vr(vYa,4)}, {vr(vWf+4*u,4)}, {vr(vOf+4*u,4)}, {c}")
    for e in range(4):
        a(f"v_mul_f32 v{vYf+e}, v{vt[0]}, v{vYf+e}")
    a("s_nop 3")
    for e in range(4):
        a(f"v_fma_f32 v{vYa+e}, v{vGl}, v{vYa+e}, v{vYf+e}")
    for e in range(4):
        tag(vYa + e)
    exec_n_lt2()
    a(f"buffer_store_dwordx4 {vr(vYa,4)}, v{vM4}, s[{rWS}:{rWS+3}], s48 offen sc1")
    a("s_mov_b64 exec, -1")
    vFin = R.alloc(4, 4)
    a(f"""
    s_lshl_b32 s{sT0}, s{sJ}, 2
    s_cmp_lg_u32 s{sT0}, s{sH}
    s_cbranch_scc1 L_done
    """)
    vG5 = vF4
    def g4_loads(dst):
        for i in range(4):
            a(f"buffer_load_dwordx4 {vr(dst+4*i,4)}, v{vFa}, s[{rWS}:{rWS+3}], s{50+i} offen sc1")
    if fin2:
        g4_loads(vG4)
        g4_loads(vG5)
        a("L_g4:")
        a("s_waitcnt vmcnt(4)")
        check_tags([vG4 + i for i in range(16)])
        a(f"""
        s_cbranch_vccz L_g4_ok
        s_sub_u32 s{sTMO}, s{sTMO}, 1
        s_cbranch_scc1 L_exit
        """)
        g4_loads(vG4)
        a("s_waitcnt vmcnt(4)")
        check_tags([vG5 + i for i in range(16)])
        a("s_cbranch_vccz L_g4_okb")
        g4_loads(vG5)
        a("s_branch L_g4")
        a("L_g4_okb:")
        for e in range(4):
            a(f"v_add_f32 v{vG5+e}, v{vG5+e}, v{vG5+4+e}")
            a(f"v_add_f32 v{vG5+8+e}, v{vG5+8+e}, v{vG5+12+e}")
        for e in range(4):
            a(f"v_add_f32 v{vFin+e}, v{vG5+e}, v{vG5+8+e}")
        a("s_branch L_g4_sum")
        a("L_g4_ok:")
    else:
        a("L_g4:")
        g4_loads(vG4)
        a("s_waitcnt vmcnt(0)")
        check_tags([vG4 + i for i in range(16)])
        retry("L_g4", "L_g4_ok")
    for e in range(4):
        a(f"v_add_f32 v{vG4+e}, v{vG4+e}, v{vG4+4+e}")
        a(f"v_add_f32 v{vG4+8+e}, v{vG4+8+e}, v{vG4+12+e}")
    for e in range(4):
        a(f"v_add_f32 v{vFin+e}, v{vG4+e}, v{vG4+8+e}")
    a("L_g4_sum:")
    a(f"""
    s_nop 0
    v_permlane32_swap_b32 v{vFin}, v{vFin+2}
    v_permlane32_swap_b32 v{vFin+1}, v{vFin+3}
    v_add_f32 v{vFin}, v{vFin}, v{vFin+2}
    v_add_f32 v{vFin+1}, v{vFin+1}, v{vFin+3}
    s_nop 1
    v_permlane16_swap_b32 v{vFin}, v{vFin+1}
    v_add_f32 v{vFin}, v{vFin}, v{vFin+1}
    s_nop 1
    v_add_f32_dpp v{vFin}, v{vFin}, v{vFin} row_ror:8 row_mask:0xf bank_mask:0xf
    v_cvt_pk_bf16_f32 v{vFin}, v{vFin}, v{vFin}
    s_mov_b32 exec_lo, 0x00ff00ff
    s_mov_b32 exec_hi, 0x00ff00ff
    global_store_short v{vFo}, v{vFin}, s[{pOUT}:{pOUT+1}]
    s_or_b32 s{sT0}, s{sJ}, s{sCW}
    s_cmp_lg_u32 s{sT0}, 0
    s_cbranch_scc1 L_done
    s_mov_b64 exec, 1
    v_mov_b32 v{vt[0]}, 0
    v_mov_b32 v{vt[1]}, s{sE1}
    global_store_dword v{vt[0]}, v{vt[1]}, s[{pWS}:{pWS+1}] sc1
    L_done:
    """)
    stamp(13)
    dump_stamps(vt[0], vt[1], [(6, 2), (7, 3), (8, 5), (9, 6), (10, 7), (11, 9), (12, 11), (13, 12), (14, 13)])
    a.label("L_exit")
    a("s_endpgm")
    a.label("L_codeend")
    nv = R.hi
    txt = (f"; @launch grid=(256,1,1) block=(320,1,1) lds={LDS_BYTES}\n" + HEADER_DOC + HEAD + kernel_begin(KN) + a.text()
           + kernel_desc(KN, nv, sgpr=102))
    return txt

if __name__ == "__main__":
    import argparse
    ap = argparse.ArgumentParser()
    ap.add_argument("-o", default="main.s"); ap.add_argument("--stamps", action="store_true")
    ap.add_argument("-W", type=int, default=24)
    ap.add_argument("--nopf", action="store_true")
    ap.add_argument("--qdelay", type=int, default=48)
    ap.add_argument("--qcount", action="store_true")
    ap.add_argument("--sleep", type=int, default=3)
    ap.add_argument("--skipl", action="store_true")
    ap.add_argument("--xfl", default=""); ap.add_argument("--pffl", default="")
    ap.add_argument("--fin1", action="store_true")
    ap.add_argument("--gfl", default=None); ap.add_argument("--wfl", default=None); ap.add_argument("--kvfl", default=None)
    ap.add_argument("--forceglobal", action="store_true")
    ap.add_argument("--ntry", type=int, default=3)
    ap.add_argument("--m1st", default="sc1"); ap.add_argument("--m1ld", default="sc1")
    ap.add_argument("--table", default="6,5,6,5,6,5,5,5")
    ap.add_argument("--exit", default=None)
    ap.add_argument("--loaderonly", action="store_true")
    ap.add_argument("--rot", type=int, default=17)
    ap.add_argument("--vsplit", type=int, default=0)
    ap.add_argument("--cset", default=None); ap.add_argument("--lset", default=None)
    ap.add_argument("--W2", type=int, default=None)
    ap.add_argument("--dbg", action="store_true")
    ap.add_argument("--nont", action="store_true")
    ap.add_argument("--noxcd", action="store_true")
    x = ap.parse_args()
    fl = "" if x.nont else "nt"
    open(x.o, "w").write(gen(W=x.W, W2=x.W2, qdelay=x.qdelay, qcount=x.qcount, sleep=x.sleep, skipl=x.skipl, xfl=x.xfl, pffl=x.pffl, fin2=not x.fin1, forceglobal=x.forceglobal, ntry=x.ntry, m1st=x.m1st, m1ld=x.m1ld, table=tuple(int(c) for c in x.table.split(',')), exit_after=x.exit, loaderonly=x.loaderonly, rot=x.rot, vsplit=x.vsplit, cset=None if x.cset is None else [int(i) for i in x.cset.split(',')], lset=None if x.lset is None else [int(i) for i in x.lset.split(',')], stamps=x.stamps or x.dbg, dbgstamps=x.dbg, prefetch_code=not x.nopf,
                             wflags=fl if x.wfl is None else x.wfl, gflags=fl if x.gfl is None else x.gfl, kvflags=fl if x.kvfl is None else x.kvfl, xcdmap=not x.noxcd))
```

```python
import sys, math, struct
from asmgen import *

K_OFF = 0
V_OFF = 65536
WQ_OFF = V_OFF + 32768
WG_OFF = V_OFF + 49152
WU_OFF = V_OFF + 57344
S2_OFF = 131072
MISC = 155648
PROG, S1DONE, BAR, QRDY = 0, 4, 8, 12
NEEDG, FMODE = 56, 60
STATW, GV = 16, 48
QB, HID, PB, OB = 64, 320, 576, 1088
LDS_BYTES = 157696
WS_ID = 0x8000
WS_IDG = 0x9000
WS_M1 = 0x10000
WS_M3 = 0x100000
WS_M4 = 0x140000
WS_M3L = 0x180000
WS_M1L = 0x280000
WS_STAMP = 0x200000
WS_SIZE = 0x400000
CEXP = 1.4426950408889634 / math.sqrt(128.0)


HEADER_DOC = """; Fused decode step: sigmoid-gated mix of sliding-window attention (last 1024 keys) and a ReGLU FFN.
"""

def f2u(x):
    return struct.unpack("<I", struct.pack("<f", x))[0]

class Regs:
    def __init__(self, lo, hi):
        self.free = list(range(lo, hi))
        self.hi = lo
    def alloc(self, n=1, align=1):
        if n > 1 and align == 1:
            align = 2
        for s in self.free:
            if s % align == 0 and all((s + i) in self.free for i in range(n)):
                for i in range(n):
                    self.free.remove(s + i)
                self.hi = max(self.hi, s + n)
                return s
        raise RuntimeError("out of registers")
    def release(self, s, n=1):
        for i in range(n):
            assert (s + i) not in self.free
            self.free.append(s + i)
        self.free.sort()

def vr(b, n=1):
    return f"v{b}" if n == 1 else f"v[{b}:{b+n-1}]"

def gen(W=28, stamps=False, dbgstamps=False, wflags="nt", gflags="nt", kvflags="nt", prefetch_code=True, xcdmap=True,
        sleep=1, W2=None, vsplit=0, cset=None, lset=None, rot=17, loaderonly=False, exit_after=None, forceglobal=False, skipl=False, pretouch=True, qdelay=0, qcount=False, ntry=3, fin2=True, xfl='', pffl='', m1st='sc1', m1ld='sc1', table=(8, 8, 8, 8, 5, 1, 4, 1)):
    assert sum(table) == 43 and max(table) <= 6
    tabC = sum(c << (4*x) for x, c in enumerate(table))
    pre = [sum(table[:x]) for x in range(8)]
    tabP = sum(p << (8*x) for x, p in enumerate(pre))
    W2 = W2 or W
    a = Asm()
    KN = NAME + "_kernel"
    sWAVE, sH, sJ, sTAG, sE1 = 3, 4, 5, 6, 7
    pX, pK, pV, pWQ, pWO, pBX, pWG, pWU = 8, 10, 12, 14, 16, 18, 20, 22
    pWD, pGW, pOUT, pWS = 24, 26, 28, 30
    sU, sTMO, sT0, sT1, sT2, sT3 = 60, 61, 62, 63, 64, 65
    sCW, sB, sPG = 66, 67, 68
    sC = 58 + 12
    STAMP0 = 72
    role = ["entry"]
    def stamp(idx):
        sel = lset if role[0] == "loader" else cset
        if stamps and (sel is None or idx in sel):
            a(f"s_memrealtime s[{STAMP0+2*idx}:{STAMP0+2*idx+1}]")
            a("s_waitcnt lgkmcnt(0)")
    def dump_stamps(vtmp, vaddr, dbg_slots=None):
        if not stamps:
            return
        if dbgstamps:
            lab = a.newlabel("L_nodbg")
            a(f"""
            s_cmp_lg_u32 s2, 0
            s_cbranch_scc1 {lab}
            s_cmp_gt_u32 s{sWAVE}, 1
            s_cbranch_scc1 {lab}
            s_load_dwordx2 s[{sT2}:{sT3}], s[0:1], 88
            s_waitcnt lgkmcnt(0)
            s_mov_b64 exec, 1
            v_mov_b32 v{vaddr}, 0
            """)
            for slot, idx in dbg_slots:
                a(f"s_sub_u32 s{sT0}, s{STAMP0+2*idx}, s{STAMP0}")
                a(f"v_mov_b32 v{vtmp}, s{sT0}")
                a(f"global_store_dword v{vaddr}, v{vtmp}, s[{sT2}:{sT3}] offset:{4*slot}")
                a("s_nop 1")
            a("s_waitcnt vmcnt(0)")
            a.label(lab)
            return
        a(f"""
        s_mov_b64 exec, 1
        s_lshl_b32 s{sT0}, s2, 3
        s_add_u32 s{sT0}, s{sT0}, s{sWAVE}
        s_lshl_b32 s{sT0}, s{sT0}, 6
        s_add_u32 s{sT0}, s{sT0}, {WS_STAMP}
        s_add_u32 s{sT2}, s{pWS}, s{sT0}
        s_addc_u32 s{sT3}, s{pWS+1}, 0
        v_mov_b32 v{vaddr}, 0
        """)
        for i in range(14):
            a(f"v_mov_b32 v{vtmp}, s{STAMP0+2*i}")
            a(f"global_store_dword v{vaddr}, v{vtmp}, s[{sT2}:{sT3}] offset:{4*i}")
            a("s_nop 1")
        for i, r in ((14, 71), (15, 71)):
            a(f"v_mov_b32 v{vtmp}, s{r}")
            a(f"global_store_dword v{vaddr}, v{vtmp}, s[{sT2}:{sT3}] offset:{4*i}")
            a("s_nop 1")
        a("s_waitcnt vmcnt(0)")

    def ffn_range():
        a(f"""
        s_lshr_b32 s{sT0}, s{sH}, 2
        s_lshl_b32 s{sT1}, s{sT0}, 2
        s_lshr_b32 s{sC}, {hex(tabC)}, s{sT1}
        s_and_b32 s{sC}, s{sC}, 15
        s_lshl_b32 s{sT1}, s{sT0}, 3
        s_mov_b32 s{sT2}, {hex(tabP & 0xffffffff)}
        s_mov_b32 s{sT3}, {hex(tabP >> 32)}
        s_lshr_b64 s[{sT2}:{sT3}], s[{sT2}:{sT3}], s{sT1}
        s_and_b32 s{sU}, s{sT2}, 0xff
        s_lshl_b32 s{sU}, s{sU}, 2
        s_and_b32 s{sT0}, s{sH}, 3
        s_mul_i32 s{sT0}, s{sT0}, s{sC}
        s_add_u32 s{sU}, s{sU}, s{sT0}
        """)

    vRow4, vSl, vCb = 1, 2, 3
    vWQ = [8, 9]; vV = [10, 11]; vK = [12, 13, 14, 15]; vO = [16, 17]; vG = [18, 19]
    rK, rV, rWQ, rWO, rWG, rWU, rWD = 32, 36, 40, 44, 48, 52, 56
    sOff, sKV, sCnt, sN, sLast = 66, 67, 68, 69, 59 + 41
    a(f"""
    s_cmp_ge_u32 s2, 256
    s_cbranch_scc1 L_exit
    s_load_dwordx16 s[8:23], s[0:1], 0
    s_load_dwordx4 s[24:27], s[0:1], 64
    s_load_dwordx2 s[28:29], s[0:1], 80
    s_load_dwordx2 s[30:31], s[0:1], 96
    """)
    if stamps:
        for i in range(14):
            a(f"s_mov_b32 s{STAMP0+2*i}, 0")
        a("s_mov_b32 s71, 0")
        a(f"s_memrealtime s[{STAMP0}:{STAMP0+1}]")
    a(f"""
    v_lshrrev_b32 v1, 6, v0
    v_and_b32 v0, 63, v0
    s_and_b32 s{sT0}, s2, 7
    s_lshr_b32 s{sT1}, s2, 3
    v_readfirstlane_b32 s{sWAVE}, v1
    s_lshr_b32 s{sH}, s{sT1}, 3
    s_lshl_b32 s{sT0}, s{sT0}, 2
    s_add_u32 s{sH}, s{sH}, s{sT0}
    s_and_b32 s{sJ}, s{sT1}, 7
    {"" if xcdmap else f"s_lshr_b32 s{sH}, s2, 3"}
    {"" if xcdmap else f"s_and_b32 s{sJ}, s2, 7"}
    v_mov_b32 v4, 0
    v_mov_b32 v5, 0
    v_mov_b32 v6, 0
    v_mov_b32 v7, 0
    v_mov_b32 v26, {MISC}
    s_mov_b64 exec, 1
    ds_write_b128 v26, v[4:7]
    ds_write_b64 v26, v[4:5] offset:{NEEDG}
    s_mov_b64 exec, -1
    v_lshrrev_b32 v{vRow4}, 4, v0
    v_and_b32 v{vSl}, 15, v0
    v_lshrrev_b32 v{vCb}, 1, v{vSl}
    v_xor_b32 v{vCb}, v{vCb}, v{vRow4}
    v_and_b32 v5, 1, v0
    v_lshlrev_b32 v5, 4, v5
    v_lshl_or_b32 v6, v{vCb}, 5, v5
    v_xor_b32 v7, 0x80, v6
    v_lshl_add_u32 v{vWQ[0]}, v{vRow4}, 13, v6
    v_lshl_add_u32 v{vWQ[1]}, v{vRow4}, 13, v7
    s_lshl_b32 s{sOff}, s{sJ}, 19
    s_lshl_b32 s{sT0}, s{sH}, 8
    s_add_u32 s{sOff}, s{sOff}, s{sT0}
    s_mov_b32 s{sN}, {1 - W}
    s_mov_b32 s{sLast}, 0
    s_mov_b32 s{sTMO}, 1000000
    s_mov_b32 s{rWQ+2}, {512*4096*2}
    s_mov_b32 s{rWQ+3}, 0x20000
    s_cmp_lg_u32 s{sWAVE}, 0
    s_waitcnt lgkmcnt(0)
    s_barrier
    s_cbranch_scc1 L_compute
    s_mov_b32 s{rWQ}, s{pWQ}
    s_mov_b32 s{rWQ+1}, s{pWQ+1}
    s_setprio 3
    """)
    role[0] = "loader"
    stamp(1)
    NL = 184
    def srd(r, p, size):
        a(f"""
        s_mov_b32 s{r}, s{p}
        s_mov_b32 s{r+1}, s{p+1}
        s_mov_b32 s{r+2}, {size}
        s_mov_b32 s{r+3}, 0x20000
        """)
    sRel = 101
    def stream(name, cnt, unr, srdr, voffs, lds0, step, fl, pre=None, wait=None, rotate=False):
        Wc = wait or W
        a(f"s_mov_b32 m0, {lds0}")
        if pre:
            pre()
        a(f"s_mov_b32 s{sCnt}, {cnt // unr}")
        a.label(f"L_ld_{name}")
        for i in range(unr):
            a(f"buffer_load_dwordx4 v{voffs[i]}, s[{srdr}:{srdr+3}], s{sOff} offen {fl} lds")
            a(f"s_add_u32 m0, m0, 1024")
            if rotate:
                a(f"s_add_u32 s{sRel}, s{sRel}, 1024")
                a(f"s_and_b32 s{sRel}, s{sRel}, 0xffff")
                a(f"s_add_u32 s{sOff}, s{sKV}, s{sRel}")
            else:
                a(f"s_add_u32 s{sOff}, s{sOff}, {step}")
            a(f"s_waitcnt vmcnt({Wc-1})")
        a(f"""
        s_add_i32 s{sN}, s{sN}, {unr}
        s_max_i32 s{sLast}, s{sN}, s{sLast}
        v_mov_b32 v27, s{sLast}
        s_mov_b64 exec, 1
        ds_write_b32 v26, v27 offset:{PROG}
        s_mov_b64 exec, -1
        s_sub_u32 s{sCnt}, s{sCnt}, 1
        s_cmp_lg_u32 s{sCnt}, 0
        s_cbranch_scc1 L_ld_{name}
        """)
    stream("wq", 16, 4, rWQ, [vWQ[0], vWQ[0], vWQ[1], vWQ[1]], WQ_OFF, 4*8192, wflags)
    stamp(2)
    a(f"""
    v_lshl_add_u32 v{vV[0]}, v{vRow4}, 8, v6
    v_lshl_add_u32 v{vV[1]}, v{vRow4}, 8, v7
    v_lshrrev_b32 v20, 3, v0
    v_and_b32 v21, 7, v0
    v_lshrrev_b32 v21, 1, v21
    v_and_b32 v22, 1, v{vRow4}
    v_xor_b32 v21, v21, v22
    v_mul_u32_u24 v23, 2752, v20
    v_mov_b32 v24, 0x7fff0000
    """)
    ffn_range()
    for var in range(2):
        a(f"""
        v_xor_b32 v22, {2*var}, v21
        v_lshl_or_b32 v25, v22, 5, v5
        v_lshrrev_b32 v22, 4, v25
        v_cmp_le_u32 vcc, s{sC}, v22
        v_lshl_add_u32 v{vO[var]}, v20, 10, v25
        v_add_u32 v{vG[var]}, v23, v25
        v_cndmask_b32 v{vG[var]}, v{vG[var]}, v24, vcc
        """)
    srd(rWG, pWG, 512*1376*2); srd(rWU, pWU, 512*1376*2)
    def pre_g():
        a(f"s_mul_i32 s{sOff}, s{sJ}, {64*2752}")
        a(f"s_lshl_b32 s{sT0}, s{sU}, 4")
        a(f"s_add_u32 s{sOff}, s{sOff}, s{sT0}")
    stream("wg", 8, 4, rWG, [vG[0], vG[1], vG[0], vG[1]], WG_OFF, 8*2752, gflags, pre_g)
    stream("wu", 8, 4, rWU, [vG[0], vG[1], vG[0], vG[1]], WU_OFF, 8*2752, gflags, pre_g)
    stamp(7)
    a(f"v_xor_b32 v6, v{vSl}, v{vRow4}")
    for v in range(4):
        a(f"v_xor_b32 v7, {4*v}, v6")
        a(f"v_lshlrev_b32 v7, 4, v7")
        a(f"v_lshl_add_u32 v{vK[v]}, v{vRow4}, 8, v7")
    a(f"""
    s_lshr_b32 s{sT0}, s{sJ}, 2
    s_lshl_b32 s{sT0}, s{sT0}, 5
    s_add_u32 s{sT0}, s{sT0}, s{sH}
    s_lshl_b32 s{sKV}, s{sT0}, 20
    s_and_b32 s{sT0}, s{sJ}, 3
    s_lshl_b32 s{sT0}, s{sT0}, 16
    s_add_u32 s{sKV}, s{sKV}, s{sT0}
    s_add_u32 s{sKV}, s{sKV}, 0xC0000
    """)
    srd(rK, pK, 1 << 26); srd(rV, pV, 1 << 26)
    def pre_kv():
        a(f"s_mul_i32 s{sRel}, s2, {rot}")
        a(f"s_and_b32 s{sRel}, s{sRel}, 63")
        a(f"s_lshl_b32 s{sRel}, s{sRel}, 10")
        a(f"s_add_u32 s{sOff}, s{sKV}, s{sRel}")
    stream("k", 64, 4, rK, vK, K_OFF, 1024, kvflags, pre_kv, rotate=True)
    stamp(3)
    srd(rWO, pWO, 4096*512*2); srd(rWD, pWD, 1376*512*2)
    stream("v0", 32, 4, rV, [vV[0], vV[0], vV[1], vV[1]], V_OFF, 1024, kvflags, pre_kv, rotate=True)
    a(f"""
    L_ld_s1:
    ds_read_b32 v27, v26 offset:{S1DONE}
    s_waitcnt lgkmcnt(0)
    v_readfirstlane_b32 s{sT0}, v27
    s_cmp_ge_u32 s{sT0}, {0 if loaderonly else 4}
    s_cbranch_scc1 L_ld_s1_ok
    s_sub_u32 s{sTMO}, s{sTMO}, 1
    s_cbranch_scc1 L_exit
    s_sleep 1
    s_branch L_ld_s1
    L_ld_s1_ok:
    s_add_i32 s{sN}, s{sN}, {W - W2}
    """)
    stream("v", 32, 4, rV, [vV[0], vV[0], vV[1], vV[1]], V_OFF + 32*1024, 1024, kvflags, lambda: a("s_nop 0"), wait=W2, rotate=True)
    stamp(4)
    def pre_o():
        a(f"s_lshl_b32 s{sOff}, s{sH}, 17")
        a(f"s_lshl_b32 s{sT0}, s{sJ}, 7")
        a(f"s_add_u32 s{sOff}, s{sOff}, s{sT0}")
    def pre_d():
        a(f"s_lshl_b32 s{sOff}, s{sU}, 13")
        a(f"s_lshl_b32 s{sT0}, s{sJ}, 7")
        a(f"s_add_u32 s{sOff}, s{sOff}, s{sT0}")
    stream("wo", 16, 4, rWO, [vO[0], vO[1], vO[0], vO[1]], S2_OFF, 8192, wflags, pre_o, wait=W2)
    a(f"s_mov_b32 m0, {S2_OFF + 16*1024}")
    pre_d()
    a(f"s_mov_b32 s{sCnt}, 0x7fff0000")
    for i in range(8):
        a(f"s_cmp_lt_u32 {i}, s{sC}")
        a(f"s_cselect_b32 s{sT0}, s{sOff}, s{sCnt}")
        a(f"buffer_load_dwordx4 v{vO[i & 1]}, s[{rWD}:{rWD+3}], s{sT0} offen {wflags} lds")
        a(f"s_add_u32 m0, m0, 1024")
        a(f"s_add_u32 s{sOff}, s{sOff}, 8192")
        if 176 + i + 1 + 1 - W2 <= 160:
            a(f"s_waitcnt vmcnt({W2-1})")
        if (i & 1) and 176 + i + 1 + 1 - W2 <= 160:
            a(f"""
            s_add_i32 s{sN}, s{sN}, 2
            s_max_i32 s{sLast}, s{sN}, s{sLast}
            v_mov_b32 v27, s{sLast}
            s_mov_b64 exec, 1
            ds_write_b32 v26, v27 offset:{PROG}
            s_mov_b64 exec, -1
            """)
    landed = NL + 1 - W2
    for m in [x for x in (128, 136, 144, 152) if x > landed]:
        a(f"s_waitcnt vmcnt({NL - m})")
        a(f"v_mov_b32 v27, {m}")
        a("s_mov_b64 exec, 1")
        a(f"ds_write_b32 v26, v27 offset:{PROG}")
        a("s_mov_b64 exec, -1")
    a(f"s_waitcnt vmcnt({NL - 160})")
    stamp(5)
    a("s_barrier")
    a("s_waitcnt vmcnt(0)")
    a("s_barrier")
    stamp(6)
    a("s_waitcnt lgkmcnt(0)")
    dump_stamps(27, 28, [(0, 1), (1, 2), (2, 3), (3, 4), (4, 5), (5, 6)])
    a("s_endpgm")

    role[0] = "compute"
    a.label("L_compute")
    if loaderonly:
        a("s_endpgm")
    R = Regs(1, 256)
    vL = R.alloc(); vN = R.alloc(); vKG = R.alloc(); vR4 = R.alloc(); vC = R.alloc()
    vFF = R.alloc(); vMisc = R.alloc(); vOne = R.alloc()
    vt0 = R.alloc(8, 4); vt = [vt0 + i for i in range(8)]
    vx0 = R.alloc(4, 4); vxt = [vx0 + i for i in range(4)]
    vTR = [R.alloc(), R.alloc()]
    vTRG = R.alloc(); vTRS = R.alloc()
    vKA = [R.alloc() for _ in range(4)]
    vXB = [R.alloc(4, 4), R.alloc(4, 4)]
    vJunk = R.alloc(4, 4)
    vJunk2 = R.alloc(2, 2)
    vGx = R.alloc(12, 4)
    rWS = 32
    sM1, sM3, sM4 = 36, 37, 38
    def spin_tail(label, tight=False):
        a(f"""
        s_sub_u32 s{sTMO}, s{sTMO}, 1
        s_cbranch_scc1 L_exit
        {"" if tight else f"s_sleep {sleep}"}
        s_branch {label}
        """)
    def wait_lds(off, n, label):
        a(f"""
        {label}:
        ds_read_b32 v{vt[7]}, v{vMisc} offset:{off}
        s_waitcnt lgkmcnt(0)
        v_readfirstlane_b32 s{sT0}, v{vt[7]}
        s_cmp_ge_u32 s{sT0}, {n}
        s_cbranch_scc1 {label}_ok
        """)
        spin_tail(label)
        a.label(f"{label}_ok")
    def wait_prog(n, label, tight=False):
        a(f"""
        s_cmp_ge_u32 s{sPG}, {n}
        s_cbranch_scc1 {label}_ok
        {label}:
        ds_read_b32 v{vt[7]}, v{vMisc} offset:{PROG}
        s_waitcnt lgkmcnt(0)
        v_readfirstlane_b32 s{sPG}, v{vt[7]}
        s_cmp_ge_u32 s{sPG}, {n}
        s_cbranch_scc1 {label}_ok
        """)
        spin_tail(label, tight)
        a.label(f"{label}_ok")
    def signal(off):
        a(f"""
        s_mov_b64 exec, 1
        ds_add_u32 v{vMisc}, v{vOne} offset:{off}
        s_mov_b64 exec, -1
        """)
    def tag(v):
        a(f"v_bfi_b32 v{v}, v{vFF}, s{sTAG}, v{v}")
    def exec_n_lt2():
        a("s_mov_b32 exec_lo, 0x00030003")
        a("s_mov_b32 exec_hi, 0x00030003")
    def xrow(regs, op="v_add_f32"):
        for ins in ("v_permlane16_swap_b32", "v_permlane32_swap_b32"):
            for k0 in range(0, len(regs), 4):
                grp = regs[k0:k0+4]
                for r, t in zip(grp, vxt):
                    a(f"v_mov_b32 v{t}, v{r}")
                if len(grp) < 2:
                    a("s_nop 1")
                elif len(grp) < 3:
                    a("s_nop 0")
                for r, t in zip(grp, vxt):
                    a(f"{ins} v{t}, v{r}")
                for r, t in zip(grp, vxt):
                    a(f"{op} v{r}, v{t}, v{r}")
    vBad = R.alloc()
    def check_tags(regs):
        for r in regs:
            a(f"v_xor_b32 v{r}, s{sTAG}, v{r}")
        a(f"v_or_b32 v{vBad}, v{regs[0]}, v{regs[1]}")
        for k in range(2, len(regs), 2):
            a(f"v_or3_b32 v{vBad}, v{vBad}, v{regs[k]}, v{regs[k+1]}")
        a(f"v_and_b32 v{vBad}, v{vFF}, v{vBad}")
        a(f"v_cmp_ne_u32 vcc, 0, v{vBad}")
    def retry(label_again, label_ok):
        a(f"""
        s_cbranch_vccz {label_ok}
        s_sub_u32 s{sTMO}, s{sTMO}, 1
        s_cbranch_scc1 L_exit
        s_branch {label_again}
        {label_ok}:
        """)

    a(f"""
    v_mov_b32 v{vL}, v0
    s_sub_u32 s{sCW}, s{sWAVE}, 1
    s_lshr_b32 s{sB}, s{sJ}, 2
    s_load_dword s{sE1}, s[{pWS}:{pWS+1}], 0
    v_and_b32 v{vN}, 15, v{vL}
    v_lshrrev_b32 v{vKG}, 4, v{vL}
    v_and_b32 v{vt[0]}, 1, v{vN}
    v_lshlrev_b32 v{vt[0]}, 10, v{vt[0]}
    v_lshl_add_u32 v{vt[0]}, v{vKG}, 4, v{vt[0]}
    s_lshl_b32 s{sT0}, s{sJ}, 7
    v_add_u32 v{vt[0]}, s{sT0}, v{vt[0]}
    v_lshlrev_b32 v{vt[1]}, 4, v{vL}
    global_load_dwordx4 {vr(vXB[0],4)}, v{vt[0]}, s[{pX}:{pX+1}] {xfl}
    global_load_dwordx4 {vr(vXB[1],4)}, v{vt[0]}, s[{pX}:{pX+1}] offset:64 {xfl}
    s_mov_b32 s{sPG}, 0
    v_lshrrev_b32 v{vR4}, 2, v{vN}
    v_and_b32 v{vC}, 3, v{vN}
    v_mov_b32 v{vFF}, 0xff
    v_mov_b32 v{vMisc}, {MISC}
    v_mov_b32 v{vOne}, 1
    s_cmp_lg_u32 s{sCW}, 3
    s_cbranch_scc1 L_nopf
    global_load_dwordx4 {vr(vGx,4)}, v{vt[1]}, s[{pX}:{pX+1}] {xfl}
    global_load_dwordx4 {vr(vGx+4,4)}, v{vt[1]}, s[{pX}:{pX+1}] offset:1024 {xfl}
    global_load_dwordx4 {vr(vGx+8,4)}, v{vt[1]}, s[{pGW}:{pGW+1}] {xfl}
    """)
    if prefetch_code:
        a(f"""
        s_getpc_b64 s[{sT2}:{sT3}]
        L_pc:
        s_lshr_b32 s{sT0}, s2, 3
        s_and_b32 s{sT0}, s{sT0}, 15
        s_lshl_b32 s{sT0}, s{sT0}, 10
        s_sub_u32 s{sT2}, s{sT2}, L_pc-{KN}
        s_subb_u32 s{sT3}, s{sT3}, 0
        s_min_u32 s{sT0}, s{sT0}, L_codeend-{KN}-1024
        s_add_u32 s{sT2}, s{sT2}, s{sT0}
        s_addc_u32 s{sT3}, s{sT3}, 0
        global_load_dwordx4 {vr(vJunk,4)}, v{vt[1]}, s[{sT2}:{sT3}] {pffl}
        """)
    a.label("L_nopf")
    if pretouch:
        def pair(dst, ptr, off):
            a(f"s_add_u32 s{dst}, s{ptr}, s{off}")
            a(f"s_addc_u32 s{dst+1}, s{ptr+1}, 0")
        a(f"""
        s_cmp_eq_u32 s{sCW}, 1
        s_cbranch_scc1 L_pt1
        s_cmp_eq_u32 s{sCW}, 2
        s_cbranch_scc1 L_pt2
        s_cmp_eq_u32 s{sCW}, 3
        s_cbranch_scc1 L_pt3
        s_lshl_b32 s{sT0}, s{sB}, 5
        s_add_u32 s{sT0}, s{sT0}, s{sH}
        s_lshl_b32 s{sT0}, s{sT0}, 20
        s_and_b32 s{sT1}, s{sJ}, 3
        s_lshl_b32 s{sT1}, s{sT1}, 16
        s_add_u32 s{sT0}, s{sT0}, s{sT1}
        s_add_u32 s{sT0}, s{sT0}, 0xC0000
        """)
        pair(40, pK, sT0); pair(42, pV, sT0)
        a(f"""
        s_branch L_ptgo
        L_pt1:
        s_lshl_b32 s{sT0}, s{sH}, 17
        s_lshl_b32 s{sT1}, s{sJ}, 7
        s_add_u32 s{sT0}, s{sT0}, s{sT1}
        s_mul_i32 s{sT1}, s{sH}, 44032
        """)
        pair(40, pWO, sT0); pair(42, pWD, sT1)
        a(f"""
        s_branch L_ptgo
        L_pt2:
        s_mul_i32 s{sT0}, s{sJ}, {64*2752}
        s_lshl_b32 s{sT1}, s{sH}, 3
        s_add_u32 s{sT1}, s{sT1}, s{sJ}
        s_lshl_b32 s{sT1}, s{sT1}, 11
        s_add_u32 s{sT1}, s{sT1}, {WS_M1L}
        """)
        pair(40, pWU, sT0); pair(42, pWS, sT1)
        a(f"""
        s_branch L_ptgo
        L_pt3:
        s_lshl_b32 s{sT0}, s{sJ}, 7
        s_mul_i32 s{sT1}, s{sJ}, {64*2752}
        """)
        pair(40, pOUT, sT0); pair(42, pWG, sT1)
        a(f"""
        L_ptgo:
        v_mov_b32 v{vt[2]}, 0
        s_mov_b64 exec, 1
        global_load_dword v{vJunk2}, v{vt[2]}, s[40:41]
        global_load_dword v{vJunk2+1}, v{vt[2]}, s[42:43]
        s_mov_b64 exec, -1
        """)
    a(f"""
    s_mov_b32 s{rWS}, s{pWS}
    s_mov_b32 s{rWS+1}, s{pWS+1}
    s_mov_b32 s{rWS+2}, {WS_SIZE}
    s_mov_b32 s{rWS+3}, 0x20000
    s_lshl_b32 s{sT0}, s{sH}, 3
    s_add_u32 s{sT0}, s{sT0}, s{sJ}
    s_mul_i32 s{sM1}, s{sT0}, 2048
    s_add_u32 s{sM1}, s{sM1}, {WS_M1}
    s_mul_i32 s{sM3}, s{sT0}, 640
    s_add_u32 s{sM3}, s{sM3}, {WS_M3}
    s_lshl_b32 s{sM4}, s{sJ}, 14
    s_lshl_b32 s{sT0}, s{sH}, 9
    s_add_u32 s{sM4}, s{sM4}, s{sT0}
    s_add_u32 s{sM4}, s{sM4}, {WS_M4}
    v_lshl_add_u32 v{vt[0]}, v{vKG}, 3, v{vR4}          ; 8kg + r4
    v_and_b32 v{vt[1]}, 1, v{vKG}
    v_lshl_or_b32 v{vt[2]}, v{vt[1]}, 2, v{vR4}         ; f = r4 | (kg&1)<<2
    v_lshlrev_b32 v{vt[3]}, 8, v{vt[0]}
    v_lshl_add_u32 v{vt[3]}, v{vC}, 3, v{vt[3]}
    v_add_u32 v{vt[3]}, {V_OFF}, v{vt[3]}
    s_lshl_b32 s{sT0}, s{sCW}, 1
    v_xor_b32 v{vTR[0]}, s{sT0}, v{vt[2]}
    v_lshl_add_u32 v{vTR[0]}, v{vTR[0]}, 5, v{vt[3]}
    s_add_u32 s{sT0}, s{sT0}, 1
    v_xor_b32 v{vTR[1]}, s{sT0}, v{vt[2]}
    v_lshl_add_u32 v{vTR[1]}, v{vTR[1]}, 5, v{vt[3]}
    v_lshrrev_b32 v{vt[2]}, 1, v{vR4}
    v_lshl_or_b32 v{vt[3]}, v{vt[1]}, 1, v{vt[2]}
    v_xor_b32 v{vt[3]}, s{sCW}, v{vt[3]}
    v_lshlrev_b32 v{vt[3]}, 5, v{vt[3]}
    v_lshl_add_u32 v{vt[3]}, v{vt[0]}, 7, v{vt[3]}
    v_lshl_add_u32 v{vt[3]}, v{vC}, 3, v{vt[3]}
    v_add_u32 v{vTRG}, {WG_OFF}, v{vt[3]}
    v_add_u32 v{vTRS}, {S2_OFF}, v{vt[3]}
    s_lshl_b32 s{sT0}, s{sCW}, 14
    v_lshlrev_b32 v{vt[0]}, 8, v{vN}
    v_add_u32 v{vt[0]}, s{sT0}, v{vt[0]}
    v_xor_b32 v{vt[1]}, v{vKG}, v{vN}
    """)
    for t in range(4):
        a(f"v_xor_b32 v{vt[2]}, {4*t}, v{vt[1]}")
        a(f"v_lshl_add_u32 v{vKA[t]}, v{vt[2]}, 4, v{vt[0]}")
    stamp(1)

    vA = R.alloc(16, 4)
    vAcc = R.alloc(8, 4)
    vM1 = R.alloc()
    a(f"""
    v_lshlrev_b32 v{vM1}, 6, v{vN}
    v_lshl_add_u32 v{vM1}, v{vKG}, 4, v{vM1}
    """)
    wait_prog(16, "L_w16")
    stamp(2)
    for ti in range(2):
        for u in range(2):
            f = vA + (ti*2 + u) * 4
            a(f"ds_read_b64_tr_b16 {vr(f,2)}, v{vTR[ti]} offset:{WQ_OFF - V_OFF + u*8192}")
            a(f"ds_read_b64_tr_b16 {vr(f+2,2)}, v{vTR[ti]} offset:{WQ_OFF - V_OFF + u*8192+1024}")
    a(f"""
    s_add_u32 s{sE1}, s{sE1}, 1
    s_and_b32 s{sTAG}, s{sE1}, 0xff
    s_waitcnt vmcnt({2 if pretouch else 0}) lgkmcnt(0)
    """)
    for u in range(2):
        for ti in range(2):
            f = vA + (ti*2 + u) * 4
            c = "0" if u == 0 else vr(vAcc + 4*ti, 4)
            a(f"v_mfma_f32_16x16x32_bf16 {vr(vAcc+4*ti,4)}, {vr(f,4)}, {vr(vXB[u],4)}, {c}")
    a(f"""
    s_lshl_b32 s{sT0}, s{sCW}, 8
    s_add_u32 s{sT0}, s{sT0}, s{sM1}
    s_nop 6
    """)
    for i in range(8):
        tag(vAcc + i)
    exec_n_lt2()
    a(f"s_add_u32 s{sT1}, s{sT0}, {WS_M1L - WS_M1}")
    a(f"buffer_store_dwordx4 {vr(vAcc,4)}, v{vM1}, s[{rWS}:{rWS+3}], s{sT1} offen")
    a(f"buffer_store_dwordx4 {vr(vAcc+4,4)}, v{vM1}, s[{rWS}:{rWS+3}], s{sT1} offen offset:128")
    sMODE, sDL1, sDL3, sIDW, sXCC = 60, 69, 70, 100, 101
    a(f"""
    s_getreg_b32 s{sXCC}, hwreg(HW_REG_XCC_ID)
    s_add_u32 s{sIDW}, s{sE1}, 0x5bd1e995
    s_cmp_lg_u32 s{sCW}, 0
    s_cbranch_scc1 L_noid
    s_lshl_b32 s{sT1}, s{sH}, 7
    s_lshl_b32 s{sT2}, s{sJ}, 3
    s_add_u32 s{sT1}, s{sT1}, s{sT2}
    s_add_u32 s{sT1}, s{sT1}, {WS_ID}
    v_mov_b32 v{vt[2]}, s{sIDW}
    v_mov_b32 v{vt[3]}, s{sXCC}
    v_mov_b32 v{vt[0]}, 0
    s_mov_b64 exec, 1
    buffer_store_dwordx2 v[{vt[2]}:{vt[3]}], v{vt[0]}, s[{rWS}:{rWS+3}], s{sT1} offen
    L_noid:
    s_mov_b64 exec, -1
    """)
    stamp(3)
    vAcc2 = R.alloc(8, 4)
    a(f"""
    s_cmp_eq_u32 s{sCW}, 3
    s_cbranch_scc1 L_gate
    """)
    wait_prog(32, "L_w32")
    for mi_, off in enumerate((0, 8192)):
        for u in range(2):
            f = vA + (mi_*2 + u) * 4
            a(f"ds_read_b64_tr_b16 {vr(f,2)}, v{vTRG} offset:{off + u*4096}")
            a(f"ds_read_b64_tr_b16 {vr(f+2,2)}, v{vTRG} offset:{off + u*4096 + 512}")
    a("s_waitcnt lgkmcnt(0)")
    for u in range(2):
        for mi_ in range(2):
            f = vA + (mi_*2 + u) * 4
            c = "0" if u == 0 else vr(vAcc2 + 4*mi_, 4)
            a(f"v_mfma_f32_16x16x32_bf16 {vr(vAcc2+4*mi_,4)}, {vr(f,4)}, {vr(vXB[u],4)}, {c}")
    signal(S1DONE)
    a(f"""
    s_lshl_b32 s{sT0}, s{sCW}, 7
    s_add_u32 s{sT0}, s{sT0}, s{sM1}
    s_nop 5
    """)
    for i in range(8):
        tag(vAcc2 + i)
    exec_n_lt2()
    a(f"s_add_u32 s{sT1}, s{sT0}, {WS_M1L - WS_M1}")
    a(f"buffer_store_dwordx4 {vr(vAcc2,4)}, v{vM1}, s[{rWS}:{rWS+3}], s{sT1} offen offset:1024")
    a(f"buffer_store_dwordx4 {vr(vAcc2+4,4)}, v{vM1}, s[{rWS}:{rWS+3}], s{sT1} offen offset:1536")
    a("s_mov_b64 exec, -1")
    a("s_branch L_p3")
    a.label("L_gate")
    signal(S1DONE)
    gx0, gx1, gw = vGx, vGx + 4, vGx + 8
    z = [vt[2], vt[3]]
    a(f"v_mov_b32 v{z[0]}, 0")
    a(f"v_mov_b32 v{z[1]}, 0")
    for i in range(4):
        a(f"v_lshlrev_b32 v{vt[4]}, 16, v{gw+i}")
        a(f"v_and_b32 v{vt[5]}, 0xffff0000, v{gw+i}")
        for bi, gx in enumerate((gx0, gx1)):
            a(f"v_lshlrev_b32 v{vt[6]}, 16, v{gx+i}")
            a(f"v_fmac_f32 v{z[bi]}, v{vt[6]}, v{vt[4]}")
            a(f"v_and_b32 v{vt[6]}, 0xffff0000, v{gx+i}")
            a(f"v_fmac_f32 v{z[bi]}, v{vt[6]}, v{vt[5]}")
    for rot in (8, 4, 2, 1):
        a("s_nop 1")
        for bi in range(2):
            a(f"v_add_f32_dpp v{z[bi]}, v{z[bi]}, v{z[bi]} row_ror:{rot} row_mask:0xf bank_mask:0xf")
    xrow(z)
    a(f"""
    v_mul_f32 v{z[0]}, {hex(f2u(-1.4426950408889634))}, v{z[0]}
    v_mul_f32 v{z[1]}, {hex(f2u(-1.4426950408889634))}, v{z[1]}
    v_exp_f32 v{z[0]}, v{z[0]}
    v_exp_f32 v{z[1]}, v{z[1]}
    s_nop 0
    v_add_f32 v{z[0]}, 1.0, v{z[0]}
    v_add_f32 v{z[1]}, 1.0, v{z[1]}
    v_rcp_f32 v{z[0]}, v{z[0]}
    v_rcp_f32 v{z[1]}, v{z[1]}
    s_nop 0
    s_mov_b64 exec, 1
    ds_write_b64 v{vMisc}, v[{z[0]}:{z[1]}] offset:{GV}
    s_mov_b64 exec, -1
    """)
    a.label("L_p3")
    stamp(4)
    if exit_after == "p2":
        a("s_endpgm")
    R.release(vGx, 12)
    vG4 = R.alloc(16, 4)
    vId = R.alloc(2, 2)
    def gstores():
        lab = a.newlabel("L_gs")
        a(f"""
        s_lshl_b32 s{sT1}, s{sCW}, 8
        s_add_u32 s{sT1}, s{sT1}, s{sM1}
        s_lshl_b32 s{sT2}, s{sCW}, 7
        s_add_u32 s{sT2}, s{sT2}, s{sM1}
        """)
        exec_n_lt2()
        a(f"""
        buffer_store_dwordx4 {vr(vAcc,4)}, v{vM1}, s[{rWS}:{rWS+3}], s{sT1} offen sc1
        buffer_store_dwordx4 {vr(vAcc+4,4)}, v{vM1}, s[{rWS}:{rWS+3}], s{sT1} offen offset:128 sc1
        s_cmp_eq_u32 s{sCW}, 3
        s_cbranch_scc1 {lab}
        buffer_store_dwordx4 {vr(vAcc2,4)}, v{vM1}, s[{rWS}:{rWS+3}], s{sT2} offen offset:1024 sc1
        buffer_store_dwordx4 {vr(vAcc2+4,4)}, v{vM1}, s[{rWS}:{rWS+3}], s{sT2} offen offset:1536 sc1
        {lab}:
        s_mov_b64 exec, -1
        """)
    def needg():
        a(f"""
        s_mov_b64 exec, 1
        ds_write_b32 v{vMisc}, v{vOne} offset:{NEEDG}
        s_mov_b64 exec, -1
        """)
        gstores()
        a(f"""
        s_lshl_b32 s{sT1}, s{sH}, 7
        s_lshl_b32 s{sT2}, s{sJ}, 3
        s_add_u32 s{sT1}, s{sT1}, s{sT2}
        s_add_u32 s{sT1}, s{sT1}, {WS_IDG}
        v_mov_b32 v{vId}, s{sIDW}
        v_mov_b32 v{vId+1}, s{sXCC}
        v_mov_b32 v{vt[4]}, 0
        s_mov_b64 exec, 1
        buffer_store_dwordx2 {vr(vId,2)}, v{vt[4]}, s[{rWS}:{rWS+3}], s{sT1} offen sc1
        s_mov_b64 exec, -1
        s_mov_b32 s46, 1
        """)
    def attempt(idbase, delta, ok_label):
        a(f"buffer_load_dwordx2 {vr(vId,2)}, v{vt[3]}, s[{rWS}:{rWS+3}], s{idbase} offen sc1")
        a(f"s_add_u32 s{sT1}, s{sT0}, {delta}")
        for i in range(4):
            a(f"buffer_load_dwordx4 {vr(vG4+4*i,4)}, v{vt[1]}, s[{rWS}:{rWS+3}], s{sT1} offen sc1")
            if i < 3:
                a(f"s_add_u32 s{sT1}, s{sT1}, 4096")
        a("s_waitcnt vmcnt(0)")
        check_tags([vG4 + i for i in range(16)])
        a(f"""
        s_mov_b64 s[44:45], vcc
        v_cmp_ne_u32 vcc, s{sIDW}, v{vId}
        s_or_b64 s[44:45], s[44:45], vcc
        s_cmp_eq_u64 s[44:45], 0
        s_cbranch_scc1 {ok_label}
        """)
    a(f"""
    s_cmp_lg_u32 s{sCW}, 0
    s_cbranch_scc1 L_waitm
    s_mul_i32 s{sT0}, s{sH}, {8*2048}
    s_lshl_b32 s{sT1}, s{sB}, 6
    s_add_u32 s{sT0}, s{sT0}, s{sT1}
    s_add_u32 s{sT0}, s{sT0}, {WS_M1}
    v_lshrrev_b32 v{vt[1]}, 5, v{vL}
    v_lshlrev_b32 v{vt[1]}, 11, v{vt[1]}
    v_and_b32 v{vt[2]}, 31, v{vL}
    v_lshrrev_b32 v{vt[4]}, 2, v{vt[2]}
    v_lshl_add_u32 v{vt[1]}, v{vt[4]}, 7, v{vt[1]}
    v_and_b32 v{vt[4]}, 3, v{vt[2]}
    v_lshl_add_u32 v{vt[1]}, v{vt[4]}, 4, v{vt[1]}
    v_and_b32 v{vt[3]}, 7, v{vL}
    v_lshlrev_b32 v{vt[3]}, 3, v{vt[3]}
    s_lshl_b32 s42, s{sH}, 7
    s_add_u32 s41, s42, {WS_IDG}
    s_add_u32 s42, s42, {WS_ID}
    s_mov_b32 s43, {ntry}
    s_mov_b32 s46, 0
    """)
    if qdelay:
        wait_prog(qdelay, "L_wqd")
    a("L_ql:")
    if not skipl:
        attempt(42, WS_M1L - WS_M1, "L_have")
    a(f"""
    {"s_add_u32 s71, s71, 1" if (stamps and qcount) else ""}
    s_cmp_lg_u32 s46, 0
    s_cbranch_scc1 L_tryg
    s_sub_u32 s43, s43, 1
    s_cmp_lg_u32 s43, 0
    s_cbranch_scc1 L_ql
    """)
    needg()
    a.label("L_tryg")
    attempt(41, 0, "L_have")
    a(f"""
    s_sub_u32 s{sTMO}, s{sTMO}, 1
    s_cbranch_scc1 L_exit
    s_branch L_ql
    L_have:
    v_cmp_ne_u32 vcc, s{sXCC}, v{vId+1}
    s_mov_b32 s47, 1
    s_cbranch_vccz L_idsame
    s_mov_b32 s47, 2
    L_idsame:
    {"s_mov_b32 s47, 2" if forceglobal else ""}
    s_cmp_eq_u32 s47, 1
    s_cbranch_scc1 L_setmode
    s_cmp_lg_u32 s46, 0
    s_cbranch_scc1 L_setmode
    """)
    needg()
    a(f"""
    L_setmode:
    v_mov_b32 v{vt[4]}, s47
    s_mov_b64 exec, 1
    ds_write_b32 v{vMisc}, v{vt[4]} offset:{FMODE}
    s_mov_b64 exec, -1
    """)
    stamp(5)
    for e in range(4):
        a(f"v_add_f32 v{vG4+e}, v{vG4+e}, v{vG4+4+e}")
        a(f"v_add_f32 v{vG4+8+e}, v{vG4+8+e}, v{vG4+12+e}")
    for e in range(4):
        a(f"v_add_f32 v{vG4+e}, v{vG4+e}, v{vG4+8+e}")
    for e in range(4):
        a(f"v_mov_b32 v{vG4+4+e}, v{vG4+e}")
    for e in range(4):
        a(f"v_permlane32_swap_b32 v{vG4+4+e}, v{vG4+e}")
    for e in range(4):
        a(f"v_add_f32 v{vG4+e}, v{vG4+e}, v{vG4+4+e}")
    a(f"""
    v_cvt_pk_bf16_f32 v{vG4+4}, v{vG4}, v{vG4+1}
    v_cvt_pk_bf16_f32 v{vG4+5}, v{vG4+2}, v{vG4+3}
    v_lshl_add_u32 v{vt[2]}, v{vt[2]}, 3, v{vMisc}
    s_mov_b32 exec_hi, 0
    ds_write_b64 v{vt[2]}, {vr(vG4+4,2)} offset:{QB}
    s_mov_b64 exec, 1
    ds_write_b32 v{vMisc}, v{vOne} offset:{QRDY}
    s_mov_b64 exec, -1
    """)
    a("s_branch L_waitq")
    a(f"""
    L_waitm:
    s_mov_b32 s46, 0
    L_wm:
    ds_read_b32 v{vt[6]}, v{vMisc} offset:{QRDY}
    ds_read_b32 v{vt[7]}, v{vMisc} offset:{NEEDG}
    s_waitcnt lgkmcnt(0)
    v_readfirstlane_b32 s47, v{vt[6]}
    v_readfirstlane_b32 s{sT0}, v{vt[7]}
    s_andn2_b32 s{sT0}, s{sT0}, s46
    s_cbranch_scc0 L_wm_nog
    """)
    gstores()
    a(f"""
    s_mov_b32 s46, 1
    L_wm_nog:
    s_cmp_lg_u32 s47, 0
    s_cbranch_scc1 L_qrdy
    """)
    spin_tail("L_wm")
    a.label("L_waitq")
    a.label("L_qrdy")
    a(f"""
    ds_read_b32 v{vt[7]}, v{vMisc} offset:{FMODE}
    s_waitcnt lgkmcnt(0)
    v_readfirstlane_b32 s{sMODE}, v{vt[7]}
    s_cmp_eq_u32 s{sMODE}, 1
    s_cselect_b32 s{sDL1}, {WS_M1L - WS_M1}, 0
    s_cselect_b32 s{sDL3}, {WS_M3L - WS_M3}, 0
    """)
    stamp(6)
    if exit_after == "q":
        a("s_endpgm")
    vFoff = R.alloc()
    vF4 = R.alloc(16, 4)
    a(f"""
    v_lshlrev_b32 v{vFoff}, 11, v{vKG}
    v_lshl_add_u32 v{vFoff}, v{vR4}, 7, v{vFoff}
    v_lshl_add_u32 v{vFoff}, v{vC}, 4, v{vFoff}
    s_sub_u32 s{sT0}, s{sCW}, 1
    s_and_b32 s{sT1}, s{sT0}, 1
    s_lshl_b32 s{sT1}, s{sT1}, 6
    s_mul_i32 s39, s{sH}, {8*2048}
    s_add_u32 s39, s39, s{sT1}
    s_add_u32 s39, s39, {WS_M1 + 1024}
    s_add_u32 s39, s39, s{sDL1}
    s_cmp_gt_u32 s{sT0}, 1
    s_cbranch_scc1 L_noffn1
    """)
    def ffn_loads():
        a(f"""
        v_cmp_gt_u32 vcc, 12, v{vN}
        s_and_b64 exec, exec, vcc
        s_add_u32 s{sT1}, s39, {4*2048}
        buffer_load_dwordx4 {vr(vF4,4)}, v{vFoff}, s[{rWS}:{rWS+3}], s39 offen sc1
        buffer_load_dwordx4 {vr(vF4+4,4)}, v{vFoff}, s[{rWS}:{rWS+3}], s{sT1} offen sc1
        buffer_load_dwordx4 {vr(vF4+8,4)}, v{vFoff}, s[{rWS}:{rWS+3}], s39 offen offset:512 sc1
        buffer_load_dwordx4 {vr(vF4+12,4)}, v{vFoff}, s[{rWS}:{rWS+3}], s{sT1} offen offset:512 sc1
        s_mov_b64 exec, -1
        """)
    ffn_loads()
    a.label("L_noffn1")
    if exit_after == "ffn":
        a("s_waitcnt vmcnt(0)")
        a("s_endpgm")
    vQ = R.alloc(16, 4)
    vKf = R.alloc(64, 4)
    vS = R.alloc(16, 4)
    a(f"""
    v_lshlrev_b32 v{vt[0]}, 4, v{vKG}
    v_add_u32 v{vt[0]}, v{vMisc}, v{vt[0]}
    """)
    for t in range(4):
        a(f"ds_read_b128 {vr(vQ+4*t,4)}, v{vt[0]} offset:{QB + 64*t}")
    a(f"s_lshl_b32 s{sT1}, s{sCW}, 4")
    a(f"s_add_u32 s{sT1}, s{sT1}, 48")
    wait_prog(f"s{sT1}", "L_wk")
    for T in range(4):
        for t in range(4):
            a(f"ds_read_b128 {vr(vKf + 16*T + 4*t, 4)}, v{vKA[t]} offset:{T*4096}")
    for T in range(4):
        a(f"s_waitcnt lgkmcnt({4*(3-T)})")
        for t in range(4):
            c = "0" if t == 0 else vr(vS + 4*T, 4)
            a(f"v_mfma_f32_16x16x32_bf16 {vr(vS+4*T,4)}, {vr(vKf+16*T+4*t,4)}, {vr(vQ+4*t,4)}, {c}")
    vSt = R.alloc(2, 2)
    vMc, vSum = vSt, vSt + 1
    a(f"""
    s_mov_b32 s{sT1}, {hex(f2u(CEXP))}
    s_nop 3
    v_max3_f32 v{vMc}, v{vS}, v{vS+1}, v{vS+2}
    """)
    for k in range(3, 11, 2):
        a(f"v_max3_f32 v{vMc}, v{vMc}, v{vS+k}, v{vS+k+1}")
    a(f"v_max_f32 v{vMc}, v{vMc}, v{vS+11}")
    a("s_nop 1")
    a(f"v_max3_f32 v{vMc}, v{vMc}, v{vS+12}, v{vS+13}")
    a(f"v_max3_f32 v{vMc}, v{vMc}, v{vS+14}, v{vS+15}")
    xrow([vMc], "v_max_f32")
    a(f"""
    v_mul_f32 v{vMc}, s{sT1}, v{vMc}
    v_and_b32 v{vMc}, 0xffffff00, v{vMc}
    """)
    for k in range(16):
        a(f"v_fma_f32 v{vS+k}, v{vS+k}, s{sT1}, -v{vMc}")
    for k in range(16):
        a(f"v_exp_f32 v{vS+k}, v{vS+k}")
    for T in range(4):
        a(f"v_cvt_pk_bf16_f32 v{vKf+2*T}, v{vS+4*T}, v{vS+4*T+1}")
        a(f"v_cvt_pk_bf16_f32 v{vKf+2*T+1}, v{vS+4*T+2}, v{vS+4*T+3}")
    a(f"""
    s_lshl_b32 s{sT0}, s{sCW}, 7
    v_lshl_add_u32 v{vt[1]}, v{vKG}, 3, v{vMisc}
    v_add_u32 v{vt[1]}, s{sT0}, v{vt[1]}
    s_mov_b32 exec_lo, 0x00010001
    s_mov_b32 exec_hi, 0x00010001
    """)
    for T in range(4):
        a(f"ds_write_b64 v{vt[1]}, {vr(vKf+2*T,2)} offset:{PB + 32*T}")
    a("s_mov_b64 exec, -1")
    for k in range(0, 16, 2):
        a(f"v_add_f32 v{vS+k}, v{vS+k}, v{vS+k+1}")
    for k in range(0, 16, 4):
        a(f"v_add_f32 v{vS+k}, v{vS+k}, v{vS+k+2}")
    a(f"v_add_f32 v{vS}, v{vS}, v{vS+4}")
    a(f"v_add_f32 v{vS+8}, v{vS+8}, v{vS+12}")
    a(f"v_add_f32 v{vSum}, v{vS}, v{vS+8}")
    xrow([vSum])
    a(f"""
    s_lshl_b32 s{sT0}, s{sCW}, 3
    v_add_u32 v{vt[0]}, s{sT0}, v{vMisc}
    s_mov_b64 exec, 1
    ds_write_b64 v{vt[0]}, {vr(vSt,2)} offset:{STATW}
    ds_add_u32 v{vMisc}, v{vOne} offset:{BAR}
    s_mov_b64 exec, -1
    """)
    wait_lds(BAR, 4, "L_bar1")
    stamp(7)
    if exit_after == "bar":
        a("s_waitcnt vmcnt(0)")
        a("s_endpgm")
    R.release(vKf, 64); R.release(vQ, 16); R.release(vS, 16)
    vP = R.alloc(32, 4)
    vFw = R.alloc(8, 4)
    a(f"""
    v_lshl_add_u32 v{vt[0]}, v{vKG}, 4, v{vMisc}
    ds_read_b128 {vr(vFw,4)}, v{vMisc} offset:{STATW}
    ds_read_b128 {vr(vFw+4,4)}, v{vMisc} offset:{STATW+16}
    """)
    for u in range(8):
        a(f"ds_read_b128 {vr(vP+4*u,4)}, v{vt[0]} offset:{PB + 64*u}")
    a(f"""
    s_waitcnt lgkmcnt(8)
    v_max3_f32 v{vt[4]}, v{vFw}, v{vFw+2}, v{vFw+4}
    v_max_f32 v{vt[4]}, v{vt[4]}, v{vFw+6}
    """)
    for w in range(4):
        a(f"v_sub_f32 v{vFw+2*w}, v{vFw+2*w}, v{vt[4]}")
    for w in range(4):
        a(f"v_exp_f32 v{vFw+2*w}, v{vFw+2*w}")
    a(f"""
    s_cmp_lg_u32 s{sCW}, 0
    s_cbranch_scc1 L_nostat
    v_mul_f32 v{vt[5]}, v{vFw}, v{vFw+1}
    v_fmac_f32 v{vt[5]}, v{vFw+2}, v{vFw+3}
    v_fmac_f32 v{vt[5]}, v{vFw+4}, v{vFw+5}
    v_fmac_f32 v{vt[5]}, v{vFw+6}, v{vFw+7}
    """)
    tag(vt[4])
    tag(vt[5])
    a(f"""
    v_mov_b32 v{vt[6]}, v{vt[4]}
    v_mov_b32 v{vt[7]}, v{vt[5]}
    v_lshlrev_b32 v{vt[0]}, 4, v{vL}
    s_mov_b64 exec, 0xff
    s_add_u32 s{sT0}, s{sM3}, {WS_M3L - WS_M3}
    buffer_store_dwordx4 v[{vt[4]}:{vt[7]}], v{vt[0]}, s[{rWS}:{rWS+3}], s{sT0} offen offset:512
    s_cmp_eq_u32 s{sMODE}, 1
    s_cbranch_scc1 L_g3s
    buffer_store_dwordx4 v[{vt[4]}:{vt[7]}], v{vt[0]}, s[{rWS}:{rWS+3}], s{sM3} offen offset:512 sc1
    L_g3s:
    s_mov_b64 exec, -1
    L_nostat:
    """)
    stamp(8)
    vO = R.alloc(32, 4)
    vVf = R.alloc(32, 4)
    def pv_batch(us, need, label):
        if need is None:
            a("s_barrier")
        else:
            wait_prog(need, label, tight=(need >= 152))
        for k, u in enumerate(us):
            f0 = vVf + 8*k
            for ti in range(2):
                a(f"ds_read_b64_tr_b16 {vr(f0+4*ti,2)}, v{vTR[ti]} offset:{u*8192}")
                a(f"ds_read_b64_tr_b16 {vr(f0+4*ti+2,2)}, v{vTR[ti]} offset:{u*8192+1024}")
        for k, u in enumerate(us):
            a(f"s_waitcnt lgkmcnt({4*(len(us)-1-k)})")
            f0 = vVf + 8*k
            w = u >> 1
            for ti in range(2):
                acc = vO + 8*w + 4*ti
                c = "0" if (u & 1) == 0 else vr(acc, 4)
                a(f"v_mfma_f32_16x16x32_bf16 {vr(acc,4)}, {vr(f0+4*ti,4)}, {vr(vP+4*u,4)}, {c}")
    pv_batch([0, 1, 2, 3], 128, "L_wvA")
    vM3 = R.alloc(); vX3 = R.alloc(); vSa = R.alloc(); vSg = R.alloc(2, 2); vSgG = R.alloc(2, 2)
    vWs = R.alloc(4, 4)
    sFB = 47
    def g3_base(delta):
        a(f"""
        s_and_b32 s{sT3}, s{sCW}, 1
        s_lshl_b32 s{sT3}, s{sT3}, 8
        s_add_u32 s41, s40, s{sT3}
        s_add_u32 s41, s41, {delta}
        s_add_u32 s42, s41, 640
        s_add_u32 s43, s41, 1280
        s_add_u32 s44, s41, 1920
        """)
    a(f"""
    v_and_b32 v{vt[0]}, 1, v{vN}
    v_lshlrev_b32 v{vt[1]}, 6, v{vt[0]}
    v_lshl_add_u32 v{vM3}, v{vKG}, 4, v{vt[1]}
    s_lshr_b32 s{sT1}, s{sCW}, 1
    s_lshl_b32 s{sT2}, s{sH}, 3
    s_lshl_b32 s{sT3}, s{sT1}, 2
    s_add_u32 s{sT2}, s{sT2}, s{sT3}
    s_mul_i32 s40, s{sT2}, 640
    s_add_u32 s40, s40, {WS_M3}
    v_lshlrev_b32 v{vX3}, 2, v{vL}
    v_and_b32 v{vSa}, 3, v{vL}
    v_mul_u32_u24 v{vSa}, 640, v{vSa}
    """)
    a(f"s_add_u32 s40, s40, s{sDL3}")
    g3_base(0)
    a(f"""
    s_sub_u32 s{sT0}, s{sCW}, 1
    s_cmp_gt_u32 s{sT0}, 1
    s_cbranch_scc1 L_noffn2
    s_waitcnt vmcnt(0)
    L_ffnchk:
    v_cmp_gt_u32 vcc, 12, v{vN}
    s_and_b64 exec, exec, vcc
    """)
    check_tags([vF4 + i for i in range(16)])
    a(f"""
    s_mov_b64 exec, -1
    s_cbranch_vccz L_ffn_ok
    s_sub_u32 s{sTMO}, s{sTMO}, 1
    s_cbranch_scc1 L_exit
    """)
    ffn_loads()
    a("s_waitcnt vmcnt(0)")
    a("s_branch L_ffnchk")
    a.label("L_ffn_ok")
    gsum = [vF4 + e for e in range(4)]; usum = [vF4 + 8 + e for e in range(4)]
    for e in range(4):
        a(f"v_add_f32 v{vF4+e}, v{vF4+e}, v{vF4+4+e}")
        a(f"v_add_f32 v{vF4+8+e}, v{vF4+8+e}, v{vF4+12+e}")
    xrow(gsum + usum)
    a(f"v_cmp_gt_u32 vcc, 12, v{vN}")
    for e in range(4):
        a(f"v_max_f32 v{gsum[e]}, 0, v{gsum[e]}")
        a(f"v_mul_f32 v{gsum[e]}, v{gsum[e]}, v{usum[e]}")
        a(f"v_cndmask_b32 v{gsum[e]}, 0, v{gsum[e]}, vcc")
    a(f"""
    v_cvt_pk_bf16_f32 v{vF4+4}, v{gsum[0]}, v{gsum[1]}
    v_cvt_pk_bf16_f32 v{vF4+5}, v{gsum[2]}, v{gsum[3]}
    s_lshl_b32 s{sT0}, s{sT0}, 7
    v_lshl_add_u32 v{vt[1]}, v{vN}, 3, v{vMisc}
    v_add_u32 v{vt[1]}, s{sT0}, v{vt[1]}
    s_mov_b64 exec, 0xffff
    ds_write_b64 v{vt[1]}, {vr(vF4+4,2)} offset:{HID}
    s_mov_b64 exec, -1
    L_noffn2:
    """)
    pv_batch([4, 5], 144, "L_wvB")
    a(f"buffer_load_dwordx2 {vr(vSg,2)}, v{vSa}, s[{rWS}:{rWS+3}], s40 offen offset:512 sc1")
    for i in range(8):
        a(f"v_mul_f32 v{vO+i}, v{vFw}, v{vO+i}")
    for i in range(8):
        a(f"v_fmac_f32 v{vO+i}, v{vFw+2}, v{vO+8+i}")
    pv_batch([6], 152, "L_wvC")
    for i in range(8):
        a(f"v_fmac_f32 v{vO+i}, v{vFw+4}, v{vO+16+i}")
    a(f"""
    v_cmp_eq_u32 vcc, 1, v{vt[0]}
    s_lshl_b32 s45, s{sCW}, 7
    s_add_u32 s45, s45, s{sM3}
    s_add_u32 s46, s45, {WS_M3L - WS_M3}
    """)
    for e in range(4):
        a(f"v_cndmask_b32 v{vO+e}, v{vO+e}, v{vO+4+e}, vcc")
    pv_batch([7], None, "L_wvD")
    a("s_nop 7")
    for e in range(4):
        a(f"v_cndmask_b32 v{vO+24+e}, v{vO+24+e}, v{vO+28+e}, vcc")
    for e in range(4):
        a(f"v_fmac_f32 v{vO+e}, v{vFw+6}, v{vO+24+e}")
    for e in range(4):
        tag(vO + e)
    exec_n_lt2()
    a(f"buffer_store_dwordx4 {vr(vO,4)}, v{vM3}, s[{rWS}:{rWS+3}], s46 offen")
    a(f"s_cmp_eq_u32 s{sMODE}, 1")
    a("s_cbranch_scc1 L_g3o")
    a(f"buffer_store_dwordx4 {vr(vO,4)}, v{vM3}, s[{rWS}:{rWS+3}], s45 offen sc1")
    a.label("L_g3o")
    a("s_mov_b64 exec, -1")
    stamp(9)
    R.release(vP, 32); R.release(vVf, 32); R.release(vFw, 8)
    vG3 = vG4
    vG3b = vG4 + 4
    def g3_loads(dst):
        for s_ in range(4):
            a(f"buffer_load_dword v{dst+s_}, v{vX3}, s[{rWS}:{rWS+3}], s{41+s_} offen sc1")
    a("s_waitcnt vmcnt(1)")
    a("L_sg:")
    check_tags([vSg, vSg + 1])
    a(f"""
    s_cbranch_vccz L_sg_ok
    s_sub_u32 s{sTMO}, s{sTMO}, 1
    s_cbranch_scc1 L_exit
    buffer_load_dwordx2 {vr(vSg,2)}, v{vSa}, s[{rWS}:{rWS+3}], s40 offen offset:512 sc1
    s_waitcnt vmcnt(0)
    s_branch L_sg
    L_sg_ok:
    v_mov_b32 v{vt[3]}, v{vSg}
    s_nop 1
    v_max_f32_dpp v{vt[3]}, v{vt[3]}, v{vt[3]} quad_perm:[1,0,3,2] row_mask:0xf bank_mask:0xf
    s_nop 1
    v_max_f32_dpp v{vt[3]}, v{vt[3]}, v{vt[3]} quad_perm:[2,3,0,1] row_mask:0xf bank_mask:0xf
    v_sub_f32 v{vt[3]}, v{vSg}, v{vt[3]}
    v_exp_f32 v{vt[3]}, v{vt[3]}
    s_nop 0
    v_mul_f32 v{vt[4]}, v{vt[3]}, v{vSg+1}
    s_nop 1
    v_add_f32_dpp v{vt[4]}, v{vt[4]}, v{vt[4]} quad_perm:[1,0,3,2] row_mask:0xf bank_mask:0xf
    s_nop 1
    v_add_f32_dpp v{vt[4]}, v{vt[4]}, v{vt[4]} quad_perm:[2,3,0,1] row_mask:0xf bank_mask:0xf
    v_rcp_f32 v{vt[4]}, v{vt[4]}
    s_nop 0
    v_mul_f32 v{vt[3]}, v{vt[3]}, v{vt[4]}
    s_nop 1
    """)
    for s_ in range(4):
        a(f"v_mov_b32_dpp v{vWs+s_}, v{vt[3]} quad_perm:[{s_},{s_},{s_},{s_}] row_mask:0xf bank_mask:0xf")
    vWf = R.alloc(16, 4); vDf = R.alloc(8, 4); vHf = R.alloc(8, 4)
    vYa = R.alloc(4, 4); vYf = R.alloc(4, 4); vGl = R.alloc()
    vAH = R.alloc(); vAG = R.alloc(); vAO = R.alloc(); vAW = R.alloc(); vM4 = R.alloc()
    a(f"""
    v_and_b32 v{vt[0]}, 1, v{vN}
    v_lshlrev_b32 v{vt[1]}, 7, v{vt[0]}
    v_add_u32 v{vt[1]}, v{vMisc}, v{vt[1]}
    v_lshl_add_u32 v{vAH}, v{vKG}, 4, v{vt[1]}
    v_lshl_add_u32 v{vAG}, v{vt[0]}, 2, v{vMisc}
    v_lshlrev_b32 v{vt[1]}, 8, v{vt[0]}
    v_lshl_add_u32 v{vt[1]}, v{vKG}, 4, v{vt[1]}
    v_add_u32 v{vAO}, v{vMisc}, v{vt[1]}
    v_lshlrev_b32 v{vt[1]}, 6, v{vt[0]}
    v_lshl_add_u32 v{vM4}, v{vKG}, 4, v{vt[1]}
    s_lshl_b32 s{sT0}, s{sCW}, 7
    v_lshl_add_u32 v{vAW}, v{vL}, 1, v{vMisc}
    v_add_u32 v{vAW}, s{sT0}, v{vAW}
    s_lshl_b32 s48, s{sCW}, 7
    s_add_u32 s48, s48, s{sM4}
    """)
    vFa = R.alloc(); vFo = R.alloc()
    a(f"""
    s_lshl_b32 s{sT0}, s{sJ}, 14
    s_lshl_b32 s{sT1}, s{sCW}, 7
    s_add_u32 s{sT0}, s{sT0}, s{sT1}
    s_add_u32 s50, s{sT0}, {WS_M4}
    s_add_u32 s51, s50, 4096
    s_add_u32 s52, s50, 8192
    s_add_u32 s53, s50, 12288
    v_lshrrev_b32 v{vFa}, 3, v{vL}
    v_lshlrev_b32 v{vFa}, 9, v{vFa}
    v_and_b32 v{vFo}, 7, v{vL}
    v_lshl_add_u32 v{vFa}, v{vFo}, 4, v{vFa}
    s_lshl_b32 s{sT0}, s{sJ}, 7
    s_lshl_b32 s{sT1}, s{sCW}, 5
    s_add_u32 s{sT0}, s{sT0}, s{sT1}
    v_lshrrev_b32 v{vt[3]}, 2, v{vFo}
    v_lshlrev_b32 v{vt[3]}, 10, v{vt[3]}
    v_and_b32 v{vFo}, 3, v{vFo}
    v_lshl_add_u32 v{vFo}, v{vFo}, 3, v{vt[3]}
    v_lshl_add_u32 v{vFo}, v{vKG}, 1, v{vFo}
    v_add_u32 v{vFo}, s{sT0}, v{vFo}
    """)
    g3_loads(vG3)
    a("s_barrier")
    for u in range(4):
        a(f"ds_read_b64_tr_b16 {vr(vWf+4*u,2)}, v{vTRS} offset:{u*4096}")
        a(f"ds_read_b64_tr_b16 {vr(vWf+4*u+2,2)}, v{vTRS} offset:{u*4096+512}")
    a(f"""
    ds_read_b64_tr_b16 {vr(vDf,2)}, v{vTRS} offset:{4*4096}
    ds_read_b64_tr_b16 {vr(vDf+2,2)}, v{vTRS} offset:{4*4096+512}
    ds_read_b64_tr_b16 {vr(vDf+4,2)}, v{vTRS} offset:{5*4096}
    ds_read_b64_tr_b16 {vr(vDf+6,2)}, v{vTRS} offset:{5*4096+512}
    """)
    g3_loads(vG3b)
    stamp(11)
    a(f"""
    L_g3:
    s_waitcnt vmcnt(4)
    """)
    check_tags([vG3 + i for i in range(4)])
    a(f"""
    s_cbranch_vccz L_g3_ok
    s_sub_u32 s{sTMO}, s{sTMO}, 1
    s_cbranch_scc1 L_exit
    """)
    if stamps and not qcount: a("s_add_u32 s71, s71, 1")
    g3_loads(vG3)
    a("s_waitcnt vmcnt(4)")
    check_tags([vG3b + i for i in range(4)])
    a("s_cbranch_vccz L_g3_okb")
    g3_loads(vG3b)
    vRes = R.alloc()
    def combine(src):
        a(f"v_mul_f32 v{vRes}, v{vWs}, v{src}")
        for k in range(1, 4):
            a(f"v_fmac_f32 v{vRes}, v{vWs+k}, v{src+k}")
    a("s_branch L_g3")
    a.label("L_g3_okb")
    combine(vG3b)
    a("s_branch L_g3_done")
    a.label("L_g3_ok")
    combine(vG3)
    a.label("L_g3_done")
    stamp(12)
    a(f"""
    v_cvt_pk_bf16_f32 v{vRes}, v{vRes}, v{vRes}
    ds_write_b16 v{vAW}, v{vRes} offset:{OB}
    ds_read_b128 {vr(vHf,4)}, v{vAH} offset:{HID}
    ds_read_b128 {vr(vHf+4,4)}, v{vAH} offset:{HID+64}
    ds_read_b32 v{vGl}, v{vAG} offset:{GV}
    s_waitcnt lgkmcnt(0)
    s_barrier
    """)
    vOf = R.alloc(16, 4)
    for u in range(4):
        a(f"ds_read_b128 {vr(vOf+4*u,4)}, v{vAO} offset:{OB + 64*u}")
    a(f"v_mfma_f32_16x16x32_bf16 {vr(vYf,4)}, {vr(vDf,4)}, {vr(vHf,4)}, 0")
    a(f"v_mfma_f32_16x16x32_bf16 {vr(vYf,4)}, {vr(vDf+4,4)}, {vr(vHf+4,4)}, {vr(vYf,4)}")
    a(f"v_sub_f32 v{vt[0]}, 1.0, v{vGl}")
    for u in range(4):
        a(f"s_waitcnt lgkmcnt({3-u})")
        c = "0" if u == 0 else vr(vYa, 4)
        a(f"v_mfma_f32_16x16x32_bf16 {vr(vYa,4)}, {vr(vWf+4*u,4)}, {vr(vOf+4*u,4)}, {c}")
    for e in range(4):
        a(f"v_mul_f32 v{vYf+e}, v{vt[0]}, v{vYf+e}")
    a("s_nop 3")
    for e in range(4):
        a(f"v_fma_f32 v{vYa+e}, v{vGl}, v{vYa+e}, v{vYf+e}")
    for e in range(4):
        tag(vYa + e)
    exec_n_lt2()
    a(f"buffer_store_dwordx4 {vr(vYa,4)}, v{vM4}, s[{rWS}:{rWS+3}], s48 offen sc1")
    a("s_mov_b64 exec, -1")
    vFin = R.alloc(4, 4)
    a(f"""
    s_lshl_b32 s{sT0}, s{sJ}, 2
    s_cmp_lg_u32 s{sT0}, s{sH}
    s_cbranch_scc1 L_done
    """)
    vG5 = vF4
    def g4_loads(dst):
        for i in range(4):
            a(f"buffer_load_dwordx4 {vr(dst+4*i,4)}, v{vFa}, s[{rWS}:{rWS+3}], s{50+i} offen sc1")
    if fin2:
        g4_loads(vG4)
        g4_loads(vG5)
        a("L_g4:")
        a("s_waitcnt vmcnt(4)")
        check_tags([vG4 + i for i in range(16)])
        a(f"""
        s_cbranch_vccz L_g4_ok
        s_sub_u32 s{sTMO}, s{sTMO}, 1
        s_cbranch_scc1 L_exit
        """)
        g4_loads(vG4)
        a("s_waitcnt vmcnt(4)")
        check_tags([vG5 + i for i in range(16)])
        a("s_cbranch_vccz L_g4_okb")
        g4_loads(vG5)
        a("s_branch L_g4")
        a("L_g4_okb:")
        for e in range(4):
            a(f"v_add_f32 v{vG5+e}, v{vG5+e}, v{vG5+4+e}")
            a(f"v_add_f32 v{vG5+8+e}, v{vG5+8+e}, v{vG5+12+e}")
        for e in range(4):
            a(f"v_add_f32 v{vFin+e}, v{vG5+e}, v{vG5+8+e}")
        a("s_branch L_g4_sum")
        a("L_g4_ok:")
    else:
        a("L_g4:")
        g4_loads(vG4)
        a("s_waitcnt vmcnt(0)")
        check_tags([vG4 + i for i in range(16)])
        retry("L_g4", "L_g4_ok")
    for e in range(4):
        a(f"v_add_f32 v{vG4+e}, v{vG4+e}, v{vG4+4+e}")
        a(f"v_add_f32 v{vG4+8+e}, v{vG4+8+e}, v{vG4+12+e}")
    for e in range(4):
        a(f"v_add_f32 v{vFin+e}, v{vG4+e}, v{vG4+8+e}")
    a("L_g4_sum:")
    a(f"""
    s_nop 0
    v_permlane32_swap_b32 v{vFin}, v{vFin+2}
    v_permlane32_swap_b32 v{vFin+1}, v{vFin+3}
    v_add_f32 v{vFin}, v{vFin}, v{vFin+2}
    v_add_f32 v{vFin+1}, v{vFin+1}, v{vFin+3}
    s_nop 1
    v_permlane16_swap_b32 v{vFin}, v{vFin+1}
    v_add_f32 v{vFin}, v{vFin}, v{vFin+1}
    s_nop 1
    v_add_f32_dpp v{vFin}, v{vFin}, v{vFin} row_ror:8 row_mask:0xf bank_mask:0xf
    v_cvt_pk_bf16_f32 v{vFin}, v{vFin}, v{vFin}
    s_mov_b32 exec_lo, 0x00ff00ff
    s_mov_b32 exec_hi, 0x00ff00ff
    global_store_short v{vFo}, v{vFin}, s[{pOUT}:{pOUT+1}]
    s_or_b32 s{sT0}, s{sJ}, s{sCW}
    s_cmp_lg_u32 s{sT0}, 0
    s_cbranch_scc1 L_done
    s_mov_b64 exec, 1
    v_mov_b32 v{vt[0]}, 0
    v_mov_b32 v{vt[1]}, s{sE1}
    global_store_dword v{vt[0]}, v{vt[1]}, s[{pWS}:{pWS+1}] sc1
    L_done:
    """)
    stamp(13)
    dump_stamps(vt[0], vt[1], [(6, 2), (7, 3), (8, 5), (9, 6), (10, 7), (11, 9), (12, 11), (13, 12), (14, 13)])
    a.label("L_exit")
    a("s_endpgm")
    a.label("L_codeend")
    nv = R.hi
    txt = (f"; @launch grid=(256,1,1) block=(320,1,1) lds={LDS_BYTES}\n" + HEADER_DOC + HEAD + kernel_begin(KN) + a.text()
           + kernel_desc(KN, nv, sgpr=102))
    return txt

if __name__ == "__main__":
    import argparse
    ap = argparse.ArgumentParser()
    ap.add_argument("-o", default="main.s"); ap.add_argument("--stamps", action="store_true")
    ap.add_argument("-W", type=int, default=24)
    ap.add_argument("--nopf", action="store_true")
    ap.add_argument("--nopt", action="store_true")
    ap.add_argument("--qdelay", type=int, default=48)
    ap.add_argument("--qcount", action="store_true")
    ap.add_argument("--sleep", type=int, default=3)
    ap.add_argument("--skipl", action="store_true")
    ap.add_argument("--xfl", default=""); ap.add_argument("--pffl", default="")
    ap.add_argument("--fin1", action="store_true")
    ap.add_argument("--gfl", default=None); ap.add_argument("--wfl", default=None); ap.add_argument("--kvfl", default=None)
    ap.add_argument("--forceglobal", action="store_true")
    ap.add_argument("--ntry", type=int, default=3)
    ap.add_argument("--m1st", default="sc1"); ap.add_argument("--m1ld", default="sc1")
    ap.add_argument("--table", default="6,5,6,5,6,5,5,5")
    ap.add_argument("--exit", default=None)
    ap.add_argument("--loaderonly", action="store_true")
    ap.add_argument("--rot", type=int, default=17)
    ap.add_argument("--vsplit", type=int, default=0)
    ap.add_argument("--cset", default=None); ap.add_argument("--lset", default=None)
    ap.add_argument("--W2", type=int, default=None)
    ap.add_argument("--dbg", action="store_true")
    ap.add_argument("--nont", action="store_true")
    ap.add_argument("--noxcd", action="store_true")
    x = ap.parse_args()
    fl = "" if x.nont else "nt"
    open(x.o, "w").write(gen(W=x.W, W2=x.W2, pretouch=not x.nopt, qdelay=x.qdelay, qcount=x.qcount, sleep=x.sleep, skipl=x.skipl, xfl=x.xfl, pffl=x.pffl, fin2=not x.fin1, forceglobal=x.forceglobal, ntry=x.ntry, m1st=x.m1st, m1ld=x.m1ld, table=tuple(int(c) for c in x.table.split(',')), exit_after=x.exit, loaderonly=x.loaderonly, rot=x.rot, vsplit=x.vsplit, cset=None if x.cset is None else [int(i) for i in x.cset.split(',')], lset=None if x.lset is None else [int(i) for i in x.lset.split(',')], stamps=x.stamps or x.dbg, dbgstamps=x.dbg, prefetch_code=not x.nopf,
                             wflags=fl if x.wfl is None else x.wfl, gflags=fl if x.gfl is None else x.gfl, kvflags=fl if x.kvfl is None else x.kvfl, xcdmap=not x.noxcd))
```
